```python
import torch

def _softmax(x, axis=-1):
    return torch.softmax(x, dim=axis)

def _gelu(x):
    return torch.nn.functional.gelu(x, approximate='tanh')

def _silu(x):
    return torch.nn.functional.silu(x)

def _sigmoid(x):
    return torch.sigmoid(x)

def _layernorm(x, axis=-1, eps=1e-05):
    m = x.mean(dim=axis, keepdim=True)
    v = x.var(dim=axis, keepdim=True, unbiased=False)
    return (x - m) / torch.sqrt(v + eps)

def _scatter_add(tgt, idx, src, axis=0):
    return tgt.clone().index_add_(axis, idx, src)

def _segment_sum(src, seg, n):
    out = torch.zeros((n,) + src.shape[1:], dtype=src.dtype)
    return out.index_add_(0, seg, src)

def _pad(x, pw):
    flat = tuple((v for pair in reversed(pw) for v in pair))
    return torch.nn.functional.pad(x, flat)
kernel_name = 'standalone__video_timesformer__vision'

def setup_inputs():

    _w = lambda a: (lambda t: t.to(torch.bfloat16) if t.is_floating_point() else t)(torch.as_tensor(a))
    T = 8
    p = 14
    HW = 384 // p * p
    N = (HW // p) ** 2
    C = 192
    return {'x': _w((lambda *s: torch.randn(*s, dtype=torch.bfloat16) * 0.05)(1, T, N, C)), 'wqkv_t': _w((lambda *s: torch.randn(*s, dtype=torch.bfloat16) * 0.05)(C, 3 * C)), 'wo_t': _w((lambda *s: torch.randn(*s, dtype=torch.bfloat16) * 0.05)(C, C)), 'wqkv_s': _w((lambda *s: torch.randn(*s, dtype=torch.bfloat16) * 0.05)(C, 3 * C)), 'wo_s': _w((lambda *s: torch.randn(*s, dtype=torch.bfloat16) * 0.4)(C, C))}

def reference(x, wqkv_t, wo_t, wqkv_s, wo_s):
    B, T, N, C = x.shape
    scale = C ** (-0.5)
    xt = (lambda x, *d: x.permute(*d))(x, 0, 2, 1, 3).reshape(B * N, T, C)
    h = _layernorm(xt, axis=-1)
    qkv = h @ wqkv_t
    q, k, v = (qkv[..., :C].clone(), qkv[..., C:2 * C].clone(), qkv[..., 2 * C:].clone())
    a = _softmax(torch.einsum('btc,bsc->bts', q, k) * scale, axis=-1)
    xt = xt + torch.einsum('bts,bsc->btc', a, v) @ wo_t
    x1 = (lambda x, *d: x.permute(*d))(xt.reshape(B, N, T, C), 0, 2, 1, 3)
    xs = x1.reshape(B * T, N, C)
    h = _layernorm(xs, axis=-1)
    qkv = h @ wqkv_s
    q, k, v = (qkv[..., :C].clone(), qkv[..., C:2 * C].clone(), qkv[..., 2 * C:].clone())
    a = _softmax(torch.einsum('bnc,bmc->bnm', q, k) * scale, axis=-1)
    xs = xs + torch.einsum('bnm,bmc->bnc', a, v) @ wo_s
    return xs.reshape(B, T, N, C)
```

```python
import re

TRANS = ("v_exp_f32", "v_log_f32", "v_rcp_f32", "v_rsq_f32", "v_sqrt_f32", "v_sin_f32", "v_cos_f32")
MFMA_PASSES = {"v_mfma_f32_32x32x16_bf16": 8, "v_mfma_f32_16x16x32_bf16": 4, "v_mfma_f32_16x16x16_bf16": 4}

def split_ops(s):
    out, depth, cur = [], 0, ""
    for ch in s:
        if ch == "[": depth += 1
        if ch == "]": depth -= 1
        if ch == "," and depth == 0:
            out.append(cur.strip()); cur = ""
        else:
            cur += ch
    if cur.strip(): out.append(cur.strip())
    return out

REG = re.compile(r"^-?\|?(?:abs\()?([vas])(?:(\d+)|\[(\d+):(\d+)\])\)?\|?$")
def regs(tok):
    tok = tok.strip()
    if tok in ("vcc", "exec"): return {(tok, 0)}
    if tok in ("vcc_lo", "vcc_hi"): return {("vcc", 0)}
    if tok in ("exec_lo", "exec_hi"): return {("exec", 0)}
    if tok == "m0": return {("m0", 0)}
    m = REG.match(tok)
    if not m: return set()
    k = m.group(1)
    if m.group(2) is not None: return {(k, int(m.group(2)))}
    return {(k, i) for i in range(int(m.group(3)), int(m.group(4)) + 1)}

class Ins:
    __slots__ = ("text", "mn", "kind", "rd", "wr", "ops", "mods", "tag", "needs", "pat", "addr_rd", "data_rd", "srcC", "line")
    def __init__(self, text, tag=None, needs=(), pat=None):
        self.text, self.tag, self.needs, self.pat = text, tag, tuple(needs), pat
        t = text.split(";")[0].strip()
        self.rd, self.wr, self.ops, self.mods = set(), set(), [], ""
        self.addr_rd, self.data_rd, self.srcC = set(), set(), set()
        if t.endswith(":"):
            self.mn, self.kind = t[:-1], "label"; return
        if t.startswith("."):
            self.mn, self.kind = t, "dir"; return
        p = t.split(None, 1)
        mn = p[0]; rest = p[1] if len(p) > 1 else ""
        mn = re.sub(r"_(e32|e64|dpp|sdwa)$", "", mn)
        self.mn = mn
        ops = split_ops(rest)
        if ops:
            last = ops[-1].split()
            ops[-1] = last[0] if last else ""
            self.mods = " ".join(last[1:])
        self.ops = ops
        R = regs
        if mn.startswith("v_mfma"):
            self.kind = "mfma"
            self.wr = R(ops[0]); self.srcC = R(ops[3]); self.rd = R(ops[1]) | R(ops[2]) | self.srcC
        elif mn.startswith("ds_"):
            if mn.startswith("ds_read"):
                self.kind = "ds_read"; self.wr = R(ops[0]); self.addr_rd = R(ops[1]); self.rd = set(self.addr_rd)
            elif mn.startswith("ds_write"):
                self.kind = "ds_write"; self.addr_rd = R(ops[0]); self.data_rd = set().union(*[R(o) for o in ops[1:]]); self.rd = self.addr_rd | self.data_rd
            else: raise ValueError(text)
        elif mn.startswith("buffer_"):
            full = rest
            if "_load" in mn and re.search(r"\blds\b", full):
                self.kind = "dma"; self.addr_rd = R(ops[0]); self.rd = R(ops[0]) | R(ops[1]) | R(ops[2]) | {("m0", 0)}
            elif "_load" in mn:
                self.kind = "vload"; self.wr = R(ops[0]); self.addr_rd = R(ops[1]); self.rd = R(ops[1]) | R(ops[2]) | R(ops[3])
            elif "_store" in mn:
                self.kind = "vstore"; self.data_rd = R(ops[0]); self.addr_rd = R(ops[1]); self.rd = R(ops[0]) | R(ops[1]) | R(ops[2]) | R(ops[3])
            elif "_atomic" in mn:
                self.kind = "vatomic"; self.data_rd = R(ops[0]); self.addr_rd = R(ops[1]); self.rd = R(ops[0]) | R(ops[1]) | R(ops[2]) | R(ops[3])
                if "sc0" in self.mods: self.wr = R(ops[0])
            else: raise ValueError(text)
        elif mn.startswith("global_"):
            if "_load" in mn:
                self.kind = "vload"; self.wr = R(ops[0]); self.addr_rd = R(ops[1]); self.rd = R(ops[1]) | R(ops[2])
            elif "_store" in mn:
                self.kind = "vstore"; self.addr_rd = R(ops[0]); self.data_rd = R(ops[1]); self.rd = R(ops[0]) | R(ops[1]) | R(ops[2])
            else: raise ValueError(text)
        elif mn.startswith("v_"):
            self.kind = "trans" if mn in TRANS else "valu"
            if mn.startswith("v_cmp"):
                self.wr = R(ops[0]); self.rd = set().union(*[R(o) for o in ops[1:]])
            elif mn.startswith("v_permlane"):
                self.wr = R(ops[0]) | R(ops[1]); self.rd = set(self.wr)
            elif mn in ("v_add_co_u32", "v_sub_co_u32"):
                self.wr = R(ops[0]) | R(ops[1]); self.rd = R(ops[2]) | R(ops[3])
            elif mn in ("v_addc_co_u32",):
                self.wr = R(ops[0]) | R(ops[1]); self.rd = R(ops[2]) | R(ops[3]) | R(ops[4])
            else:
                self.wr = R(ops[0]); self.rd = set().union(*[R(o) for o in ops[1:]]) if len(ops) > 1 else set()
                if mn in ("v_fmac_f32", "v_pk_fmac_f16", "v_dot2c_f32_bf16", "v_writelane_b32"): self.rd |= self.wr
                if mn == "v_cndmask_b32" and len(ops) == 3: self.rd |= {("vcc", 0)}
                if "dpp" in text or "quad_perm" in text or "row_" in text:
                    if "bound_ctrl" not in text: self.rd |= self.wr
        elif mn.startswith("s_"):
            if mn == "s_waitcnt": self.kind = "wait"
            elif mn == "s_nop": self.kind = "nop"
            elif mn == "s_barrier": self.kind = "barrier"
            elif mn in ("s_branch",) or mn.startswith("s_cbranch"): self.kind = "branch"
            elif mn == "s_endpgm": self.kind = "end"
            elif mn.startswith("s_load") or mn in ("s_memtime", "s_memrealtime"):
                self.kind = "smem"; self.wr = R(ops[0]); self.rd = R(ops[1]) if len(ops) > 1 else set()
            elif mn.startswith("s_cmp") or mn.startswith("s_bitcmp"):
                self.kind = "salu"; self.rd = set().union(*[R(o) for o in ops])
            elif mn in ("s_setprio", "s_sleep"): self.kind = "salu"
            elif "saveexec" in mn:
                self.kind = "salu"; self.wr = R(ops[0]) | {("exec", 0)}; self.rd = R(ops[1]) | {("exec", 0)}
            else:
                self.kind = "salu"; self.wr = R(ops[0]); self.rd = set().union(*[R(o) for o in ops[1:]]) if len(ops) > 1 else set()
        else:
            raise ValueError("unknown instruction: " + text)

    def states(self):
        if self.kind in ("label", "dir"): return 0
        if self.kind == "nop": return int(self.ops[0]) + 1
        return 1
    def is_valu(self): return self.kind in ("valu", "trans")
    def is_dpp(self): return "quad_perm" in self.text or "row_" in self.text
    def vgpr(self, s): return {r for r in s if r[0] in "va"}

class Prog:
    def __init__(self):
        self.ins = []
    def I(self, text, tag=None, needs=(), pat=None):
        for ln in text.strip().split("\n"):
            ln = ln.strip()
            if not ln or ln.startswith(";"): continue
            self.ins.append(Ins(ln, tag, needs, pat))
        return self
    def L(self, name): self.ins.append(Ins(name + ":"))
    def nop(self, n):
        while n > 0:
            k = min(n, 16); self.I(f"s_nop {k-1}"); n -= k
    def text(self):
        out = []
        for i in self.ins:
            out.append(i.text if i.kind == "label" else "  " + i.text)
        return "\n".join(out) + "\n"

    def trace(self, start, choices, limit=200000):
        lab = {i.mn: n for n, i in enumerate(self.ins) if i.kind == "label"}
        pos = lab[start]; seen = {}; out = []
        while True:
            if len(out) > limit: raise RuntimeError("trace too long")
            i = self.ins[pos]; out.append(i)
            if i.kind == "end": return out
            if i.kind == "branch":
                tgt = i.ops[0]
                if i.mn == "s_branch": pos = lab[tgt]; continue
                key = i.pat or tgt
                seq = choices.get(key, [0]); n = seen.get(key, 0); seen[key] = n + 1
                if seq[min(n, len(seq) - 1)]: pos = lab[tgt]; continue
            pos += 1

def check_hazards(tr, name=""):
    errs = []
    real = [i for i in tr if i.kind not in ("label", "dir")]
    for n, c in enumerate(real):
        dist = 0
        for p in reversed(real[max(0, n - 24):n]):
            need = 0; why = ""
            pw, pr = p.wr, p.rd
            def upd(k, w):
                nonlocal need, why
                if k > need: need, why = k, w
            if p.is_valu():
                vw = p.vgpr(pw)
                if c.kind == "mfma" and vw & c.rd: upd(2, "VALU->MFMA operand")
                if c.is_valu() and c.is_dpp() and vw & c.rd: upd(2, "VALU->DPP")
                if c.mn.startswith("v_permlane") and vw & c.rd: upd(2, "VALU->permlane")
                if c.mn in ("v_readfirstlane_b32", "v_readlane_b32") and vw & c.rd: upd(1, "VALU->readlane")
                sw = {r for r in pw if r[0] in ("s", "vcc")}
                if c.is_valu() and sw & c.rd: upd(2, "VALU sgpr/vcc -> VALU read")
                if c.kind in ("vload", "vstore", "vatomic", "dma") and sw & c.rd: upd(5, "VALU sgpr -> VMEM")
                if p.kind == "trans" and c.kind == "valu" and vw & c.rd: upd(1, "trans->VALU")
                if p.kind == "trans" and c.kind == "mfma" and vw & c.rd: upd(2, "trans->MFMA")
                if ("exec", 0) in pw and (c.is_valu() or c.kind == "mfma"): upd(4, "VALU exec write")
            if p.kind == "mfma":
                ps = MFMA_PASSES[p.mn]; D = p.wr
                big = {4: 8, 8: 12}[ps]
                if c.is_valu() and (D & (c.rd | c.wr)): upd(big, "MFMA D -> VALU")
                if c.kind in ("ds_write", "vstore", "vatomic", "ds_read", "vload", "dma") and (D & (c.rd | c.wr)): upd(big, "MFMA D -> mem op")
                if c.kind == "mfma":
                    ab = regs(c.ops[1]) | regs(c.ops[2])
                    if D & ab: upd(big, "MFMA D -> MFMA A/B")
                    if D & c.srcC:
                        same = (c.srcC == D and MFMA_PASSES[c.mn] == ps)
                        if not same: upd({4: 6, 8: 10}[ps], "MFMA D -> overlapped SrcC")
                    if (D & c.wr) and not (D & c.srcC): upd({4: 6, 8: 10}[ps], "MFMA D -> MFMA D (WAW)")
                if c.is_valu() and (p.srcC & c.wr): upd({4: 3, 8: 7}[ps], "MFMA SrcC -> VALU write")
            if p.kind in ("vstore", "vatomic") and len(p.data_rd) >= 3:
                if c.is_valu() and (p.data_rd & c.wr): upd(2, "wide store data WAR (VALU)")
                elif p.data_rd & c.wr: upd(1, "wide store data WAR")
            if p.kind == "salu" and ("m0", 0) in pw and c.kind == "dma": upd(1, "M0 -> LDS DMA")
            if need > dist:
                errs.append(f"[{name}] {why}: need {need} have {dist}\n    {p.text}\n    {c.text}")
            dist += p.states()
            if dist >= 20: break
    return errs

def check_waits(tr, name=""):
    errs = []
    vm, lg = [], []
    done_tags = set()
    smem_pending = False
    for c in tr:
        if c.kind in ("label", "dir"): continue
        if c.kind == "wait":
            t = c.text
            m = re.search(r"vmcnt\((\d+)\)", t)
            if m:
                n = int(m.group(1))
                while len(vm) > n:
                    o = vm.pop(0)
                    if o.tag: done_tags.add(o.tag)
            m = re.search(r"lgkmcnt\((\d+)\)", t)
            if m:
                n = int(m.group(1))
                if any(o.kind == "smem" and "memrealtime" not in o.mn and "memtime" not in o.mn for o in lg) and n > 0:
                    errs.append(f"[{name}] counted lgkmcnt with SMEM outstanding: {t}")
                while len(lg) > n:
                    o = lg.pop(0)
                    if o.tag: done_tags.add(o.tag)
            continue
        touched = c.rd | c.wr
        for o in vm:
            if o.kind in ("vload", "vatomic") and (o.wr & touched):
                errs.append(f"[{name}] VMEM result not waited:\n    {o.text}\n    {c.text}")
        for o in lg:
            if o.wr & touched:
                errs.append(f"[{name}] LGKM result not waited:\n    {o.text}\n    {c.text}")
            if o.kind == "ds_write" and False: pass
        for t in c.needs:
            pend = [o for o in vm + lg if o.tag == t]
            if pend: errs.append(f"[{name}] needs tag {t} still outstanding at: {c.text}")
        if c.kind in ("vload", "vstore", "vatomic", "dma"):
            vm.append(c)
            if len(vm) > 63: errs.append(f"[{name}] more than 63 VMEM outstanding at {c.text}")
        if c.kind in ("ds_read", "ds_write", "smem") and not c.mn.startswith("s_mem"):
            lg.append(c)
            if len([o for o in lg]) > 15 and False: pass
        if c.kind == "barrier":
            for o in lg:
                if o.kind == "ds_write": errs.append(f"[{name}] barrier with LDS write outstanding: {o.text}")
    return errs
```

```python
import struct, sys
from asmdsl import *

def f2u(x): return struct.unpack("<I", struct.pack("<f", x))[0]
def hx(x): return "0x%08x" % (x & 0xffffffff)

KNAME = "standalone__video_timesformer__vision_kernel"
T, N, C = 8, 729, 192
ROWB = 384
XFRAME = N * ROWB
TILEB = 12288
NT = 23
FRAMEB = NT * TILEB
WS_H2, WS_X1, WS_WM, WS_WVO, WS_SYNC = 0, 0x240000, 0x480000, 0x4A0000, 0x4C0000
WS_SIZE = 0x4D0000
X_BYTES = T * N * ROWB
WQKV_BYTES, WO_BYTES = 192 * 1152, 192 * 384
OOB = 0x40000000
SCALE_L2E = (C ** -0.5) * 1.4426950408889634
SPIN_MAX = 1 << 20
HI_THR, LO_THR = 2.0 ** 30, 2.0 ** -30

SX, SWQ, SWO, SWS, SOUT, SDBG = 4, 8, 12, 16, 20, 24
def srd(b): return f"s[{b}:{b+3}]"
S_W, S_J, S_X8 = "s28", "s29", "s30"
S_T0, S_T1, S_T2, S_T3 = "s31", "s34", "s35", "s36"
S_1152, S_384 = "s37", "s38"
S_SOFF = "s39"
S_RING = "s40"
S_MASKP = "s[42:43]"
S_MASKH = "s[44:45]"
S_TILE, S_NTL, S_IT = "s46", "s47", "s48"
S_SLK, S_SLV, S_SLD = "s49", "s50", "s51"
S_TOFF = "s52"
S_FBASE = "s53"
S_ST0, S_ST1, S_ST2 = "s54", "s55", "s56"
S_EXEC = "s[58:59]"
S_C0, S_C1, S_C2, S_C3 = "s60", "s61", "s62", "s63"

R1 = 9
L_RING1 = 0
L_H, L_X, L_O, L_SX, L_ST = 110592, 122880, 135168, 147456, 155648
L_RING2 = 0
L_Q, L_ML = 147456, 159744
LDS_BYTES = 160768

def v(n, k=1): return f"v{n}" if k == 1 else f"v[{n}:{n+k-1}]"
def a(n, k=1): return f"a{n}" if k == 1 else f"a[{n}:{n+k-1}]"

class Gen:
    def __init__(self, dbg=None):
        self.p = Prog()
        self.dbg = dbg or {}
        self.nvm = 0
    def I(self, t, **k): self.p.I(t, **k)
    def L(self, n): self.p.L(n)
    def nop(self, n): self.p.nop(n)

    def mk_srd(self, base, karg_off, nbytes):
        self.I(f"s_load_dwordx2 s[{base}:{base+1}], s[0:1], {karg_off}")
        self.I(f"s_mov_b32 s{base+2}, {hx(nbytes)}")
        self.I(f"s_mov_b32 s{base+3}, 0x20000")

    def xg_reduce_add(self, regs_, tmps):
        for r, t in zip(regs_, tmps): self.I(f"v_mov_b32 {v(t)}, {v(r)}")
        self.nop(max(0, 2 - (len(regs_) - 1)))
        for r, t in zip(regs_, tmps): self.I(f"v_permlane16_swap_b32 {v(r)}, {v(t)}")
        for r, t in zip(regs_, tmps): self.I(f"v_add_f32 {v(r)}, {v(r)}, {v(t)}")
        for r, t in zip(regs_, tmps): self.I(f"v_mov_b32 {v(t)}, {v(r)}")
        self.nop(max(0, 2 - (len(regs_) - 1)))
        for r, t in zip(regs_, tmps): self.I(f"v_permlane32_swap_b32 {v(r)}, {v(t)}")
        for r, t in zip(regs_, tmps): self.I(f"v_add_f32 {v(r)}, {v(r)}, {v(t)}")

    def entry(self):
        I = self.I
        self.L(KNAME)
        I(f"s_cmp_ge_u32 s2, 256")
        I("s_cbranch_scc1 L_end")
        I("s_lshr_b32 s3, s2, 3")
        I(f"s_and_b32 {S_X8}, s2, 7")
        I("s_cmp_lt_u32 s3, 9")
        I("s_cbranch_scc1 L_fusion")

    def fusion(self):
        I = self.I
        self.L("L_fusion")
        self.mk_srd(SX, 8, WQKV_BYTES)
        self.mk_srd(SOUT, 16, WO_BYTES)
        self.mk_srd(SWQ, 24, WQKV_BYTES)
        self.mk_srd(SWO, 32, WO_BYTES)
        self.mk_srd(SDBG, 48, 256)
        self.mk_srd(SWS, 56, WS_SIZE)
        I("s_getpc_b64 s[32:33]")
        self.L("L_pc")
        I("v_lshlrev_b32 v2, 7, v0")
        I("v_min_u32 v3, L_codeend-L_pc-4, v2")
        I("global_load_dword v4, v3, s[32:33]")
        I("v_and_b32 v1, 63, v0")
        I("v_lshrrev_b32 v5, 6, v0")
        I("s_lshl_b32 s31, s3, 15")
        I(f"v_readfirstlane_b32 {S_W}, v5")
        I("v_add_u32 v2, s31, v2")
        I(f"v_subrev_u32 v3, {WQKV_BYTES}, v2")
        I("s_lshl_b32 s34, s3, 3")
        I(f"s_add_u32 s34, s34, {S_X8}")
        I("s_lshl_b32 s35, s34, 2")
        I(f"s_add_u32 s35, s35, {S_W}")
        I("s_cmp_ge_u32 s35, 144")
        I("s_cselect_b32 s36, 1, 0")
        I("s_cselect_b32 s31, 144, 0")
        I("s_sub_u32 s35, s35, s31")
        I("s_mul_i32 s37, s35, 43691")
        I("s_lshr_b32 s37, s37, 19")
        I("s_mul_i32 s38, s37, 12")
        I("s_sub_u32 s38, s35, s38")
        I("v_and_b32 v6, 15, v1")
        I("v_lshrrev_b32 v7, 4, v1")
        I("v_mul_u32_u24 v8, 1152, v6")
        I("v_lshl_add_u32 v8, v7, 4, v8")
        I("s_waitcnt lgkmcnt(0)")
        I(f"buffer_load_dword v9, v2, {srd(SX)}, 0 offen")
        I(f"buffer_load_dword v10, v3, {srd(SOUT)}, 0 offen")
        I("s_mul_i32 s39, s37, 18432")
        I("s_mul_i32 s40, s36, 768")
        I("s_add_u32 s39, s39, s40")
        for ks in range(6):
            I(f"buffer_load_dwordx4 {v(16+4*ks,4)}, v8, {srd(SWQ)}, s39 offen offset:{64*ks}")
        I("s_cmp_eq_u32 s36, 1")
        I("s_cbranch_scc1 L_fus_vo")
        I("s_mul_i32 s39, s38, 18432")
        I("s_add_u32 s39, s39, 384")
        for ks in range(6):
            I(f"buffer_load_dwordx4 {v(40+4*ks,4)}, v8, {srd(SWQ)}, s39 offen offset:{64*ks}")
        I("s_waitcnt vmcnt(0)")
        for ks in range(6):
            I(f"v_mfma_f32_16x16x32_bf16 v[64:67], {v(16+4*ks,4)}, {v(40+4*ks,4)}, {'0' if ks == 0 else 'v[64:67]'}")
        I("s_and_b32 s31, s37, 1")
        I("s_lshl_b32 s31, s31, 1")
        I("v_lshrrev_b32 v11, 1, v7")
        I("v_add_u32 v11, s31, v11")
        I("v_lshlrev_b32 v12, 1, v11")
        I("v_mov_b32 v13, 0x78")
        I("v_lshrrev_b32 v12, v12, v13")
        I("v_and_b32 v11, 3, v12")
        I(f"s_mov_b32 s40, {hx(f2u(SCALE_L2E))}")
        I(f"s_mov_b32 s41, {WS_WM}")
        self.nop(3)
        for r in range(4): I(f"v_mul_f32 {v(64+r)}, s40, {v(64+r)}")
        I("s_branch L_fus_store")
        self.L("L_fus_vo")
        I("v_lshrrev_b32 v11, 1, v1")
        I("v_and_b32 v12, 12, v11")
        I("v_lshlrev_b32 v12, 1, v12")
        I("v_lshrrev_b32 v13, 2, v11")
        I("v_and_b32 v13, 4, v13")
        I("v_and_b32 v14, 3, v11")
        I("v_or3_b32 v12, v12, v13, v14")
        I("v_mul_u32_u24 v12, 384, v12")
        I("v_and_b32 v13, 1, v1")
        I("v_lshl_add_u32 v12, v13, 4, v12")
        I("s_lshl_b32 s39, s38, 5")
        I(f"s_mul_i32 s40, {S_W}, 6144")
        for ks in range(6):
            I(f"s_add_u32 m0, s40, {ks*1024}")
            I(f"s_add_u32 s41, s39, {ks*32*384}")
            I(f"buffer_load_dwordx4 v12, {srd(SWO)}, s41 offen lds", tag=f"fvo{ks}")
        I("v_lshlrev_b32 v13, 3, v1")
        I("v_add_u32 v13, s40, v13")
        I("s_waitcnt vmcnt(0)")
        for ks in range(6):
            I(f"ds_read_b64_tr_b16 {v(40+4*ks,2)}, v13 offset:{ks*1024}", needs=[f"fvo{ks}"])
            I(f"ds_read_b64_tr_b16 {v(42+4*ks,2)}, v13 offset:{ks*1024+512}", needs=[f"fvo{ks}"])
        I("s_waitcnt lgkmcnt(0)")
        for ks in range(6):
            I(f"v_mfma_f32_16x16x32_bf16 v[64:67], {v(16+4*ks,4)}, {v(40+4*ks,4)}, {'0' if ks == 0 else 'v[64:67]'}")
        I("s_and_b32 s31, s37, 1")
        I("s_lshl_b32 s31, s31, 1")
        I("v_lshrrev_b32 v11, 1, v7")
        I("v_add_u32 v11, s31, v11")
        I(f"s_mov_b32 s41, {WS_WVO}")
        self.nop(6)
        self.L("L_fus_store")
        I("v_cvt_pk_bf16_f32 v68, v64, v65")
        I("v_cvt_pk_bf16_f32 v69, v66, v67")
        I("v_lshl_add_u32 v11, v11, 4, v6")
        I("v_lshlrev_b32 v11, 4, v11")
        I("v_and_b32 v12, 1, v7")
        I("v_lshl_add_u32 v11, v12, 3, v11")
        I("s_mul_i32 s39, s38, 6")
        I("s_lshr_b32 s40, s37, 1")
        I("s_add_u32 s39, s39, s40")
        I("s_lshl_b32 s39, s39, 10")
        I("s_add_u32 s39, s39, s41")
        I(f"buffer_store_dwordx2 v[68:69], v11, {srd(SWS)}, s39 offen sc1")
        I("s_cmp_lg_u32 s34, 0")
        I("s_cbranch_scc1 L_fus_nozero")
        I("v_mov_b32 v70, 0")
        I("v_mov_b32 v71, 0")
        I("v_mov_b32 v72, 0")
        I("v_mov_b32 v73, 0")
        I("v_lshlrev_b32 v12, 4, v0")
        I(f"s_mov_b32 s39, {WS_SYNC}")
        I(f"buffer_store_dwordx4 v[70:73], v12, {srd(SWS)}, s39 offen sc1")
        self.L("L_fus_nozero")
        I("s_waitcnt vmcnt(0)")
        I("s_barrier")
        I(f"s_cmp_lg_u32 {S_W}, 0")
        I("s_cbranch_scc1 L_end")
        I("v_mov_b32 v12, 0")
        I("v_mov_b32 v13, 1")
        I("s_mov_b64 exec, 1")
        I(f"buffer_atomic_add v13, v12, {srd(SDBG)}, 0 offen sc1")
        I("s_branch L_end")

    VXO = 2
    VA = 3
    VB = 6
    VTR = 9
    VHR = 10
    VXR = 12
    VHW = 15
    VXRAW = 16
    VF = 28
    VT = 52
    AQ, AK, AV, AO = 64, 88, 112, 136
    VP = 160
    AH, AW, AOF = 0, 48, 72

    def s1_soff(self, s):
        m, ks = divmod(s, 6)
        return ks * 32 * 1152 + m * 384 if m < 3 else ks * 32 * 384

    def s1_dma(self, s):
        m = s // 6
        srd_ = srd(SWQ) if m < 3 else srd(SWO)
        base = self.VA if m < 3 else self.VB
        out = [(f"s_add_u32 m0, {S_RING}, {(s % R1) * 3072}", None), (f"s_mov_b32 {S_SOFF}, {self.s1_soff(s)}", None)]
        for ii in range(3):
            out.append((f"buffer_load_dwordx4 {v(base+ii)}, {srd_}, {S_SOFF} offen offset:{ii*1024} lds", f"w{s}_{ii}"))
        return out

    def emit_vm(self, lst):
        for t, tag in lst:
            self.I(t, tag=tag)
            if tag: self.vmq.append(tag)
    def vm(self, text, tag):
        self.I(text, tag=tag); self.vmq.append(tag)
    def wait_vm(self, tag):
        idx = max(i for i, t in enumerate(self.vmq) if t == tag)
        n = len(self.vmq) - 1 - idx
        self.I(f"s_waitcnt vmcnt({n})")

    def s1(self):
        I = self.I
        VT = self.VT
        self.vmq = []
        self.mk_srd(SX, 0, X_BYTES)
        self.mk_srd(SWQ, 8, WQKV_BYTES)
        self.mk_srd(SWO, 16, WO_BYTES)
        self.mk_srd(SOUT, 40, X_BYTES)
        self.mk_srd(SDBG, 48, 256)
        self.mk_srd(SWS, 56, WS_SIZE)
        I("v_lshrrev_b32 v52, 6, v0")
        I("v_and_b32 v1, 63, v0")
        I(f"s_sub_u32 {S_J}, s3, 9")
        I(f"v_readfirstlane_b32 {S_W}, v52")
        I(f"s_lshl_b32 s31, {S_J}, 3")
        I(f"s_add_u32 s31, s31, {S_X8}")
        I("s_lshl_b32 s31, s31, 2")
        I(f"s_add_u32 s31, s31, {S_W}")
        I("s_mul_i32 s34, s31, 384")
        I(f"s_cmp_ge_u32 s31, {N}")
        I(f"s_cselect_b32 s34, {hx(OOB)}, s34")
        I("v_lshrrev_b32 v52, 3, v1")
        I("v_and_b32 v53, 7, v1")
        I(f"v_mul_u32_u24 v54, {XFRAME}, v52")
        I("v_lshl_add_u32 v54, v53, 4, v54")
        I(f"v_add_u32 {v(self.VXO)}, s34, v54")
        I(f"s_mov_b32 {S_1152}, 1152")
        I(f"s_mov_b32 {S_384}, 384")
        I(f"s_mul_i32 s35, {S_W}, 96")
        for ii in range(3):
            I(f"v_add_u32 v55, {64*ii}, v1" if ii else "v_mov_b32 v55, v1")
            I("v_mul_u32_u24 v56, 171, v55")
            I("v_lshrrev_b32 v56, 10, v56")
            I("v_mul_u32_u24 v57, 6, v56")
            I("v_sub_u32 v55, v55, v57")
            I("v_and_b32 v57, 12, v56")
            I("v_lshlrev_b32 v57, 1, v57")
            I("v_lshrrev_b32 v58, 2, v56")
            I("v_and_b32 v58, 4, v58")
            I("v_and_b32 v56, 3, v56")
            I("v_or3_b32 v56, v56, v57, v58")
            I(f"s_sub_u32 s36, s35, {1024*ii}" if ii else "s_mov_b32 s36, s35")
            I("v_lshlrev_b32 v55, 4, v55")
            I("v_add_u32 v55, s36, v55")
            I(f"v_mad_u32_u24 {v(self.VA+ii)}, v56, {S_1152}, v55")
            I(f"v_mad_u32_u24 {v(self.VB+ii)}, v56, {S_384}, v55")
        I(f"s_mul_i32 {S_RING}, {S_W}, {R1*3072}")
        I("s_waitcnt lgkmcnt(0)")
        for ii in range(3):
            self.vm(f"buffer_load_dwordx4 {v(self.VXRAW+4*ii,4)}, {v(self.VXO)}, {srd(SX)}, 0 offen offset:{128*ii}", f"x{ii}")
        for s in range(3): self.emit_vm(self.s1_dma(s))
        I("v_lshrrev_b32 v54, 2, v1")
        I("v_mul_u32_u24 v54, 96, v54")
        I("v_and_b32 v55, 3, v1")
        I("v_lshl_add_u32 v54, v55, 3, v54")
        I(f"v_add_u32 {v(self.VTR)}, {S_RING}, v54")
        I(f"s_lshl_b32 s31, {S_W}, 3")
        I("v_add_u32 v54, s31, v52")
        I("v_xor_b32 v54, v54, v53")
        I("v_lshlrev_b32 v54, 4, v54")
        I("v_lshl_add_u32 v54, v53, 9, v54")
        I(f"v_add_u32 {v(self.VHW)}, {L_H}, v54")
        I("v_and_b32 v52, 15, v1")
        I("v_lshrrev_b32 v53, 4, v1")
        I("v_xor_b32 v54, v52, v53")
        I("v_xor_b32 v55, 4, v54")
        I("v_lshlrev_b32 v56, 9, v53")
        I(f"v_add_u32 v56, {L_H}, v56")
        I(f"v_lshl_add_u32 {v(self.VHR)}, v54, 4, v56")
        I(f"v_lshl_add_u32 {v(self.VHR+1)}, v55, 4, v56")
        I(f"s_mul_i32 s31, {S_W}, 6")
        I("v_lshrrev_b32 v54, 1, v53")
        I("v_add_u32 v54, s31, v54")
        I("v_and_b32 v55, 1, v53")
        I("v_lshlrev_b32 v55, 3, v55")
        I(f"v_add_u32 v55, {L_X}, v55")
        for ft in range(3):
            I(f"v_add_u32 v56, {2*ft}, v54")
            I("v_and_b32 v57, 7, v56")
            I("v_xor_b32 v57, v57, v52")
            I("v_lshlrev_b32 v57, 4, v57")
            I("v_lshl_add_u32 v57, v56, 9, v57")
            I(f"v_add_u32 {v(self.VXR+ft)}, v57, v55")
        I("v_lshrrev_b32 v54, 1, v53")
        I("v_lshrrev_b32 v55, 3, v52")
        I(f"v_cmp_eq_u32 {S_MASKP}, v54, v55")

        pend = []
        for s in range(3, R1): pend += self.s1_dma(s)
        ln = []
        X, F = self.VXRAW, self.VF
        for k in range(12):
            ln.append(f"v_lshlrev_b32 {v(F+2*k)}, 16, {v(X+k)}")
            ln.append(f"v_and_b32 {v(F+2*k+1)}, 0xffff0000, {v(X+k)}")
        ln.append(f"v_pk_add_f32 v[52:53], {v(F,2)}, {v(F+2,2)}")
        ln.append(f"v_pk_add_f32 v[54:55], {v(F+4,2)}, {v(F+6,2)}")
        for k in range(4, 12, 2):
            ln.append(f"v_pk_add_f32 v[52:53], v[52:53], {v(F+2*k,2)}")
            ln.append(f"v_pk_add_f32 v[54:55], v[54:55], {v(F+2*k+2,2)}")
        ln.append("v_pk_add_f32 v[52:53], v[52:53], v[54:55]")
        ln.append("v_add_f32 v52, v52, v53")
        def dpp_red(r):
            return ["s_nop 1", f"v_add_f32_dpp {v(r)}, {v(r)}, {v(r)} quad_perm:[1,0,3,2] row_mask:0xf bank_mask:0xf",
                    "s_nop 1", f"v_add_f32_dpp {v(r)}, {v(r)}, {v(r)} quad_perm:[2,3,0,1] row_mask:0xf bank_mask:0xf",
                    "s_nop 1", f"v_add_f32_dpp {v(r)}, {v(r)}, {v(r)} row_half_mirror row_mask:0xf bank_mask:0xf"]
        ln += dpp_red(52)
        ln.append(f"s_mov_b32 {S_C0}, {hx(f2u(1.0/192))}")
        ln.append(f"v_mul_f32 v52, {S_C0}, v52")
        ln.append("v_mov_b32 v53, v52")
        for k in range(12):
            ln.append(f"v_pk_add_f32 {v(F+2*k,2)}, {v(F+2*k,2)}, v[52:53] neg_lo:[0,1] neg_hi:[0,1]")
        ln.append(f"v_pk_mul_f32 v[54:55], {v(F,2)}, {v(F,2)}")
        ln.append(f"v_pk_mul_f32 v[56:57], {v(F+2,2)}, {v(F+2,2)}")
        for k in range(2, 12, 2):
            ln.append(f"v_pk_fma_f32 v[54:55], {v(F+2*k,2)}, {v(F+2*k,2)}, v[54:55]")
            ln.append(f"v_pk_fma_f32 v[56:57], {v(F+2*k+2,2)}, {v(F+2*k+2,2)}, v[56:57]")
        ln.append("v_pk_add_f32 v[54:55], v[54:55], v[56:57]")
        ln.append("v_add_f32 v54, v54, v55")
        ln += dpp_red(54)
        ln.append(f"s_mov_b32 {S_C1}, {hx(f2u(1e-5))}")
        ln.append(f"v_mov_b32 v55, {S_C1}")
        ln.append(f"v_fmac_f32 v55, {S_C0}, v54")
        ln.append("v_rsq_f32 v54, v55")
        ln.append("s_nop 0")
        ln.append("v_mov_b32 v55, v54")
        for k in range(12):
            ln.append(f"v_pk_mul_f32 {v(F+2*k,2)}, {v(F+2*k,2)}, v[54:55]")
        for k in range(12):
            ln.append(f"v_cvt_pk_bf16_f32 {v(F+k)}, {v(F+2*k)}, {v(F+2*k+1)}")
        self.wait_vm("x2")
        every = max(1, len(ln) // (len(pend) + 1))
        pi = 0
        for n, t in enumerate(ln):
            I(t)
            if n % every == every - 1 and pi < len(pend):
                tt, tag = pend[pi]; pi += 1
                self.emit_vm([(tt, tag)])
                while tag is None and pi < len(pend):
                    tt, tag = pend[pi]; pi += 1
                    self.emit_vm([(tt, tag)])
        self.emit_vm(pend[pi:])
        for ii in range(3):
            I(f"ds_write_b128 {v(self.VHW)}, {v(F+4*ii,4)} offset:{ii*4096}")
            I(f"ds_write_b128 {v(self.VHW)}, {v(X+4*ii,4)} offset:{ii*4096 + (L_X-L_H)}")
        I("s_waitcnt lgkmcnt(0)")
        I("s_barrier")
        for th in range(2):
            for ks in range(6):
                I(f"ds_read_b128 {a(self.AH+(th*6+ks)*4,4)}, {v(self.VHR+(ks&1))} offset:{ks*2048+th*256}")
        for ft in range(3):
            for th in range(2):
                I(f"ds_read_b64 {v(160+(ft*2+th)*2,2)}, {v(self.VXR+ft)} offset:{th*256}")
        I("s_waitcnt lgkmcnt(0)")
        for ft in range(3):
            for th in range(2):
                src = 160 + (ft*2+th)*2; d = self.AO + (ft*2+th)*4
                I(f"v_lshlrev_b32 {v(d)}, 16, {v(src)}")
                I(f"v_and_b32 {v(d+1)}, 0xffff0000, {v(src)}")
                I(f"v_lshlrev_b32 {v(d+2)}, 16, {v(src+1)}")
                I(f"v_and_b32 {v(d+3)}, 0xffff0000, {v(src+1)}")

        def trreads(s):
            buf = self.AW + (s & 1) * 12
            for ft in range(3):
                for e2 in range(2):
                    I(f"ds_read_b64_tr_b16 {a(buf+ft*4+e2*2,2)}, {v(self.VTR)} offset:{(s%R1)*3072 + e2*1536 + ft*32}",
                      needs=[f"w{s}_{ii}" for ii in range(3)])
        def mfmas(s):
            m, ks = divmod(s, 6)
            buf = self.AW + (s & 1) * 12
            for ft in range(3):
                for th in range(2):
                    W = a(buf+ft*4, 4)
                    if m == 0 or m == 1:
                        D = v((self.AQ if m == 0 else self.AK) + (ft*2+th)*4, 4)
                        I(f"v_mfma_f32_16x16x32_bf16 {D}, {W}, {a(self.AH+(th*6+ks)*4,4)}, {'0' if ks == 0 else D}")
                    elif m == 2:
                        D = v(self.AV + (ft*2+th)*4, 4)
                        I(f"v_mfma_f32_16x16x32_bf16 {D}, {a(self.AH+(th*6+ks)*4,4)}, {W}, {'0' if ks == 0 else D}")
                    else:
                        D = v(self.AO + (ft*2+th)*4, 4)
                        I(f"v_mfma_f32_16x16x32_bf16 {D}, {W}, {a(self.AOF+(th*6+ks)*4,4)}, {D}")

        def s_partial():
            self.nop(8)
            for base, dst in ((self.AQ, 160), (self.AK, 172)):
                for ft in range(3):
                    for th in range(2):
                        src = base + (ft*2+th)*4; d = dst + th*6 + ft*2
                        I(f"v_cvt_pk_bf16_f32 {v(d)}, {v(src)}, {v(src+1)}")
                        I(f"v_cvt_pk_bf16_f32 {v(d+1)}, {v(src+2)}, {v(src+3)}")
            self.nop(2)
            for th in range(2):
                I(f"v_mfma_f32_16x16x32_bf16 {v(184+4*th,4)}, {v(172+th*6,4)}, {v(160+th*6,4)}, 0")
            self.nop(4)
            for th in range(2):
                I(f"v_mfma_f32_16x16x16_bf16 {v(192+4*th,4)}, {v(172+th*6+4,2)}, {v(160+th*6+4,2)}, 0")
            I(f"v_lshlrev_b32 v52, 4, v1")
            I(f"s_lshl_b32 s31, {S_W}, 11")
            I(f"s_add_u32 s31, s31, {L_SX}")
            I(f"v_add_u32 v52, s31, v52")
            self.nop(5)
            for th in range(2):
                I(f"v_pk_add_f32 {v(184+4*th,2)}, {v(184+4*th,2)}, {v(192+4*th,2)}")
                I(f"v_pk_add_f32 {v(186+4*th,2)}, {v(186+4*th,2)}, {v(194+4*th,2)}")
            for th in range(2):
                I(f"ds_write_b128 v52, {v(184+4*th,4)} offset:{th*1024}")

        def softmax_t():
            I("s_waitcnt lgkmcnt(0)")
            I("s_barrier")
            I(f"v_lshlrev_b32 v52, 4, v1")
            I(f"v_add_u32 v52, {L_SX}, v52")
            for w in range(4):
                for th in range(2):
                    I(f"ds_read_b128 {v(160+(w*2+th)*4,4)}, v52 offset:{w*2048+th*1024}")
            I("s_waitcnt lgkmcnt(0)")
            I(f"s_mov_b32 {S_C2}, {hx(f2u(SCALE_L2E))}")
            for th in range(2):
                for h in range(2):
                    b = 160 + th*4 + 2*h
                    I(f"v_pk_add_f32 {v(b,2)}, {v(b,2)}, {v(b+8,2)}")
                    I(f"v_pk_add_f32 {v(b+16,2)}, {v(b+16,2)}, {v(b+24,2)}")
            for th in range(2):
                for h in range(2):
                    b = 160 + th*4 + 2*h
                    I(f"v_pk_add_f32 {v(b,2)}, {v(b,2)}, {v(b+16,2)}")
            for th in range(2):
                b = 160 + th*4
                I(f"v_max3_f32 {v(168+th)}, {v(b)}, {v(b+1)}, {v(b+2)}")
            for th in range(2):
                I(f"v_max_f32 {v(168+th)}, {v(168+th)}, {v(160+th*4+3)}")
            for th in range(2): I(f"v_mov_b32 {v(170+th)}, {v(168+th)}")
            self.nop(1)
            for th in range(2): I(f"v_permlane16_swap_b32 {v(168+th)}, {v(170+th)}")
            for th in range(2): I(f"v_max_f32 {v(168+th)}, {v(168+th)}, {v(170+th)}")
            for th in range(2):
                for r in range(4): I(f"v_sub_f32 {v(160+th*4+r)}, {v(160+th*4+r)}, {v(168+th)}")
            for th in range(2):
                for r in range(4): I(f"v_mul_f32 {v(160+th*4+r)}, {S_C2}, {v(160+th*4+r)}")
            for th in range(2):
                for r in range(4): I(f"v_exp_f32 {v(160+th*4+r)}, {v(160+th*4+r)}")
            I("s_nop 0")
            for th in range(2):
                b = 160 + th*4
                I(f"v_add_f32 {v(168+th)}, {v(b)}, {v(b+1)}")
                I(f"v_add_f32 {v(170+th)}, {v(b+2)}, {v(b+3)}")
            for th in range(2): I(f"v_add_f32 {v(168+th)}, {v(168+th)}, {v(170+th)}")
            for th in range(2): I(f"v_mov_b32 {v(170+th)}, {v(168+th)}")
            self.nop(1)
            for th in range(2): I(f"v_permlane16_swap_b32 {v(168+th)}, {v(170+th)}")
            for th in range(2): I(f"v_add_f32 {v(168+th)}, {v(168+th)}, {v(170+th)}")
            for th in range(2): I(f"v_rcp_f32 {v(168+th)}, {v(168+th)}")
            I("s_nop 0")
            for th in range(2):
                for r in range(4): I(f"v_mul_f32 {v(160+th*4+r)}, {v(160+th*4+r)}, {v(168+th)}")
            for th in range(2):
                b = 160 + th*4
                I(f"v_cvt_pk_bf16_f32 {v(200+2*th)}, {v(b)}, {v(b+1)}")
                I(f"v_cvt_pk_bf16_f32 {v(201+2*th)}, {v(b+2)}, {v(b+3)}")
            for r in range(4):
                I(f"v_cndmask_b32 {v(200+r)}, 0, {v(200+r)}, {S_MASKP}")

        def pv_t():
            self.nop(8)
            for ft in range(3):
                for th in range(2):
                    src = self.AV + (ft*2+th)*4; d = 160 + (ft*2+th)*2
                    I(f"v_cvt_pk_bf16_f32 {v(d)}, {v(src)}, {v(src+1)}")
                    I(f"v_cvt_pk_bf16_f32 {v(d+1)}, {v(src+2)}, {v(src+3)}")
            self.nop(1)
            for ft in range(3):
                for th in range(2):
                    I(f"v_mfma_f32_16x16x16_bf16 {v(self.AV+(ft*2+th)*4,4)}, {v(160+(ft*2+th)*2,2)}, {v(200+2*th,2)}, 0")
            self.nop(4)
            for ft in range(3):
                for th in range(2):
                    src = self.AV + (ft*2+th)*4; d = 172 + (ft*2+th)*2
                    I(f"v_cvt_pk_bf16_f32 {v(d)}, {v(src)}, {v(src+1)}")
                    I(f"v_cvt_pk_bf16_f32 {v(d+1)}, {v(src+2)}, {v(src+3)}")
                    I(f"ds_write_b64 {v(self.VXR+ft)}, {v(d,2)} offset:{(L_O-L_X)+th*256}")
            I("s_waitcnt lgkmcnt(0)")
            I("s_barrier")
            for th in range(2):
                for ks in range(6):
                    I(f"ds_read_b128 {a(self.AOF+(th*6+ks)*4,4)}, {v(self.VHR+(ks&1))} offset:{(L_O-L_H)+ks*2048+th*256}")

        for s in range(25):
            if s < 24:
                self.wait_vm(f"w{s}_2")
                trreads(s)
            if s >= 1 and s - 1 + R1 < 24:
                self.emit_vm(self.s1_dma(s - 1 + R1))
            if s >= 1: mfmas(s - 1)
            if s == 12: s_partial()
            if s == 14: softmax_t()
            if s == 18: pv_t()
            if s < 24: I("s_waitcnt lgkmcnt(0)")
        self.ln2_store()

    def ln2_store(self):
        I = self.I
        AO = self.AO
        I("v_mov_b32 v52, 0")
        self.vm(f"buffer_load_dword v53, v52, {srd(SDBG)}, 0 offen sc1", "fus")
        I("v_and_b32 v54, 15, v1")
        I("v_lshrrev_b32 v55, 4, v1")
        I("v_and_b32 v56, 1, v55")
        I("v_lshl_add_u32 v56, v56, 4, v54")
        I("v_and_b32 v57, 7, v56")
        I("v_lshrrev_b32 v56, 3, v56")
        I(f"v_mul_u32_u24 v57, {FRAMEB}, v57")
        I("v_lshl_add_u32 v57, v56, 4, v57")
        I(f"s_lshr_b32 s31, {S_X8}, 1")
        I("s_and_b32 s31, s31, 1")
        I("v_lshrrev_b32 v55, 1, v55")
        I("v_xor_b32 v55, s31, v55")
        I("v_lshl_add_u32 v58, v55, 6, v57")
        for ft in range(3):
            st = (S_ST0, S_ST1, S_ST2)[ft]
            I(f"s_mul_i32 s31, {S_W}, 3")
            I(f"s_add_u32 s31, s31, {ft}")
            I("s_and_b32 s34, s31, 1")
            I(f"s_xor_b32 s34, s34, {S_X8}")
            I("s_lshl_b32 s34, s34, 7")
            I("s_lshl_b32 s31, s31, 10")
            I("s_add_u32 s31, s31, s34")
            I(f"s_mul_i32 s34, {S_J}, {TILEB}")
            I(f"s_add_u32 {st}, s31, s34")
        for th in range(2):
            I(f"v_pk_add_f32 {v(160+2*th,2)}, {v(AO+th*4,2)}, {v(AO+th*4+2,2)}")
        for ft in (1, 2):
            for th in range(2):
                b = AO + (ft*2+th)*4
                I(f"v_pk_add_f32 {v(160+2*th,2)}, {v(160+2*th,2)}, {v(b,2)}")
                I(f"v_pk_add_f32 {v(160+2*th,2)}, {v(160+2*th,2)}, {v(b+2,2)}")
        for th in range(2): I(f"v_add_f32 {v(160+2*th)}, {v(160+2*th)}, {v(161+2*th)}")
        self.xg_reduce_add([160, 162], [161, 163])
        I(f"s_mov_b32 {S_C0}, {hx(f2u(1.0/48))}")
        for th in range(2): I(f"v_mul_f32 {v(160+2*th)}, {S_C0}, {v(160+2*th)}")
        for th in range(2): I(f"v_mov_b32 {v(161+2*th)}, {v(160+2*th)}")
        for ft in range(3):
            for th in range(2):
                b = AO + (ft*2+th)*4; d = 164 + (ft*2+th)*4
                I(f"v_pk_add_f32 {v(d,2)}, {v(b,2)}, {v(160+2*th,2)} neg_lo:[0,1] neg_hi:[0,1]")
                I(f"v_pk_add_f32 {v(d+2,2)}, {v(b+2,2)}, {v(160+2*th,2)} neg_lo:[0,1] neg_hi:[0,1]")
        for th in range(2):
            d = 164 + th*4
            I(f"v_pk_mul_f32 {v(188+2*th,2)}, {v(d,2)}, {v(d,2)}")
        for ft in range(3):
            for th in range(2):
                d = 164 + (ft*2+th)*4
                if ft: I(f"v_pk_fma_f32 {v(188+2*th,2)}, {v(d,2)}, {v(d,2)}, {v(188+2*th,2)}")
                I(f"v_pk_fma_f32 {v(188+2*th,2)}, {v(d+2,2)}, {v(d+2,2)}, {v(188+2*th,2)}")
        for th in range(2): I(f"v_add_f32 {v(188+2*th)}, {v(188+2*th)}, {v(189+2*th)}")
        self.xg_reduce_add([188, 190], [189, 191])
        for th in range(2): I(f"v_mov_b32 {v(161+2*th)}, {v(188+2*th)}")
        I("v_lshlrev_b32 v52, 3, v54")
        I(f"s_lshl_b32 s31, {S_W}, 8")
        I(f"s_add_u32 s31, s31, {L_ST}")
        I("v_add_u32 v59, s31, v52")
        for th in range(2): I(f"ds_write_b64 v59, {v(160+2*th,2)} offset:{th*128}")
        I(f"v_add_u32 v59, {L_ST}, v52")
        I("s_waitcnt lgkmcnt(0)")
        I("s_barrier")
        for w in range(4):
            for th in range(2):
                I(f"ds_read_b64 {v(164+(th*4+w)*2,2)}, v59 offset:{w*256+th*128}")
        I("s_waitcnt lgkmcnt(0)")
        for th in range(2):
            b = 164 + th*8
            I(f"v_add_f32 {v(180+th)}, {v(b)}, {v(b+2)}")
            I(f"v_add_f32 {v(182+th)}, {v(b+4)}, {v(b+6)}")
        for th in range(2): I(f"v_add_f32 {v(180+th)}, {v(180+th)}, {v(182+th)}")
        for th in range(2): I(f"v_mul_f32 {v(180+th)}, 0.25, {v(180+th)}")
        for th in range(2):
            b = 164 + th*8
            I(f"v_add_f32 {v(182+th)}, {v(b+1)}, {v(b+3)}")
            I(f"v_add_f32 {v(184+th)}, {v(b+5)}, {v(b+7)}")
        for th in range(2): I(f"v_add_f32 {v(182+th)}, {v(182+th)}, {v(184+th)}")
        for th in range(2):
            b = 164 + th*8
            for w in range(4): I(f"v_sub_f32 {v(b+2*w)}, {v(b+2*w)}, {v(180+th)}")
        for th in range(2):
            b = 164 + th*8
            I(f"v_mul_f32 {v(184+th)}, {v(b)}, {v(b)}")
            for w in range(1, 4): I(f"v_fmac_f32 {v(184+th)}, {v(b+2*w)}, {v(b+2*w)}")
        I(f"s_mov_b32 {S_C0}, {hx(f2u(48.0))}")
        I(f"s_mov_b32 {S_C1}, {hx(f2u(1.0/192))}")
        I(f"s_mov_b32 {S_C2}, {hx(f2u(1e-5))}")
        for th in range(2): I(f"v_fmac_f32 {v(182+th)}, {S_C0}, {v(184+th)}")
        for th in range(2): I(f"v_mov_b32 {v(184+th)}, {S_C2}")
        for th in range(2): I(f"v_fmac_f32 {v(184+th)}, {S_C1}, {v(182+th)}")
        for th in range(2): I(f"v_rsq_f32 {v(184+th)}, {v(184+th)}")
        for th in range(2):
            I(f"v_mov_b32 {v(186+2*th)}, {v(180+th)}")
            I(f"v_mov_b32 {v(187+2*th)}, {v(180+th)}")
        for th in range(2):
            I(f"v_mov_b32 {v(190+2*th)}, {v(184+th)}")
            I(f"v_mov_b32 {v(191+2*th)}, {v(184+th)}")
        for ft in range(3):
            for th in range(2):
                b = AO + (ft*2+th)*4; d = 196 + ft*4 + th*2
                I(f"v_cvt_pk_bf16_f32 {v(d)}, {v(b)}, {v(b+1)}")
                I(f"v_cvt_pk_bf16_f32 {v(d+1)}, {v(b+2)}, {v(b+3)}")
        for ft in range(3):
            for th in range(2):
                b = AO + (ft*2+th)*4
                I(f"v_pk_add_f32 {v(b,2)}, {v(b,2)}, {v(186+2*th,2)} neg_lo:[0,1] neg_hi:[0,1]")
                I(f"v_pk_add_f32 {v(b+2,2)}, {v(b+2,2)}, {v(186+2*th,2)} neg_lo:[0,1] neg_hi:[0,1]")
                I(f"v_pk_mul_f32 {v(b,2)}, {v(b,2)}, {v(190+2*th,2)}")
                I(f"v_pk_mul_f32 {v(b+2,2)}, {v(b+2,2)}, {v(190+2*th,2)}")
        for ft in range(3):
            for th in range(2):
                b = AO + (ft*2+th)*4; d = 208 + ft*4 + th*2
                I(f"v_cvt_pk_bf16_f32 {v(d)}, {v(b)}, {v(b+1)}")
                I(f"v_cvt_pk_bf16_f32 {v(d+1)}, {v(b+2)}, {v(b+3)}")
        self.nop(1)
        for base in (208, 196):
            for ft in range(3):
                d = base + ft*4
                I(f"v_permlane16_swap_b32 {v(d)}, {v(d+2)}")
                I(f"v_permlane16_swap_b32 {v(d+1)}, {v(d+3)}")
        for ft in range(3):
            st = (S_ST0, S_ST1, S_ST2)[ft]
            self.vm(f"buffer_store_dwordx4 {v(208+ft*4,4)}, v58, {srd(SWS)}, {st} offen sc1", "st")
        for ft in range(3):
            st = (S_ST0, S_ST1, S_ST2)[ft]
            I(f"s_add_u32 {st}, {st}, {WS_X1}")
            self.vm(f"buffer_store_dwordx4 {v(196+ft*4,4)}, v58, {srd(SWS)}, {st} offen sc1", "st")

    AQP, AKF, AVF, AWV, AM = 0, 48, 96, 144, 48
    def handoff(self):
        I = self.I
        self.wait_vm("fus")
        I(f"s_mov_b32 s31, {SPIN_MAX}")
        self.L("L_fpoll")
        I("v_cmp_eq_u32 vcc, 72, v53")
        I("s_cbranch_vccnz L_fdone")
        I(f"buffer_load_dword v53, v52, {srd(SDBG)}, 0 offen sc1")
        I("s_sub_u32 s31, s31, 1")
        I("s_waitcnt vmcnt(0)")
        I("s_cmp_lg_u32 s31, 0")
        I("s_cbranch_scc1 L_fpoll", pat="fspin")
        self.L("L_fdone")
        I("v_lshlrev_b32 v2, 4, v1")
        I(f"s_mul_i32 s31, {S_W}, 18432")
        n = 0
        for base, reg in ((WS_WM, self.AM), (WS_WVO, self.AWV)):
            for q in range(18):
                if q % 4 == 0: I(f"s_add_u32 {S_SOFF}, s31, {base + q*1024}")
                I(f"buffer_load_dwordx4 {a(reg+4*q,4)}, v2, {srd(SWS)}, {S_SOFF} offen offset:{(q%4)*1024} sc1", tag="wf")
                n += 1
        I(f"s_waitcnt vmcnt({n})")
        I("s_barrier")
        I(f"s_cmp_lg_u32 {S_W}, 0")
        I("s_cbranch_scc1 L_hwait")
        I("v_mov_b32 v54, 1")
        I(f"s_lshl_b32 s31, {S_J}, 7")
        I(f"s_add_u32 s31, s31, {WS_SYNC}")
        I("v_mov_b32 v55, s31")
        I("s_mov_b64 exec, 1")
        I(f"buffer_atomic_add v54, v55, {srd(SWS)}, 0 offen sc1")
        I("s_mov_b64 exec, -1")
        I("v_min_u32 v55, 22, v1")
        I("v_lshlrev_b32 v55, 7, v55")
        I(f"v_add_u32 v55, {WS_SYNC}, v55")
        I(f"s_mov_b32 s31, {SPIN_MAX}")
        self.L("L_hpoll")
        I(f"buffer_load_dword v56, v55, {srd(SWS)}, 0 offen sc1")
        I("s_sub_u32 s31, s31, 1")
        I("s_cmp_eq_u32 s31, 0")
        I("s_cbranch_scc1 L_hwait", pat="hspin")
        I("s_waitcnt vmcnt(0)")
        I("v_cmp_ne_u32 vcc, 8, v56")
        I("s_cbranch_vccnz L_hpoll")
        self.L("L_hwait")
        I("s_barrier")

    VO, VS, VE, VNM, VPB = 128, 96, 112, 224, 240
    VD0, VD1, VD2 = 2, 3, 4
    VK0, VK1, VV0, VV1 = 5, 6, 7, 8
    VKA, VKB, VVA, VVB = 9, 10, 11, 12
    VL, VTS, VTS2 = 13, 14, 15
    VX1 = 16
    VHR2 = 28
    VQW = 30
    VOUT = 33

    def dma_tile(self, slot_sgpr, soff_sgpr, tagp):
        out = []
        for part in range(3):
            out.append(f"s_add_u32 m0, {slot_sgpr}, {part*4096}" if part else f"s_mov_b32 m0, {slot_sgpr}")
            for q in range(4):
                out.append((f"buffer_load_dwordx4 {v(self.VD0+part)}, {srd(SWS)}, {soff_sgpr} offen offset:{q*1024} sc1 lds", f"{tagp}{part*4+q}"))
        return out

    def s2(self):
        I = self.I
        VO, VS, VE, VNM, VPB = self.VO, self.VS, self.VE, self.VNM, self.VPB
        I(f"v_lshlrev_b32 {v(self.VD0)}, 4, v1")
        I(f"v_add_u32 {v(self.VD1)}, 4096, {v(self.VD0)}")
        I(f"v_add_u32 {v(self.VD2)}, 8192, {v(self.VD0)}")
        I(f"s_mul_i32 {S_FBASE}, {S_X8}, {FRAMEB}")
        I(f"s_mul_i32 {S_RING}, {S_W}, 36864")
        I(f"s_mul_i32 s31, {S_J}, {TILEB}")
        I(f"s_add_u32 s31, s31, {S_FBASE}")
        I(f"s_mul_i32 s34, {S_W}, 3072")
        I("s_add_u32 s35, s31, s34")
        I("s_mov_b32 m0, s34")
        I("s_nop 0")
        for q in range(3):
            I(f"buffer_load_dwordx4 {v(self.VD0)}, {srd(SWS)}, s35 offen offset:{q*1024} sc1 lds", tag="own")
        I(f"s_add_u32 {S_TILE}, {S_J}, {S_W}")
        I(f"s_cmp_ge_u32 {S_TILE}, 23")
        I("s_cselect_b32 s34, 23, 0")
        I(f"s_sub_u32 {S_TILE}, {S_TILE}, s34")
        I(f"s_cmp_eq_u32 {S_W}, 3")
        I(f"s_cselect_b32 {S_NTL}, 5, 6")
        I(f"s_cmp_eq_u32 {S_W}, 0")
        I("s_cbranch_scc1 L_s2_not0", pat="w0")
        I(f"s_mul_i32 {S_TOFF}, {S_TILE}, {TILEB}")
        I(f"s_add_u32 {S_TOFF}, {S_TOFF}, {S_FBASE}")
        self.emit_dma_tile(S_RING, S_TOFF, "t0")
        self.L("L_s2_not0")
        S_TN = "s57"
        self.next_tile(S_TN, S_TILE)
        I(f"s_mul_i32 {S_TOFF}, {S_TN}, {TILEB}")
        I(f"s_add_u32 {S_TOFF}, {S_TOFF}, {S_FBASE}")
        I(f"s_add_u32 s35, {S_RING}, 12288")
        self.emit_dma_tile("s35", S_TOFF, "tn")
        self.next_tile(S_TN, S_TN)
        I("v_and_b32 v52, 15, v1")
        I("v_lshrrev_b32 v53, 4, v1")
        I("v_and_b32 v54, 1, v53")
        I("v_lshrrev_b32 v55, 1, v53")
        I("v_xor_b32 v56, v54, v55")
        I("v_lshrrev_b32 v57, 3, v52")
        I("v_xor_b32 v56, v56, v57")
        I("v_lshlrev_b32 v56, 6, v56")
        I("v_lshrrev_b32 v57, 2, v52")
        I("v_xor_b32 v57, v57, v54")
        I("v_lshl_add_u32 v56, v57, 7, v56")
        I("v_lshl_add_u32 v56, v54, 10, v56")
        I("v_and_b32 v57, 3, v52")
        I("v_lshl_add_u32 v34, v57, 4, v56")
        I("v_xor_b32 v56, v55, v54")
        I("v_lshlrev_b32 v56, 7, v56")
        I("v_lshl_add_u32 v56, v54, 10, v56")
        I("v_bfe_u32 v57, v1, 2, 2")
        I("v_lshl_add_u32 v56, v57, 4, v56")
        I("v_and_b32 v57, 1, v1")
        I("v_lshl_add_u32 v56, v57, 3, v56")
        I("v_bfe_u32 v57, v1, 1, 1")
        I(f"v_lshl_add_u32 {v(self.VV0)}, v57, 6, v56")
        I("v_xor_b32 v57, 1, v57")
        I("v_lshl_add_u32 v56, v57, 6, v56")
        I(f"v_add_u32 {v(self.VV1)}, 256, v56")
        I("v_and_b32 v54, 31, v1")
        I("v_lshrrev_b32 v55, 5, v1")
        I("v_lshrrev_b32 v56, 2, v54")
        I("v_bfe_u32 v57, v54, 3, 1")
        I("v_xor_b32 v57, v57, v55")
        I("v_lshlrev_b32 v57, 6, v57")
        I("v_and_b32 v58, 3, v54")
        I("v_lshl_add_u32 v57, v58, 4, v57")
        I(f"v_lshl_add_u32 {v(self.VK0)}, v56, 7, v57")
        I("v_xor_b32 v56, 1, v56")
        I(f"v_lshl_add_u32 {v(self.VK1)}, v56, 7, v57")
        for k in range(2): I(f"v_add_u32 {v(self.VHR2+k)}, {(L_Q - L_H) & 0xffffffff}, {v(self.VHR+k)}")
        for k in range(3): I(f"v_add_u32 {v(self.VQW+k)}, {(L_Q - L_X) & 0xffffffff}, {v(self.VXR+k)}")
        I("v_lshlrev_b32 v57, 9, v55")
        I(f"v_add_u32 v57, {L_Q}, v57")
        for k in range(4):
            I(f"v_add_u32 v58, {2*k}, v55")
            I("v_xor_b32 v58, v58, v54")
            I(f"v_lshl_add_u32 {v(36+k)}, v58, 4, v57")
        I(f"v_cmp_lt_u32 {S_MASKH}, 31, v1")
        for r in range(96): I(f"v_mov_b32 {v(VO+r)}, 0")
        for r in range(16): I(f"v_mov_b32 {v(VE+r)}, 0")
        for r in range(16): I(f"v_mov_b32 {v(VNM+r)}, 0")
        for r in range(8): I(f"v_mov_b32 {v(VPB+r)}, 0")
        I(f"v_mov_b32 {v(self.VL)}, 0")
        for r in range(120, 144): I(f"v_accvgpr_write_b32 {a(r)}, 0")
        I("s_waitcnt vmcnt(12)")
        I("s_barrier")
        for th in range(2):
            for ks in range(6):
                I(f"ds_read_b128 {a((th*6+ks)*4,4)}, v34 offset:{ks*2048+th*512}", needs=["own"])
        I("s_waitcnt lgkmcnt(0)")
        for ks in range(6):
            for ft in range(3):
                for th in range(2):
                    D = v(64+(ft*2+th)*4, 4)
                    I(f"v_mfma_f32_16x16x32_bf16 {D}, {a(self.AM+(ft*6+ks)*4,4)}, {a((th*6+ks)*4,4)}, {'0' if ks == 0 else D}", needs=["wf"])
        self.nop(3)
        for ft in range(3):
            for th in range(2):
                b = 64+(ft*2+th)*4; d = 40 + (ft*2+th)*2
                I(f"v_cvt_pk_bf16_f32 {v(d)}, {v(b)}, {v(b+1)}")
                I(f"v_cvt_pk_bf16_f32 {v(d+1)}, {v(b+2)}, {v(b+3)}")
                I(f"ds_write_b64 {v(self.VQW+ft)}, {v(d,2)} offset:{th*256}")
        I("s_waitcnt lgkmcnt(0)")
        I("s_barrier")
        for jj in range(12):
            I(f"ds_read_b128 {a(self.AQP+4*jj,4)}, {v(36+(jj&3))} offset:{jj*1024}")
        I(f"v_add_u32 {v(self.VKA)}, {S_RING}, {v(self.VK0)}")
        I(f"v_add_u32 {v(self.VKB)}, {S_RING}, {v(self.VK1)}")
        for jj in range(12):
            I(f"ds_read_b128 {a(self.AKF+4*jj,4)}, {v(self.VKA+(jj&1))} offset:{jj*1024}", needs=["own"] + [f"t0{q}" for q in range(12)])
        I(f"s_mov_b32 {S_SLV}, {S_RING}")
        I(f"s_add_u32 {S_SLK}, {S_RING}, 12288")
        I(f"s_add_u32 {S_SLD}, {S_RING}, 24576")
        I(f"s_add_u32 s41, {S_RING}, 36864")
        I(f"s_mov_b32 {S_IT}, 0")
        I(f"s_mov_b32 {S_C0}, {hx(f2u(HI_THR))}")
        I(f"s_mov_b32 {S_C1}, {hx(f2u(LO_THR))}")
        I("s_waitcnt lgkmcnt(0)")

        AK, AV, AQ = self.AKF, self.AVF, self.AQP
        def A_phase(last_tail=False):
            pass
        self.L("L_loop")
        I(f"s_add_u32 s31, {S_IT}, 2")
        I(f"s_cmp_lt_u32 s31, {S_NTL}")
        I(f"s_mul_i32 {S_TOFF}, {S_TN}, {TILEB}")
        I(f"s_cselect_b32 s34, {S_FBASE}, {hx(OOB)}")
        I(f"s_add_u32 {S_TOFF}, {S_TOFF}, s34")
        I(f"v_add_u32 {v(self.VKA)}, {S_SLK}, {v(self.VK0)}")
        I(f"v_add_u32 {v(self.VKB)}, {S_SLK}, {v(self.VK1)}")
        dma = self.dma_tile(S_SLD, S_TOFF, "tn")
        dmaq = []
        for t in dma: dmaq.append(t)
        di = 0
        for jj in range(12):
            I(f"v_mfma_f32_32x32x16_bf16 {v(VS,16)}, {a(AK+4*jj,4)}, {a(AQ+4*jj,4)}, {v(VNM,16) if jj == 0 else v(VS,16)}")
            if jj == 0: I("s_waitcnt lgkmcnt(0)")
            if jj < 4:
                I(f"v_cvt_pk_bf16_f32 {v(VPB+4+jj)}, {v(VE+8+2*jj)}, {v(VE+9+2*jj)}")
            if jj % 3 == 0: I("s_waitcnt vmcnt(9)")
            if not isinstance(dmaq[di], tuple):
                I(dmaq[di]); di += 1
            I(f"ds_read_b128 {a(AK+4*jj,4)}, {v(self.VKA+(jj&1))} offset:{jj*1024}", needs=[f"tn{jj}"])
            I(dmaq[di][0], tag=dmaq[di][1]); di += 1
        I(f"v_add_u32 {v(self.VVA)}, {S_SLV}, {v(self.VV0)}")
        I(f"v_add_u32 {v(self.VVB)}, {S_SLV}, {v(self.VV1)}")
        exps = [f"v_exp_f32 {v(VE+r)}, {v(VS+r)}" for r in range(16)]
        adds = [f"v_add_f32 {v(self.VTS)}, {v(VE)}, {v(VE+1)}", f"v_add_f32 {v(self.VTS2)}, {v(VE+2)}, {v(VE+3)}"]
        for r in range(4, 16): adds.append(f"v_add_f32 {v((self.VTS, self.VTS2)[r & 1])}, {v((self.VTS, self.VTS2)[r & 1])}, {v(VE+r)}")
        adds.append(f"v_add_f32 {v(self.VTS)}, {v(self.VTS)}, {v(self.VTS2)}")
        ei = ai = 0
        for m in range(12):
            s_, ct = divmod(m, 6)
            I(f"v_mfma_f32_32x32x16_bf16 {v(VO+16*ct,16)}, {a(AV+(ct*2+s_)*4,4)}, {v(VPB+4*s_,4)}, {v(VO+16*ct,16)}")
            for e2 in range(2):
                I(f"ds_read_b64_tr_b16 {a(AV+(ct*2+s_)*4+2*e2,2)}, {v(self.VVA+e2)} offset:{ct*2048+s_*512}")
            if m == 1:
                I(f"s_cmp_eq_u32 {S_TILE}, 22")
                I("s_cbranch_scc0 L_nomask", pat="nomask")
                self.nop(4)
                for r in (13, 14, 15): I(f"v_mov_b32 {v(VS+r)}, 0xff800000")
                I(f"v_mov_b32 v52, 0xff800000")
                I(f"v_cndmask_b32 {v(VS+12)}, {v(VS+12)}, v52, {S_MASKH}")
                self.L("L_nomask")
            if m == 3: I("s_waitcnt lgkmcnt(8)")
            if m >= 3 and m <= 10:
                for _ in range(2):
                    I(exps[ei]); ei += 1
            if m >= 4:
                lim = min(len(adds), max(0, (ei - 2) - 1)) if m < 11 else len(adds)
                while ai < lim:
                    I(adds[ai]); ai += 1
            if 7 <= m <= 10:
                k = m - 7
                I(f"v_cvt_pk_bf16_f32 {v(VPB+k)}, {v(VE+2*k)}, {v(VE+2*k+1)}")
        assert ei == 16 and ai == len(adds)
        I(f"v_add_f32 v52, {v(self.VL)}, {v(self.VTS)}")
        I(f"v_cmp_nge_f32 vcc, {S_C0}, {v(self.VTS)}")
        I(f"v_cmp_gt_f32 s[64:65], {S_C1}, v52")
        I(f"s_mov_b32 {S_SLV}, {S_SLK}")
        I(f"s_mov_b32 {S_SLK}, {S_SLD}")
        I(f"s_add_u32 {S_SLD}, {S_SLD}, 12288")
        I(f"s_cmp_ge_u32 {S_SLD}, s41")
        I(f"s_cselect_b32 {S_SLD}, {S_RING}, {S_SLD}")
        self.next_tile(S_TILE, S_TILE)
        self.next_tile(S_TN, S_TN)
        I("s_or_b64 vcc, vcc, s[64:65]")
        I("s_cbranch_vccnz L_rare", pat="rare")
        self.L("L_back")
        I(f"v_add_f32 {v(self.VL)}, {v(self.VL)}, {v(self.VTS)}")
        I(f"s_add_u32 {S_IT}, {S_IT}, 1")
        I(f"s_cmp_lt_u32 {S_IT}, {S_NTL}")
        I("s_cbranch_scc1 L_loop", pat="loop")
        I("s_waitcnt lgkmcnt(0)")
        for k in range(4):
            I(f"v_cvt_pk_bf16_f32 {v(VPB+4+k)}, {v(VE+8+2*k)}, {v(VE+9+2*k)}")
        I("v_and_b32 v52, 15, v1")
        I("v_lshrrev_b32 v53, 4, v1")
        I("v_and_b32 v54, 1, v53")
        I("v_lshl_add_u32 v54, v54, 4, v52")
        I("v_lshrrev_b32 v55, 1, v53")
        I("v_lshrrev_b32 v56, 2, v54")
        I("v_bfe_u32 v57, v54, 3, 1")
        I("v_xor_b32 v57, v57, v55")
        I("v_lshlrev_b32 v57, 6, v57")
        I("v_and_b32 v58, 3, v54")
        I("v_lshl_add_u32 v57, v58, 4, v57")
        I("v_lshl_add_u32 v40, v56, 7, v57")
        I("v_xor_b32 v56, 1, v56")
        I("v_lshl_add_u32 v41, v56, 7, v57")
        I(f"s_mul_i32 s31, {S_J}, {TILEB}")
        I(f"s_add_u32 s31, s31, {S_FBASE}")
        I(f"s_add_u32 s31, s31, {WS_X1}")
        I(f"s_mul_i32 s34, {S_W}, 3072")
        I("s_add_u32 s31, s31, s34")
        I(f"s_and_b32 s35, {S_W}, 1")
        I("s_cmp_eq_u32 s35, 0")
        I("s_cselect_b64 s[64:65], -1, 0")
        I("v_cndmask_b32 v42, v41, v40, s[64:65]")
        I("v_cndmask_b32 v43, v40, v41, s[64:65]")
        for m in range(12):
            s_, ct = divmod(m, 6)
            I(f"v_mfma_f32_32x32x16_bf16 {v(VO+16*ct,16)}, {a(AV+(ct*2+s_)*4,4)}, {v(VPB+4*s_,4)}, {v(VO+16*ct,16)}")
            if m < 3:
                I(f"buffer_load_dwordx4 {v(self.VX1+4*m,4)}, {v(42+(m&1))}, {srd(SWS)}, s31 offen offset:{m*1024} sc1", tag="x1")
        I(f"s_mul_i32 s34, {S_X8}, {N}")
        I(f"s_lshl_b32 s35, {S_J}, 5")
        I("v_add_u32 v56, s35, v54")
        I("v_add_u32 v57, s34, v56")
        I("v_mul_u32_u24 v57, 384, v57")
        I(f"s_mul_i32 s35, {S_W}, 96")
        I("v_lshl_add_u32 v57, v55, 4, v57")
        I("v_add_u32 v57, s35, v57")
        I(f"v_mov_b32 v58, {hx(OOB)}")
        I(f"v_cmp_gt_u32 vcc, {N}, v56")
        I(f"v_mov_b32 v45, {v(self.VL)}")
        I(f"v_mov_b32 v46, {v(self.VL)}")
        I(f"v_cndmask_b32 {v(self.VOUT)}, v58, v57, vcc")
        I("s_nop 0")
        I("v_permlane32_swap_b32 v45, v46")
        I(f"v_sub_f32 v44, 0, {v(VNM)}")
        I("v_add_f32 v45, v45, v46")
        I("v_and_b32 v46, 31, v1")
        I("v_lshlrev_b32 v46, 3, v46")
        I(f"s_lshl_b32 s31, {S_W}, 8")
        I(f"s_add_u32 s31, s31, {L_ML}")
        I("v_add_u32 v47, s31, v46")
        I("ds_write_b64 v47, v[44:45]")
        I("s_waitcnt vmcnt(3)")
        I("v_lshlrev_b32 v48, 4, v1")
        I(f"v_add_u32 v48, {S_RING}, v48")
        for d in range(4):
            I(f"s_cmp_eq_u32 {S_W}, {d}")
            I(f"s_cbranch_scc1 L_own{d}", pat=f"own{d}")
            if d == 0: self.nop(2)
            for u in range(6):
                I(f"ds_write_b128 v48, {v(VO+24*d+4*u,4)} offset:{(d*6+u)*1024}")
            I(f"s_branch L_nxt{d}")
            self.L(f"L_own{d}")
            self.nop(10)
            for r in range(24): I(f"v_mov_b32 {v(64+r)}, {v(VO+24*d+r)}")
            self.L(f"L_nxt{d}")
        I("s_waitcnt lgkmcnt(0)")
        I("s_barrier")
        for k in range(1, 4):
            I(f"s_add_u32 s31, {S_W}, {k}")
            I("s_and_b32 s31, s31, 3")
            I("s_lshl_b32 s34, s31, 8")
            I(f"s_add_u32 s34, s34, {L_ML}")
            I(f"v_add_u32 v47, s34, v46")
            I(f"ds_read_b64 {v(48+2*k,2)}, v47")
            I("s_mul_i32 s34, s31, 36864")
            I(f"s_mul_i32 s35, {S_W}, 6144")
            I("s_add_u32 s34, s34, s35")
            I("v_lshlrev_b32 v56, 4, v1")
            I(f"v_add_u32 v56, s34, v56")
            for u in range(6):
                I(f"ds_read_b128 {v(VO+(k-1)*24+4*u,4)}, v56 offset:{u*1024}")
        I("s_waitcnt lgkmcnt(6)")
        I("v_max3_f32 v57, v44, v50, v52")
        I("v_max_f32 v57, v57, v54")
        for src in (44, 50, 52, 54): I(f"v_sub_f32 {v(src)}, {v(src)}, v57")
        for src in (44, 50, 52, 54): I(f"v_exp_f32 {v(src)}, {v(src)}")
        I("s_nop 0")
        I("v_mul_f32 v57, v44, v45")
        for src in (50, 52, 54): I(f"v_fmac_f32 v57, {v(src)}, {v(src+1)}")
        I("v_rcp_f32 v57, v57")
        I("s_nop 0")
        for src in (44, 50, 52, 54): I(f"v_mul_f32 {v(src)}, {v(src)}, v57")
        for r in range(24): I(f"v_mul_f32 {v(64+r)}, {v(64+r)}, v44")
        for r in range(24): I(f"v_fmac_f32 {v(64+r)}, {v(VO+r)}, v50")
        for r in range(24): I(f"v_fmac_f32 {v(64+r)}, {v(VO+24+r)}, v52")
        I("s_waitcnt lgkmcnt(0)")
        for r in range(24): I(f"v_fmac_f32 {v(64+r)}, {v(VO+48+r)}, v54")
        I("v_and_b32 v56, 31, v1")
        I("v_lshrrev_b32 v57, 5, v1")
        I("v_lshlrev_b32 v57, 3, v57")
        I(f"s_mul_i32 s31, {S_W}, 6")
        I(f"s_mul_i32 s34, {S_W}, 3072")
        I(f"s_add_u32 s34, s34, {L_Q}")
        I("v_add_u32 v57, s34, v57")
        for u in range(6):
            I(f"s_add_u32 s35, s31, {u}")
            I("s_and_b32 s35, s35, 7")
            I("v_xor_b32 v58, s35, v56")
            I("v_lshl_add_u32 v58, v58, 4, v57")
            I(f"v_cvt_pk_bf16_f32 {v(88+2*u)}, {v(64+4*u)}, {v(65+4*u)}")
            I(f"v_cvt_pk_bf16_f32 {v(89+2*u)}, {v(66+4*u)}, {v(67+4*u)}")
            I(f"ds_write_b64 v58, {v(88+2*u,2)} offset:{u*512}")
        I("s_waitcnt vmcnt(0)")
        for ft in range(3):
            b = self.VX1 + 4*ft
            I(f"v_permlane16_swap_b32 {v(b)}, {v(b+2)}")
            I(f"v_permlane16_swap_b32 {v(b+1)}, {v(b+3)}")
        I("s_waitcnt lgkmcnt(0)")
        I("s_barrier")
        for th in range(2):
            for ks in range(6):
                I(f"ds_read_b128 {a((th*6+ks)*4,4)}, {v(self.VHR2+(ks&1))} offset:{ks*2048+th*256}")
        for ft in range(3):
            for th in range(2):
                src = self.VX1 + 4*ft + 2*th; d = 64 + (ft*2+th)*4
                I(f"v_lshlrev_b32 {v(d)}, 16, {v(src)}")
                I(f"v_and_b32 {v(d+1)}, 0xffff0000, {v(src)}")
                I(f"v_lshlrev_b32 {v(d+2)}, 16, {v(src+1)}")
                I(f"v_and_b32 {v(d+3)}, 0xffff0000, {v(src+1)}")
        I("s_waitcnt lgkmcnt(0)")
        for ks in range(6):
            for ft in range(3):
                for th in range(2):
                    D = v(64+(ft*2+th)*4, 4)
                    I(f"v_mfma_f32_16x16x32_bf16 {D}, {a(self.AWV+(ft*6+ks)*4,4)}, {a((th*6+ks)*4,4)}, {D}")
        self.nop(3)
        for ft in range(3):
            for th in range(2):
                b = 64+(ft*2+th)*4; d = 96 + ft*4 + th*2
                I(f"v_cvt_pk_bf16_f32 {v(d)}, {v(b)}, {v(b+1)}")
                I(f"v_cvt_pk_bf16_f32 {v(d+1)}, {v(b+2)}, {v(b+3)}")
        self.nop(1)
        for ft in range(3):
            d = 96 + ft*4
            I(f"v_permlane16_swap_b32 {v(d)}, {v(d+2)}")
            I(f"v_permlane16_swap_b32 {v(d+1)}, {v(d+3)}")
        for ft in range(3):
            I(f"buffer_store_dwordx4 {v(96+ft*4,4)}, {v(self.VOUT)}, {srd(SOUT)}, 0 offen offset:{ft*32}")
        I("s_branch L_end")

        self.L("L_rare")
        self.nop(12)
        I(f"v_max3_f32 v52, {v(VS)}, {v(VS+1)}, {v(VS+2)}")
        for r in range(3, 15, 2): I(f"v_max3_f32 v52, v52, {v(VS+r)}, {v(VS+r+1)}")
        I(f"v_max_f32 v52, v52, {v(VS+15)}")
        I("v_mov_b32 v53, v52")
        I(f"v_mov_b32 v54, {v(self.VL)}")
        I(f"v_mov_b32 v55, {v(self.VL)}")
        self.nop(1)
        I("v_permlane32_swap_b32 v52, v53")
        I("v_permlane32_swap_b32 v54, v55")
        I("v_max_f32 v52, v52, v53")
        I("v_add_f32 v54, v54, v55")
        I("v_max_f32 v53, 0, v52")
        I("v_cmp_eq_f32 vcc, 0, v54")
        self.nop(2)
        I("v_cndmask_b32 v52, v53, v52, vcc")
        I("v_sub_f32 v53, 0, v52")
        I("v_exp_f32 v53, v53")
        I("s_nop 0")
        I("v_cndmask_b32 v53, v53, 1.0, vcc")
        for r in range(96): I(f"v_mul_f32 {v(VO+r)}, {v(VO+r)}, v53")
        I(f"v_mul_f32 {v(self.VL)}, {v(self.VL)}, v53")
        for r in range(16): I(f"v_sub_f32 {v(VNM+r)}, {v(VNM+r)}, v52")
        for r in range(16): I(f"v_sub_f32 {v(VS+r)}, {v(VS+r)}, v52")
        for r in range(16): I(f"v_exp_f32 {v(VE+r)}, {v(VS+r)}")
        I("s_nop 0")
        I(f"v_add_f32 {v(self.VTS)}, {v(VE)}, {v(VE+1)}")
        for r in range(2, 16): I(f"v_add_f32 {v(self.VTS)}, {v(self.VTS)}, {v(VE+r)}")
        for k in range(4): I(f"v_cvt_pk_bf16_f32 {v(VPB+k)}, {v(VE+2*k)}, {v(VE+2*k+1)}")
        I("s_branch L_back")

    def next_tile(self, dst, src):
        self.I(f"s_add_u32 {dst}, {src}, 4")
        self.I(f"s_cmp_ge_u32 {dst}, 23")
        self.I(f"s_cselect_b32 s34, 23, 0")
        self.I(f"s_sub_u32 {dst}, {dst}, s34")

    def emit_dma_tile(self, slot, soff, tag):
        for t in self.dma_tile(slot, soff, tag):
            if isinstance(t, tuple): self.I(t[0], tag=t[1])
            else:
                self.I(t); self.I("s_nop 0")

    def build(self):
        self.entry()
        self.s1()
        self.handoff()
        self.s2()
        self.fusion()
        self.L("L_end")
        self.I("s_endpgm")
        self.L("L_codeend")
        return self.p

HEADER = """; TimeSformer block (temporal attention + spatial attention), one persistent launch.
; @launch grid=(256,1,1) block=(256,1,1) lds=%d
.amdgcn_target "amdgcn-amd-amdhsa--gfx950"
.text
.globl %s
.p2align 8
.type %s,@function
"""
FOOTER = """
.section .rodata,"a"
.p2align 6
.amdhsa_kernel %s
  .amdhsa_next_free_vgpr 512
  .amdhsa_next_free_sgpr 102
  .amdhsa_accum_offset 256
  .amdhsa_group_segment_fixed_size 0
  .amdhsa_kernarg_size 64
  .amdhsa_user_sgpr_count 2
  .amdhsa_user_sgpr_kernarg_segment_ptr 1
  .amdhsa_system_sgpr_workgroup_id_x 1
  .amdhsa_float_denorm_mode_32 3
.end_amdhsa_kernel
"""

def scenarios():
    base = {"L_fdone": [1], "L_hpoll": [0], "L_end": [0]}
    out = {}
    for w in range(4):
        for rare in (0, 1):
            n = 5 if w == 3 else 6
            c = dict(base)
            c.update({"w0": [1 if w == 0 else 0], "loop": [1] * (n - 1) + [0], "nomask": [1, 0, 1], "rare": [rare, 0, rare, 0],
                      "L_hwait": [0 if w == 0 else 1]})
            for d in range(4): c[f"own{d}"] = [1 if d == w else 0]
            out[f"main_w{w}_rare{rare}"] = c
    out["fus_m"] = {"L_fusion": [1], "L_fus_vo": [0], "L_fus_nozero": [0], "L_end": [0, 0]}
    out["fus_vo"] = {"L_fusion": [1], "L_fus_vo": [1], "L_fus_nozero": [1], "L_end": [0, 1]}
    return out

def generate(path):
    g = Gen(); p = g.build()
    errs = []
    for name, ch in scenarios().items():
        tr = p.trace(KNAME, ch)
        errs += check_hazards(tr, name) + check_waits(tr, name)
    uniq = list(dict.fromkeys(errs))
    for e in uniq[:40]: print(e)
    print(f"{len(uniq)} checker findings; {len(p.ins)} lines")
    txt = HEADER % (LDS_BYTES, KNAME, KNAME) + p.text() + FOOTER % KNAME
    open(path, "w").write(txt)
    return len(uniq)

if __name__ == "__main__":
    out = sys.argv[1] if len(sys.argv) > 1 else "standalone__video_timesformer__vision.s"
    generate(out)
```

```python
import struct, sys
from asmdsl import *

def f2u(x): return struct.unpack("<I", struct.pack("<f", x))[0]
def hx(x): return "0x%08x" % (x & 0xffffffff)

KNAME = "standalone__video_timesformer__vision_kernel"
T, N, C = 8, 729, 192
ROWB = 384
XFRAME = N * ROWB
TILEB = 12288
NT = 23
FRAMEB = NT * TILEB
WS_H2, WS_X1, WS_WM, WS_WVO, WS_SYNC = 0, 0x240000, 0x480000, 0x4A0000, 0x4C0000
WS_STAMP = 0x4D0000
WS_SIZE = 0x500000
X_BYTES = T * N * ROWB
WQKV_BYTES, WO_BYTES = 192 * 1152, 192 * 384
OOB = 0x40000000
SCALE_L2E = (C ** -0.5) * 1.4426950408889634
SPIN_MAX = 1 << 20
HI_THR, LO_THR = 2.0 ** 30, 2.0 ** -30

SX, SWQ, SWO, SWS, SOUT, SDBG = 4, 8, 12, 16, 20, 24
def srd(b): return f"s[{b}:{b+3}]"
S_W, S_J, S_X8 = "s28", "s29", "s30"
S_T0, S_T1, S_T2, S_T3 = "s31", "s34", "s35", "s36"
S_1152, S_384 = "s37", "s38"
S_SOFF = "s39"
S_RING = "s40"
S_MASKP = "s[42:43]"
S_MASKH = "s[44:45]"
S_TILE, S_NTL, S_IT = "s46", "s47", "s48"
S_SLK, S_SLV, S_SLD = "s49", "s50", "s51"
S_TOFF = "s52"
S_FBASE = "s53"
S_ST0, S_ST1, S_ST2 = "s54", "s55", "s56"
S_EXEC = "s[58:59]"
S_C0, S_C1, S_C2, S_C3 = "s60", "s61", "s62", "s63"

R1 = 9
L_RING1 = 0
L_H, L_X, L_O, L_SX, L_ST = 110592, 122880, 135168, 147456, 155648
L_RING2 = 0
L_Q, L_ML = 147456, 159744
LDS_BYTES = 160768

def v(n, k=1): return f"v{n}" if k == 1 else f"v[{n}:{n+k-1}]"
def a(n, k=1): return f"a{n}" if k == 1 else f"a[{n}:{n+k-1}]"

class Gen:
    def __init__(self, dbg=None):
        self.p = Prog()
        self.dbg = dbg or {}
        self.nvm = 0
    def I(self, t, **k): self.p.I(t, **k)
    def L(self, n): self.p.L(n)
    def nop(self, n): self.p.nop(n)

    def stamp(self, k):
        if self.dbg.get("stamps"):
            self.I(f"s_memrealtime s[{66+2*k}:{67+2*k}]")
    def stamps_out(self):
        if not self.dbg.get("stamps"): return
        I = self.I
        I("s_memtime s[98:99]")
        I("s_waitcnt lgkmcnt(0)")
        if self.dbg.get("dbgout"):
            I("v_mov_b32 v2, 0")
            I("s_mov_b64 exec, 1")
            I("s_not_b32 s31, s66")
            I("v_mov_b32 v3, s31")
            I(f"buffer_atomic_umax v3, v2, {srd(SDBG)}, 0 offen offset:4 sc1")
            for n, k in enumerate(self.dbg.get("sel", [0, 1, 2, 3, 5, 7, 8, 9, 10, 11, 12, 13, 14, 15])):
                I(f"v_mov_b32 v3, s{66+2*k}")
                I(f"buffer_atomic_umax v3, v2, {srd(SDBG)}, 0 offen offset:{8+4*n} sc1")
            I("s_mov_b64 exec, -1")
            return
        I("s_lshl_b32 s31, s2, 2")
        I(f"s_add_u32 s31, s31, {S_W}")
        I("s_lshl_b32 s31, s31, 7")
        I(f"s_add_u32 s31, s31, {WS_STAMP}")
        I("v_mov_b32 v2, s31")
        I("s_mov_b64 exec, 1")
        for k in range(16):
            I(f"v_mov_b32 v3, s{66+2*k}")
            I(f"buffer_store_dword v3, v2, {srd(SWS)}, 0 offen offset:{4*k}")
        I("s_sub_u32 s98, s98, s100")
        I("v_mov_b32 v3, s98")
        I(f"buffer_store_dword v3, v2, {srd(SWS)}, 0 offen offset:64")
        I("s_mov_b64 exec, -1")
    def mk_srd(self, base, karg_off, nbytes):
        self.I(f"s_load_dwordx2 s[{base}:{base+1}], s[0:1], {karg_off}")
        self.I(f"s_mov_b32 s{base+2}, {hx(nbytes)}")
        self.I(f"s_mov_b32 s{base+3}, 0x20000")

    def xg_reduce_add(self, regs_, tmps):
        for r, t in zip(regs_, tmps): self.I(f"v_mov_b32 {v(t)}, {v(r)}")
        self.nop(max(0, 2 - (len(regs_) - 1)))
        for r, t in zip(regs_, tmps): self.I(f"v_permlane16_swap_b32 {v(r)}, {v(t)}")
        for r, t in zip(regs_, tmps): self.I(f"v_add_f32 {v(r)}, {v(r)}, {v(t)}")
        for r, t in zip(regs_, tmps): self.I(f"v_mov_b32 {v(t)}, {v(r)}")
        self.nop(max(0, 2 - (len(regs_) - 1)))
        for r, t in zip(regs_, tmps): self.I(f"v_permlane32_swap_b32 {v(r)}, {v(t)}")
        for r, t in zip(regs_, tmps): self.I(f"v_add_f32 {v(r)}, {v(r)}, {v(t)}")

    def entry(self):
        I = self.I
        self.L(KNAME)
        self.stamp(0)
        if self.dbg.get("stamps"): I("s_memtime s[100:101]")
        I(f"s_cmp_ge_u32 s2, 256")
        I("s_cbranch_scc1 L_end")
        I("s_lshr_b32 s3, s2, 3")
        I(f"s_and_b32 {S_X8}, s2, 7")
        I("s_cmp_lt_u32 s3, 9")
        I("s_cbranch_scc1 L_fusion")

    def fusion(self):
        I = self.I
        self.L("L_fusion")
        self.mk_srd(SX, 8, WQKV_BYTES)
        self.mk_srd(SOUT, 16, WO_BYTES)
        self.mk_srd(SWQ, 24, WQKV_BYTES)
        self.mk_srd(SWO, 32, WO_BYTES)
        self.mk_srd(SDBG, 48, 256)
        self.mk_srd(SWS, 56, WS_SIZE)
        I("s_getpc_b64 s[32:33]")
        self.L("L_pc")
        I("v_lshlrev_b32 v2, 7, v0")
        I("v_min_u32 v3, L_codeend-L_pc-4, v2")
        I("global_load_dword v4, v3, s[32:33]")
        I("v_and_b32 v1, 63, v0")
        I("v_lshrrev_b32 v5, 6, v0")
        I("s_lshl_b32 s31, s3, 15")
        I(f"v_readfirstlane_b32 {S_W}, v5")
        I("v_add_u32 v2, s31, v2")
        I(f"v_subrev_u32 v3, {WQKV_BYTES}, v2")
        I("s_lshl_b32 s34, s3, 3")
        I(f"s_add_u32 s34, s34, {S_X8}")
        I("s_lshl_b32 s35, s34, 2")
        I(f"s_add_u32 s35, s35, {S_W}")
        I("s_cmp_ge_u32 s35, 144")
        I("s_cselect_b32 s36, 1, 0")
        I("s_cselect_b32 s31, 144, 0")
        I("s_sub_u32 s35, s35, s31")
        I("s_mul_i32 s37, s35, 43691")
        I("s_lshr_b32 s37, s37, 19")
        I("s_mul_i32 s38, s37, 12")
        I("s_sub_u32 s38, s35, s38")
        I("v_and_b32 v6, 15, v1")
        I("v_lshrrev_b32 v7, 4, v1")
        I("v_mul_u32_u24 v8, 1152, v6")
        I("v_lshl_add_u32 v8, v7, 4, v8")
        I("s_waitcnt lgkmcnt(0)")
        I(f"buffer_load_dword v9, v2, {srd(SX)}, 0 offen")
        I(f"buffer_load_dword v10, v3, {srd(SOUT)}, 0 offen")
        I("s_mul_i32 s39, s37, 18432")
        I("s_mul_i32 s40, s36, 768")
        I("s_add_u32 s39, s39, s40")
        for ks in range(6):
            I(f"buffer_load_dwordx4 {v(16+4*ks,4)}, v8, {srd(SWQ)}, s39 offen offset:{64*ks}")
        I("s_cmp_eq_u32 s36, 1")
        I("s_cbranch_scc1 L_fus_vo")
        I("s_mul_i32 s39, s38, 18432")
        I("s_add_u32 s39, s39, 384")
        for ks in range(6):
            I(f"buffer_load_dwordx4 {v(40+4*ks,4)}, v8, {srd(SWQ)}, s39 offen offset:{64*ks}")
        I("s_waitcnt vmcnt(0)")
        for ks in range(6):
            I(f"v_mfma_f32_16x16x32_bf16 v[64:67], {v(16+4*ks,4)}, {v(40+4*ks,4)}, {'0' if ks == 0 else 'v[64:67]'}")
        I("s_and_b32 s31, s37, 1")
        I("s_lshl_b32 s31, s31, 1")
        I("v_lshrrev_b32 v11, 1, v7")
        I("v_add_u32 v11, s31, v11")
        I("v_lshlrev_b32 v12, 1, v11")
        I("v_mov_b32 v13, 0x78")
        I("v_lshrrev_b32 v12, v12, v13")
        I("v_and_b32 v11, 3, v12")
        I(f"s_mov_b32 s40, {hx(f2u(SCALE_L2E))}")
        I(f"s_mov_b32 s41, {WS_WM}")
        self.nop(3)
        for r in range(4): I(f"v_mul_f32 {v(64+r)}, s40, {v(64+r)}")
        I("s_branch L_fus_store")
        self.L("L_fus_vo")
        I("v_lshrrev_b32 v11, 1, v1")
        I("v_and_b32 v12, 12, v11")
        I("v_lshlrev_b32 v12, 1, v12")
        I("v_lshrrev_b32 v13, 2, v11")
        I("v_and_b32 v13, 4, v13")
        I("v_and_b32 v14, 3, v11")
        I("v_or3_b32 v12, v12, v13, v14")
        I("v_mul_u32_u24 v12, 384, v12")
        I("v_and_b32 v13, 1, v1")
        I("v_lshl_add_u32 v12, v13, 4, v12")
        I("s_lshl_b32 s39, s38, 5")
        I(f"s_mul_i32 s40, {S_W}, 6144")
        for ks in range(6):
            I(f"s_add_u32 m0, s40, {ks*1024}")
            I(f"s_add_u32 s41, s39, {ks*32*384}")
            I(f"buffer_load_dwordx4 v12, {srd(SWO)}, s41 offen lds", tag=f"fvo{ks}")
        I("v_lshlrev_b32 v13, 3, v1")
        I("v_add_u32 v13, s40, v13")
        I("s_waitcnt vmcnt(0)")
        for ks in range(6):
            I(f"ds_read_b64_tr_b16 {v(40+4*ks,2)}, v13 offset:{ks*1024}", needs=[f"fvo{ks}"])
            I(f"ds_read_b64_tr_b16 {v(42+4*ks,2)}, v13 offset:{ks*1024+512}", needs=[f"fvo{ks}"])
        I("s_waitcnt lgkmcnt(0)")
        for ks in range(6):
            I(f"v_mfma_f32_16x16x32_bf16 v[64:67], {v(16+4*ks,4)}, {v(40+4*ks,4)}, {'0' if ks == 0 else 'v[64:67]'}")
        I("s_and_b32 s31, s37, 1")
        I("s_lshl_b32 s31, s31, 1")
        I("v_lshrrev_b32 v11, 1, v7")
        I("v_add_u32 v11, s31, v11")
        I(f"s_mov_b32 s41, {WS_WVO}")
        self.nop(6)
        self.L("L_fus_store")
        I("v_cvt_pk_bf16_f32 v68, v64, v65")
        I("v_cvt_pk_bf16_f32 v69, v66, v67")
        I("v_lshl_add_u32 v11, v11, 4, v6")
        I("v_lshlrev_b32 v11, 4, v11")
        I("v_and_b32 v12, 1, v7")
        I("v_lshl_add_u32 v11, v12, 3, v11")
        I("s_mul_i32 s39, s38, 6")
        I("s_lshr_b32 s40, s37, 1")
        I("s_add_u32 s39, s39, s40")
        I("s_lshl_b32 s39, s39, 10")
        I("s_add_u32 s39, s39, s41")
        I(f"buffer_store_dwordx2 v[68:69], v11, {srd(SWS)}, s39 offen sc1")
        I("s_cmp_lg_u32 s34, 0")
        I("s_cbranch_scc1 L_fus_nozero")
        I("v_mov_b32 v70, 0")
        I("v_mov_b32 v71, 0")
        I("v_mov_b32 v72, 0")
        I("v_mov_b32 v73, 0")
        I("v_lshlrev_b32 v12, 4, v0")
        I(f"s_mov_b32 s39, {WS_SYNC}")
        I(f"buffer_store_dwordx4 v[70:73], v12, {srd(SWS)}, s39 offen sc1")
        self.L("L_fus_nozero")
        I("s_waitcnt vmcnt(0)")
        I("s_barrier")
        I(f"s_cmp_lg_u32 {S_W}, 0")
        I("s_cbranch_scc1 L_end")
        I("v_mov_b32 v12, 0")
        I("v_mov_b32 v13, 1")
        I("s_mov_b64 exec, 1")
        I(f"buffer_atomic_add v13, v12, {srd(SDBG)}, 0 offen sc1")
        I("s_branch L_end")

    VXO = 2
    VA = 3
    VB = 6
    VTR = 9
    VHR = 10
    VXR = 12
    VHW = 15
    VXRAW = 16
    VF = 28
    VT = 52
    AQ, AK, AV, AO = 64, 88, 112, 136
    VP = 160
    AH, AW, AOF = 0, 48, 72

    def s1_soff(self, s):
        m, ks = divmod(s, 6)
        return ks * 32 * 1152 + m * 384 if m < 3 else ks * 32 * 384

    def s1_dma(self, s):
        m = s // 6
        srd_ = srd(SWQ) if m < 3 else srd(SWO)
        base = self.VA if m < 3 else self.VB
        out = [(f"s_add_u32 m0, {S_RING}, {(s % R1) * 3072}", None), (f"s_mov_b32 {S_SOFF}, {self.s1_soff(s)}", None)]
        for ii in range(3):
            out.append((f"buffer_load_dwordx4 {v(base+ii)}, {srd_}, {S_SOFF} offen offset:{ii*1024} lds", f"w{s}_{ii}"))
        return out

    def emit_vm(self, lst):
        for t, tag in lst:
            self.I(t, tag=tag)
            if tag: self.vmq.append(tag)
    def vm(self, text, tag):
        self.I(text, tag=tag); self.vmq.append(tag)
    def wait_vm(self, tag):
        idx = max(i for i, t in enumerate(self.vmq) if t == tag)
        n = len(self.vmq) - 1 - idx
        self.I(f"s_waitcnt vmcnt({n})")

    def s1(self):
        I = self.I
        VT = self.VT
        self.vmq = []
        self.mk_srd(SX, 0, X_BYTES)
        self.mk_srd(SWQ, 8, WQKV_BYTES)
        self.mk_srd(SWO, 16, WO_BYTES)
        self.mk_srd(SOUT, 40, X_BYTES)
        self.mk_srd(SDBG, 48, 256)
        self.mk_srd(SWS, 56, WS_SIZE)
        I("v_lshrrev_b32 v52, 6, v0")
        I("v_and_b32 v1, 63, v0")
        I(f"s_sub_u32 {S_J}, s3, 9")
        I(f"v_readfirstlane_b32 {S_W}, v52")
        I(f"s_lshl_b32 s31, {S_J}, 3")
        I(f"s_add_u32 s31, s31, {S_X8}")
        I("s_lshl_b32 s31, s31, 2")
        I(f"s_add_u32 s31, s31, {S_W}")
        I("s_mul_i32 s34, s31, 384")
        I(f"s_cmp_ge_u32 s31, {N}")
        I(f"s_cselect_b32 s34, {hx(OOB)}, s34")
        I("v_lshrrev_b32 v52, 3, v1")
        I("v_and_b32 v53, 7, v1")
        I(f"v_mul_u32_u24 v54, {XFRAME}, v52")
        I("v_lshl_add_u32 v54, v53, 4, v54")
        I(f"v_add_u32 {v(self.VXO)}, s34, v54")
        I(f"s_mov_b32 {S_1152}, 1152")
        I(f"s_mov_b32 {S_384}, 384")
        I(f"s_mul_i32 s35, {S_W}, 96")
        for ii in range(3):
            I(f"v_add_u32 v55, {64*ii}, v1" if ii else "v_mov_b32 v55, v1")
            I("v_mul_u32_u24 v56, 171, v55")
            I("v_lshrrev_b32 v56, 10, v56")
            I("v_mul_u32_u24 v57, 6, v56")
            I("v_sub_u32 v55, v55, v57")
            I("v_and_b32 v57, 12, v56")
            I("v_lshlrev_b32 v57, 1, v57")
            I("v_lshrrev_b32 v58, 2, v56")
            I("v_and_b32 v58, 4, v58")
            I("v_and_b32 v56, 3, v56")
            I("v_or3_b32 v56, v56, v57, v58")
            I(f"s_sub_u32 s36, s35, {1024*ii}" if ii else "s_mov_b32 s36, s35")
            I("v_lshlrev_b32 v55, 4, v55")
            I("v_add_u32 v55, s36, v55")
            I(f"v_mad_u32_u24 {v(self.VA+ii)}, v56, {S_1152}, v55")
            I(f"v_mad_u32_u24 {v(self.VB+ii)}, v56, {S_384}, v55")
        I(f"s_mul_i32 {S_RING}, {S_W}, {R1*3072}")
        I("s_waitcnt lgkmcnt(0)")
        for ii in range(3):
            self.vm(f"buffer_load_dwordx4 {v(self.VXRAW+4*ii,4)}, {v(self.VXO)}, {srd(SX)}, 0 offen offset:{128*ii}", f"x{ii}")
        for s in range(3): self.emit_vm(self.s1_dma(s))
        I("v_lshrrev_b32 v54, 2, v1")
        I("v_mul_u32_u24 v54, 96, v54")
        I("v_and_b32 v55, 3, v1")
        I("v_lshl_add_u32 v54, v55, 3, v54")
        I(f"v_add_u32 {v(self.VTR)}, {S_RING}, v54")
        I(f"s_lshl_b32 s31, {S_W}, 3")
        I("v_add_u32 v54, s31, v52")
        I("v_xor_b32 v54, v54, v53")
        I("v_lshlrev_b32 v54, 4, v54")
        I("v_lshl_add_u32 v54, v53, 9, v54")
        I(f"v_add_u32 {v(self.VHW)}, {L_H}, v54")
        I("v_and_b32 v52, 15, v1")
        I("v_lshrrev_b32 v53, 4, v1")
        I("v_xor_b32 v54, v52, v53")
        I("v_xor_b32 v55, 4, v54")
        I("v_lshlrev_b32 v56, 9, v53")
        I(f"v_add_u32 v56, {L_H}, v56")
        I(f"v_lshl_add_u32 {v(self.VHR)}, v54, 4, v56")
        I(f"v_lshl_add_u32 {v(self.VHR+1)}, v55, 4, v56")
        I(f"s_mul_i32 s31, {S_W}, 6")
        I("v_lshrrev_b32 v54, 1, v53")
        I("v_add_u32 v54, s31, v54")
        I("v_and_b32 v55, 1, v53")
        I("v_lshlrev_b32 v55, 3, v55")
        I(f"v_add_u32 v55, {L_X}, v55")
        for ft in range(3):
            I(f"v_add_u32 v56, {2*ft}, v54")
            I("v_and_b32 v57, 7, v56")
            I("v_xor_b32 v57, v57, v52")
            I("v_lshlrev_b32 v57, 4, v57")
            I("v_lshl_add_u32 v57, v56, 9, v57")
            I(f"v_add_u32 {v(self.VXR+ft)}, v57, v55")
        I("v_lshrrev_b32 v54, 1, v53")
        I("v_lshrrev_b32 v55, 3, v52")
        I(f"v_cmp_eq_u32 {S_MASKP}, v54, v55")

        pend = []
        for s in range(3, R1): pend += self.s1_dma(s)
        ln = []
        X, F = self.VXRAW, self.VF
        for k in range(12):
            ln.append(f"v_lshlrev_b32 {v(F+2*k)}, 16, {v(X+k)}")
            ln.append(f"v_and_b32 {v(F+2*k+1)}, 0xffff0000, {v(X+k)}")
        ln.append(f"v_pk_add_f32 v[52:53], {v(F,2)}, {v(F+2,2)}")
        ln.append(f"v_pk_add_f32 v[54:55], {v(F+4,2)}, {v(F+6,2)}")
        for k in range(4, 12, 2):
            ln.append(f"v_pk_add_f32 v[52:53], v[52:53], {v(F+2*k,2)}")
            ln.append(f"v_pk_add_f32 v[54:55], v[54:55], {v(F+2*k+2,2)}")
        ln.append("v_pk_add_f32 v[52:53], v[52:53], v[54:55]")
        ln.append("v_add_f32 v52, v52, v53")
        def dpp_red(r):
            return ["s_nop 1", f"v_add_f32_dpp {v(r)}, {v(r)}, {v(r)} quad_perm:[1,0,3,2] row_mask:0xf bank_mask:0xf",
                    "s_nop 1", f"v_add_f32_dpp {v(r)}, {v(r)}, {v(r)} quad_perm:[2,3,0,1] row_mask:0xf bank_mask:0xf",
                    "s_nop 1", f"v_add_f32_dpp {v(r)}, {v(r)}, {v(r)} row_half_mirror row_mask:0xf bank_mask:0xf"]
        ln += dpp_red(52)
        ln.append(f"s_mov_b32 {S_C0}, {hx(f2u(1.0/192))}")
        ln.append(f"v_mul_f32 v52, {S_C0}, v52")
        ln.append("v_mov_b32 v53, v52")
        for k in range(12):
            ln.append(f"v_pk_add_f32 {v(F+2*k,2)}, {v(F+2*k,2)}, v[52:53] neg_lo:[0,1] neg_hi:[0,1]")
        ln.append(f"v_pk_mul_f32 v[54:55], {v(F,2)}, {v(F,2)}")
        ln.append(f"v_pk_mul_f32 v[56:57], {v(F+2,2)}, {v(F+2,2)}")
        for k in range(2, 12, 2):
            ln.append(f"v_pk_fma_f32 v[54:55], {v(F+2*k,2)}, {v(F+2*k,2)}, v[54:55]")
            ln.append(f"v_pk_fma_f32 v[56:57], {v(F+2*k+2,2)}, {v(F+2*k+2,2)}, v[56:57]")
        ln.append("v_pk_add_f32 v[54:55], v[54:55], v[56:57]")
        ln.append("v_add_f32 v54, v54, v55")
        ln += dpp_red(54)
        ln.append(f"s_mov_b32 {S_C1}, {hx(f2u(1e-5))}")
        ln.append(f"v_mov_b32 v55, {S_C1}")
        ln.append(f"v_fmac_f32 v55, {S_C0}, v54")
        ln.append("v_rsq_f32 v54, v55")
        ln.append("s_nop 0")
        ln.append("v_mov_b32 v55, v54")
        for k in range(12):
            ln.append(f"v_pk_mul_f32 {v(F+2*k,2)}, {v(F+2*k,2)}, v[54:55]")
        for k in range(12):
            ln.append(f"v_cvt_pk_bf16_f32 {v(F+k)}, {v(F+2*k)}, {v(F+2*k+1)}")
        self.stamp(1)
        self.wait_vm("x2")
        self.stamp(2)
        every = max(1, len(ln) // (len(pend) + 1))
        pi = 0
        for n, t in enumerate(ln):
            I(t)
            if n % every == every - 1 and pi < len(pend):
                tt, tag = pend[pi]; pi += 1
                self.emit_vm([(tt, tag)])
                while tag is None and pi < len(pend):
                    tt, tag = pend[pi]; pi += 1
                    self.emit_vm([(tt, tag)])
        self.emit_vm(pend[pi:])
        for ii in range(3):
            I(f"ds_write_b128 {v(self.VHW)}, {v(F+4*ii,4)} offset:{ii*4096}")
            I(f"ds_write_b128 {v(self.VHW)}, {v(X+4*ii,4)} offset:{ii*4096 + (L_X-L_H)}")
        I("s_waitcnt lgkmcnt(0)")
        I("s_barrier")
        for th in range(2):
            for ks in range(6):
                I(f"ds_read_b128 {a(self.AH+(th*6+ks)*4,4)}, {v(self.VHR+(ks&1))} offset:{ks*2048+th*256}")
        for ft in range(3):
            for th in range(2):
                I(f"ds_read_b64 {v(160+(ft*2+th)*2,2)}, {v(self.VXR+ft)} offset:{th*256}")
        I("s_waitcnt lgkmcnt(0)")
        for ft in range(3):
            for th in range(2):
                src = 160 + (ft*2+th)*2; d = self.AO + (ft*2+th)*4
                I(f"v_lshlrev_b32 {v(d)}, 16, {v(src)}")
                I(f"v_and_b32 {v(d+1)}, 0xffff0000, {v(src)}")
                I(f"v_lshlrev_b32 {v(d+2)}, 16, {v(src+1)}")
                I(f"v_and_b32 {v(d+3)}, 0xffff0000, {v(src+1)}")

        self.stamp(3)
        def trreads(s):
            buf = self.AW + (s & 1) * 12
            for ft in range(3):
                for e2 in range(2):
                    I(f"ds_read_b64_tr_b16 {a(buf+ft*4+e2*2,2)}, {v(self.VTR)} offset:{(s%R1)*3072 + e2*1536 + ft*32}",
                      needs=[f"w{s}_{ii}" for ii in range(3)])
        def mfmas(s):
            m, ks = divmod(s, 6)
            buf = self.AW + (s & 1) * 12
            for ft in range(3):
                for th in range(2):
                    W = a(buf+ft*4, 4)
                    if m == 0 or m == 1:
                        D = v((self.AQ if m == 0 else self.AK) + (ft*2+th)*4, 4)
                        I(f"v_mfma_f32_16x16x32_bf16 {D}, {W}, {a(self.AH+(th*6+ks)*4,4)}, {'0' if ks == 0 else D}")
                    elif m == 2:
                        D = v(self.AV + (ft*2+th)*4, 4)
                        I(f"v_mfma_f32_16x16x32_bf16 {D}, {a(self.AH+(th*6+ks)*4,4)}, {W}, {'0' if ks == 0 else D}")
                    else:
                        D = v(self.AO + (ft*2+th)*4, 4)
                        I(f"v_mfma_f32_16x16x32_bf16 {D}, {W}, {a(self.AOF+(th*6+ks)*4,4)}, {D}")

        def s_partial():
            self.nop(8)
            for base, dst in ((self.AQ, 160), (self.AK, 172)):
                for ft in range(3):
                    for th in range(2):
                        src = base + (ft*2+th)*4; d = dst + th*6 + ft*2
                        I(f"v_cvt_pk_bf16_f32 {v(d)}, {v(src)}, {v(src+1)}")
                        I(f"v_cvt_pk_bf16_f32 {v(d+1)}, {v(src+2)}, {v(src+3)}")
            self.nop(2)
            for th in range(2):
                I(f"v_mfma_f32_16x16x32_bf16 {v(184+4*th,4)}, {v(172+th*6,4)}, {v(160+th*6,4)}, 0")
            self.nop(4)
            for th in range(2):
                I(f"v_mfma_f32_16x16x16_bf16 {v(192+4*th,4)}, {v(172+th*6+4,2)}, {v(160+th*6+4,2)}, 0")
            I(f"v_lshlrev_b32 v52, 4, v1")
            I(f"s_lshl_b32 s31, {S_W}, 11")
            I(f"s_add_u32 s31, s31, {L_SX}")
            I(f"v_add_u32 v52, s31, v52")
            self.nop(5)
            for th in range(2):
                I(f"v_pk_add_f32 {v(184+4*th,2)}, {v(184+4*th,2)}, {v(192+4*th,2)}")
                I(f"v_pk_add_f32 {v(186+4*th,2)}, {v(186+4*th,2)}, {v(194+4*th,2)}")
            for th in range(2):
                I(f"ds_write_b128 v52, {v(184+4*th,4)} offset:{th*1024}")

        def softmax_t():
            I("s_waitcnt lgkmcnt(0)")
            I("s_barrier")
            I(f"v_lshlrev_b32 v52, 4, v1")
            I(f"v_add_u32 v52, {L_SX}, v52")
            for w in range(4):
                for th in range(2):
                    I(f"ds_read_b128 {v(160+(w*2+th)*4,4)}, v52 offset:{w*2048+th*1024}")
            I("s_waitcnt lgkmcnt(0)")
            I(f"s_mov_b32 {S_C2}, {hx(f2u(SCALE_L2E))}")
            for th in range(2):
                for h in range(2):
                    b = 160 + th*4 + 2*h
                    I(f"v_pk_add_f32 {v(b,2)}, {v(b,2)}, {v(b+8,2)}")
                    I(f"v_pk_add_f32 {v(b+16,2)}, {v(b+16,2)}, {v(b+24,2)}")
            for th in range(2):
                for h in range(2):
                    b = 160 + th*4 + 2*h
                    I(f"v_pk_add_f32 {v(b,2)}, {v(b,2)}, {v(b+16,2)}")
            for th in range(2):
                b = 160 + th*4
                I(f"v_max3_f32 {v(168+th)}, {v(b)}, {v(b+1)}, {v(b+2)}")
            for th in range(2):
                I(f"v_max_f32 {v(168+th)}, {v(168+th)}, {v(160+th*4+3)}")
            for th in range(2): I(f"v_mov_b32 {v(170+th)}, {v(168+th)}")
            self.nop(1)
            for th in range(2): I(f"v_permlane16_swap_b32 {v(168+th)}, {v(170+th)}")
            for th in range(2): I(f"v_max_f32 {v(168+th)}, {v(168+th)}, {v(170+th)}")
            for th in range(2):
                for r in range(4): I(f"v_sub_f32 {v(160+th*4+r)}, {v(160+th*4+r)}, {v(168+th)}")
            for th in range(2):
                for r in range(4): I(f"v_mul_f32 {v(160+th*4+r)}, {S_C2}, {v(160+th*4+r)}")
            for th in range(2):
                for r in range(4): I(f"v_exp_f32 {v(160+th*4+r)}, {v(160+th*4+r)}")
            I("s_nop 0")
            for th in range(2):
                b = 160 + th*4
                I(f"v_add_f32 {v(168+th)}, {v(b)}, {v(b+1)}")
                I(f"v_add_f32 {v(170+th)}, {v(b+2)}, {v(b+3)}")
            for th in range(2): I(f"v_add_f32 {v(168+th)}, {v(168+th)}, {v(170+th)}")
            for th in range(2): I(f"v_mov_b32 {v(170+th)}, {v(168+th)}")
            self.nop(1)
            for th in range(2): I(f"v_permlane16_swap_b32 {v(168+th)}, {v(170+th)}")
            for th in range(2): I(f"v_add_f32 {v(168+th)}, {v(168+th)}, {v(170+th)}")
            for th in range(2): I(f"v_rcp_f32 {v(168+th)}, {v(168+th)}")
            I("s_nop 0")
            for th in range(2):
                for r in range(4): I(f"v_mul_f32 {v(160+th*4+r)}, {v(160+th*4+r)}, {v(168+th)}")
            for th in range(2):
                b = 160 + th*4
                I(f"v_cvt_pk_bf16_f32 {v(200+2*th)}, {v(b)}, {v(b+1)}")
                I(f"v_cvt_pk_bf16_f32 {v(201+2*th)}, {v(b+2)}, {v(b+3)}")
            for r in range(4):
                I(f"v_cndmask_b32 {v(200+r)}, 0, {v(200+r)}, {S_MASKP}")

        def pv_t():
            self.nop(8)
            for ft in range(3):
                for th in range(2):
                    src = self.AV + (ft*2+th)*4; d = 160 + (ft*2+th)*2
                    I(f"v_cvt_pk_bf16_f32 {v(d)}, {v(src)}, {v(src+1)}")
                    I(f"v_cvt_pk_bf16_f32 {v(d+1)}, {v(src+2)}, {v(src+3)}")
            self.nop(1)
            for ft in range(3):
                for th in range(2):
                    I(f"v_mfma_f32_16x16x16_bf16 {v(self.AV+(ft*2+th)*4,4)}, {v(160+(ft*2+th)*2,2)}, {v(200+2*th,2)}, 0")
            self.nop(4)
            for ft in range(3):
                for th in range(2):
                    src = self.AV + (ft*2+th)*4; d = 172 + (ft*2+th)*2
                    I(f"v_cvt_pk_bf16_f32 {v(d)}, {v(src)}, {v(src+1)}")
                    I(f"v_cvt_pk_bf16_f32 {v(d+1)}, {v(src+2)}, {v(src+3)}")
                    I(f"ds_write_b64 {v(self.VXR+ft)}, {v(d,2)} offset:{(L_O-L_X)+th*256}")
            I("s_waitcnt lgkmcnt(0)")
            I("s_barrier")
            for th in range(2):
                for ks in range(6):
                    I(f"ds_read_b128 {a(self.AOF+(th*6+ks)*4,4)}, {v(self.VHR+(ks&1))} offset:{(L_O-L_H)+ks*2048+th*256}")

        for s in range(25):
            if s < 24:
                self.wait_vm(f"w{s}_2")
                trreads(s)
            if s >= 1 and s - 1 + R1 < 24:
                self.emit_vm(self.s1_dma(s - 1 + R1))
            if s >= 1: mfmas(s - 1)
            if s in (6, 12, 18): self.stamp({6: 4, 12: 5, 18: 6}[s])
            if s == 12: s_partial()
            if s == 14: softmax_t()
            if s == 18: pv_t()
            if s < 24: I("s_waitcnt lgkmcnt(0)")
        self.stamp(7)
        self.ln2_store()
        self.stamp(8)

    def ln2_store(self):
        I = self.I
        AO = self.AO
        I("v_mov_b32 v52, 0")
        self.vm(f"buffer_load_dword v53, v52, {srd(SDBG)}, 0 offen sc1", "fus")
        I("v_and_b32 v54, 15, v1")
        I("v_lshrrev_b32 v55, 4, v1")
        I("v_and_b32 v56, 1, v55")
        I("v_lshl_add_u32 v56, v56, 4, v54")
        I("v_and_b32 v57, 7, v56")
        I("v_lshrrev_b32 v56, 3, v56")
        I(f"v_mul_u32_u24 v57, {FRAMEB}, v57")
        I("v_lshl_add_u32 v57, v56, 4, v57")
        I(f"s_lshr_b32 s31, {S_X8}, 1")
        I("s_and_b32 s31, s31, 1")
        I("v_lshrrev_b32 v55, 1, v55")
        I("v_xor_b32 v55, s31, v55")
        I("v_lshl_add_u32 v58, v55, 6, v57")
        for ft in range(3):
            st = (S_ST0, S_ST1, S_ST2)[ft]
            I(f"s_mul_i32 s31, {S_W}, 3")
            I(f"s_add_u32 s31, s31, {ft}")
            I("s_and_b32 s34, s31, 1")
            I(f"s_xor_b32 s34, s34, {S_X8}")
            I("s_lshl_b32 s34, s34, 7")
            I("s_lshl_b32 s31, s31, 10")
            I("s_add_u32 s31, s31, s34")
            I(f"s_mul_i32 s34, {S_J}, {TILEB}")
            I(f"s_add_u32 {st}, s31, s34")
        for th in range(2):
            I(f"v_pk_add_f32 {v(160+2*th,2)}, {v(AO+th*4,2)}, {v(AO+th*4+2,2)}")
        for ft in (1, 2):
            for th in range(2):
                b = AO + (ft*2+th)*4
                I(f"v_pk_add_f32 {v(160+2*th,2)}, {v(160+2*th,2)}, {v(b,2)}")
                I(f"v_pk_add_f32 {v(160+2*th,2)}, {v(160+2*th,2)}, {v(b+2,2)}")
        for th in range(2): I(f"v_add_f32 {v(160+2*th)}, {v(160+2*th)}, {v(161+2*th)}")
        self.xg_reduce_add([160, 162], [161, 163])
        I(f"s_mov_b32 {S_C0}, {hx(f2u(1.0/48))}")
        for th in range(2): I(f"v_mul_f32 {v(160+2*th)}, {S_C0}, {v(160+2*th)}")
        for th in range(2): I(f"v_mov_b32 {v(161+2*th)}, {v(160+2*th)}")
        for ft in range(3):
            for th in range(2):
                b = AO + (ft*2+th)*4; d = 164 + (ft*2+th)*4
                I(f"v_pk_add_f32 {v(d,2)}, {v(b,2)}, {v(160+2*th,2)} neg_lo:[0,1] neg_hi:[0,1]")
                I(f"v_pk_add_f32 {v(d+2,2)}, {v(b+2,2)}, {v(160+2*th,2)} neg_lo:[0,1] neg_hi:[0,1]")
        for th in range(2):
            d = 164 + th*4
            I(f"v_pk_mul_f32 {v(188+2*th,2)}, {v(d,2)}, {v(d,2)}")
        for ft in range(3):
            for th in range(2):
                d = 164 + (ft*2+th)*4
                if ft: I(f"v_pk_fma_f32 {v(188+2*th,2)}, {v(d,2)}, {v(d,2)}, {v(188+2*th,2)}")
                I(f"v_pk_fma_f32 {v(188+2*th,2)}, {v(d+2,2)}, {v(d+2,2)}, {v(188+2*th,2)}")
        for th in range(2): I(f"v_add_f32 {v(188+2*th)}, {v(188+2*th)}, {v(189+2*th)}")
        self.xg_reduce_add([188, 190], [189, 191])
        for th in range(2): I(f"v_mov_b32 {v(161+2*th)}, {v(188+2*th)}")
        I("v_lshlrev_b32 v52, 3, v54")
        I(f"s_lshl_b32 s31, {S_W}, 8")
        I(f"s_add_u32 s31, s31, {L_ST}")
        I("v_add_u32 v59, s31, v52")
        for th in range(2): I(f"ds_write_b64 v59, {v(160+2*th,2)} offset:{th*128}")
        I(f"v_add_u32 v59, {L_ST}, v52")
        I("s_waitcnt lgkmcnt(0)")
        I("s_barrier")
        for w in range(4):
            for th in range(2):
                I(f"ds_read_b64 {v(164+(th*4+w)*2,2)}, v59 offset:{w*256+th*128}")
        I("s_waitcnt lgkmcnt(0)")
        for th in range(2):
            b = 164 + th*8
            I(f"v_add_f32 {v(180+th)}, {v(b)}, {v(b+2)}")
            I(f"v_add_f32 {v(182+th)}, {v(b+4)}, {v(b+6)}")
        for th in range(2): I(f"v_add_f32 {v(180+th)}, {v(180+th)}, {v(182+th)}")
        for th in range(2): I(f"v_mul_f32 {v(180+th)}, 0.25, {v(180+th)}")
        for th in range(2):
            b = 164 + th*8
            I(f"v_add_f32 {v(182+th)}, {v(b+1)}, {v(b+3)}")
            I(f"v_add_f32 {v(184+th)}, {v(b+5)}, {v(b+7)}")
        for th in range(2): I(f"v_add_f32 {v(182+th)}, {v(182+th)}, {v(184+th)}")
        for th in range(2):
            b = 164 + th*8
            for w in range(4): I(f"v_sub_f32 {v(b+2*w)}, {v(b+2*w)}, {v(180+th)}")
        for th in range(2):
            b = 164 + th*8
            I(f"v_mul_f32 {v(184+th)}, {v(b)}, {v(b)}")
            for w in range(1, 4): I(f"v_fmac_f32 {v(184+th)}, {v(b+2*w)}, {v(b+2*w)}")
        I(f"s_mov_b32 {S_C0}, {hx(f2u(48.0))}")
        I(f"s_mov_b32 {S_C1}, {hx(f2u(1.0/192))}")
        I(f"s_mov_b32 {S_C2}, {hx(f2u(1e-5))}")
        for th in range(2): I(f"v_fmac_f32 {v(182+th)}, {S_C0}, {v(184+th)}")
        for th in range(2): I(f"v_mov_b32 {v(184+th)}, {S_C2}")
        for th in range(2): I(f"v_fmac_f32 {v(184+th)}, {S_C1}, {v(182+th)}")
        for th in range(2): I(f"v_rsq_f32 {v(184+th)}, {v(184+th)}")
        for th in range(2):
            I(f"v_mov_b32 {v(186+2*th)}, {v(180+th)}")
            I(f"v_mov_b32 {v(187+2*th)}, {v(180+th)}")
        for th in range(2):
            I(f"v_mov_b32 {v(190+2*th)}, {v(184+th)}")
            I(f"v_mov_b32 {v(191+2*th)}, {v(184+th)}")
        for ft in range(3):
            for th in range(2):
                b = AO + (ft*2+th)*4; d = 196 + ft*4 + th*2
                I(f"v_cvt_pk_bf16_f32 {v(d)}, {v(b)}, {v(b+1)}")
                I(f"v_cvt_pk_bf16_f32 {v(d+1)}, {v(b+2)}, {v(b+3)}")
        for ft in range(3):
            for th in range(2):
                b = AO + (ft*2+th)*4
                I(f"v_pk_add_f32 {v(b,2)}, {v(b,2)}, {v(186+2*th,2)} neg_lo:[0,1] neg_hi:[0,1]")
                I(f"v_pk_add_f32 {v(b+2,2)}, {v(b+2,2)}, {v(186+2*th,2)} neg_lo:[0,1] neg_hi:[0,1]")
                I(f"v_pk_mul_f32 {v(b,2)}, {v(b,2)}, {v(190+2*th,2)}")
                I(f"v_pk_mul_f32 {v(b+2,2)}, {v(b+2,2)}, {v(190+2*th,2)}")
        for ft in range(3):
            for th in range(2):
                b = AO + (ft*2+th)*4; d = 208 + ft*4 + th*2
                I(f"v_cvt_pk_bf16_f32 {v(d)}, {v(b)}, {v(b+1)}")
                I(f"v_cvt_pk_bf16_f32 {v(d+1)}, {v(b+2)}, {v(b+3)}")
        self.nop(1)
        for base in (208, 196):
            for ft in range(3):
                d = base + ft*4
                I(f"v_permlane16_swap_b32 {v(d)}, {v(d+2)}")
                I(f"v_permlane16_swap_b32 {v(d+1)}, {v(d+3)}")
        for ft in range(3):
            st = (S_ST0, S_ST1, S_ST2)[ft]
            self.vm(f"buffer_store_dwordx4 {v(208+ft*4,4)}, v58, {srd(SWS)}, {st} offen sc1", "st")
        for ft in range(3):
            st = (S_ST0, S_ST1, S_ST2)[ft]
            I(f"s_add_u32 {st}, {st}, {WS_X1}")
            self.vm(f"buffer_store_dwordx4 {v(196+ft*4,4)}, v58, {srd(SWS)}, {st} offen sc1", "st")

    AQP, AKF, AVF, AWV, AM = 0, 48, 96, 144, 48
    def handoff(self):
        I = self.I
        self.wait_vm("fus")
        I(f"s_mov_b32 s31, {SPIN_MAX}")
        self.L("L_fpoll")
        I("v_cmp_le_u32 vcc, 72, v53")
        I("s_cbranch_vccnz L_fdone")
        I(f"buffer_load_dword v53, v52, {srd(SDBG)}, 0 offen sc1")
        I("s_sub_u32 s31, s31, 1")
        I("s_waitcnt vmcnt(0)")
        I("s_cmp_lg_u32 s31, 0")
        I("s_cbranch_scc1 L_fpoll", pat="fspin")
        self.L("L_fdone")
        I("v_lshlrev_b32 v2, 4, v1")
        I(f"s_mul_i32 s31, {S_W}, 18432")
        n = 0
        for base, reg in ((WS_WM, self.AM), (WS_WVO, self.AWV)):
            for q in range(18):
                if q % 4 == 0: I(f"s_add_u32 {S_SOFF}, s31, {base + q*1024}")
                I(f"buffer_load_dwordx4 {a(reg+4*q,4)}, v2, {srd(SWS)}, {S_SOFF} offen offset:{(q%4)*1024} sc1", tag="wf")
                n += 1
        I(f"s_waitcnt vmcnt({n})")
        self.stamp(9)
        I("s_barrier")
        I(f"s_cmp_lg_u32 {S_W}, 0")
        I("s_cbranch_scc1 L_hwait")
        I("v_mov_b32 v54, 1")
        I(f"s_lshl_b32 s31, {S_J}, 7")
        I(f"s_add_u32 s31, s31, {WS_SYNC}")
        I("v_mov_b32 v55, s31")
        I("s_mov_b64 exec, 1")
        I(f"buffer_atomic_add v54, v55, {srd(SWS)}, 0 offen sc1")
        I("s_mov_b64 exec, -1")
        I("v_min_u32 v55, 22, v1")
        I("v_lshlrev_b32 v55, 7, v55")
        I(f"v_add_u32 v55, {WS_SYNC}, v55")
        I(f"s_mov_b32 s31, {SPIN_MAX}")
        self.L("L_hpoll")
        I(f"buffer_load_dword v56, v55, {srd(SWS)}, 0 offen sc1")
        I("s_sub_u32 s31, s31, 1")
        I("s_cmp_eq_u32 s31, 0")
        I("s_cbranch_scc1 L_hwait", pat="hspin")
        I("s_waitcnt vmcnt(0)")
        I("v_cmp_gt_u32 vcc, 8, v56")
        I("s_cbranch_vccnz L_hpoll")
        self.L("L_hwait")
        I("s_barrier")
        self.stamp(10)

    VO, VS, VE, VNM, VPB = 128, 96, 112, 224, 240
    VD0, VD1, VD2 = 2, 3, 4
    VK0, VK1, VV0, VV1 = 5, 6, 7, 8
    VKA, VKB, VVA, VVB = 9, 10, 11, 12
    VL, VTS, VTS2 = 13, 14, 15
    VX1 = 16
    VHR2 = 28
    VQW = 30
    VOUT = 33

    def dma_tile(self, slot_sgpr, soff_sgpr, tagp):
        out = []
        for part in range(3):
            out.append(f"s_add_u32 m0, {slot_sgpr}, {part*4096}" if part else f"s_mov_b32 m0, {slot_sgpr}")
            for q in range(4):
                out.append((f"buffer_load_dwordx4 {v(self.VD0+part)}, {srd(SWS)}, {soff_sgpr} offen offset:{q*1024} sc1 lds", f"{tagp}{part*4+q}"))
        return out

    def s2(self):
        I = self.I
        VO, VS, VE, VNM, VPB = self.VO, self.VS, self.VE, self.VNM, self.VPB
        I(f"v_lshlrev_b32 {v(self.VD0)}, 4, v1")
        I(f"v_add_u32 {v(self.VD1)}, 4096, {v(self.VD0)}")
        I(f"v_add_u32 {v(self.VD2)}, 8192, {v(self.VD0)}")
        I(f"s_mul_i32 {S_FBASE}, {S_X8}, {FRAMEB}")
        I(f"s_mul_i32 {S_RING}, {S_W}, 36864")
        I(f"s_mul_i32 s31, {S_J}, {TILEB}")
        I(f"s_add_u32 s31, s31, {S_FBASE}")
        I(f"s_mul_i32 s34, {S_W}, 3072")
        I("s_add_u32 s35, s31, s34")
        I("s_mov_b32 m0, s34")
        I("s_nop 0")
        for q in range(3):
            I(f"buffer_load_dwordx4 {v(self.VD0)}, {srd(SWS)}, s35 offen offset:{q*1024} sc1 lds", tag="own")
        I(f"s_add_u32 {S_TILE}, {S_J}, {S_W}")
        I(f"s_cmp_ge_u32 {S_TILE}, 23")
        I("s_cselect_b32 s34, 23, 0")
        I(f"s_sub_u32 {S_TILE}, {S_TILE}, s34")
        I(f"s_cmp_eq_u32 {S_W}, 3")
        I(f"s_cselect_b32 {S_NTL}, 5, 6")
        I(f"s_cmp_eq_u32 {S_W}, 0")
        I("s_cbranch_scc1 L_s2_not0", pat="w0")
        I(f"s_mul_i32 {S_TOFF}, {S_TILE}, {TILEB}")
        I(f"s_add_u32 {S_TOFF}, {S_TOFF}, {S_FBASE}")
        self.emit_dma_tile(S_RING, S_TOFF, "t0")
        self.L("L_s2_not0")
        S_TN = "s57"
        self.next_tile(S_TN, S_TILE)
        I(f"s_mul_i32 {S_TOFF}, {S_TN}, {TILEB}")
        I(f"s_add_u32 {S_TOFF}, {S_TOFF}, {S_FBASE}")
        I(f"s_add_u32 s35, {S_RING}, 12288")
        self.emit_dma_tile("s35", S_TOFF, "tn")
        self.next_tile(S_TN, S_TN)
        I("v_and_b32 v52, 15, v1")
        I("v_lshrrev_b32 v53, 4, v1")
        I("v_and_b32 v54, 1, v53")
        I("v_lshrrev_b32 v55, 1, v53")
        I("v_xor_b32 v56, v54, v55")
        I("v_lshrrev_b32 v57, 3, v52")
        I("v_xor_b32 v56, v56, v57")
        I("v_lshlrev_b32 v56, 6, v56")
        I("v_lshrrev_b32 v57, 2, v52")
        I("v_xor_b32 v57, v57, v54")
        I("v_lshl_add_u32 v56, v57, 7, v56")
        I("v_lshl_add_u32 v56, v54, 10, v56")
        I("v_and_b32 v57, 3, v52")
        I("v_lshl_add_u32 v34, v57, 4, v56")
        I("v_xor_b32 v56, v55, v54")
        I("v_lshlrev_b32 v56, 7, v56")
        I("v_lshl_add_u32 v56, v54, 10, v56")
        I("v_bfe_u32 v57, v1, 2, 2")
        I("v_lshl_add_u32 v56, v57, 4, v56")
        I("v_and_b32 v57, 1, v1")
        I("v_lshl_add_u32 v56, v57, 3, v56")
        I("v_bfe_u32 v57, v1, 1, 1")
        I(f"v_lshl_add_u32 {v(self.VV0)}, v57, 6, v56")
        I("v_xor_b32 v57, 1, v57")
        I("v_lshl_add_u32 v56, v57, 6, v56")
        I(f"v_add_u32 {v(self.VV1)}, 256, v56")
        I("v_and_b32 v54, 31, v1")
        I("v_lshrrev_b32 v55, 5, v1")
        I("v_lshrrev_b32 v56, 2, v54")
        I("v_bfe_u32 v57, v54, 3, 1")
        I("v_xor_b32 v57, v57, v55")
        I("v_lshlrev_b32 v57, 6, v57")
        I("v_and_b32 v58, 3, v54")
        I("v_lshl_add_u32 v57, v58, 4, v57")
        I(f"v_lshl_add_u32 {v(self.VK0)}, v56, 7, v57")
        I("v_xor_b32 v56, 1, v56")
        I(f"v_lshl_add_u32 {v(self.VK1)}, v56, 7, v57")
        for k in range(2): I(f"v_add_u32 {v(self.VHR2+k)}, {(L_Q - L_H) & 0xffffffff}, {v(self.VHR+k)}")
        for k in range(3): I(f"v_add_u32 {v(self.VQW+k)}, {(L_Q - L_X) & 0xffffffff}, {v(self.VXR+k)}")
        I("v_lshlrev_b32 v57, 9, v55")
        I(f"v_add_u32 v57, {L_Q}, v57")
        for k in range(4):
            I(f"v_add_u32 v58, {2*k}, v55")
            I("v_xor_b32 v58, v58, v54")
            I(f"v_lshl_add_u32 {v(36+k)}, v58, 4, v57")
        I(f"v_cmp_lt_u32 {S_MASKH}, 31, v1")
        for r in range(96): I(f"v_mov_b32 {v(VO+r)}, 0")
        for r in range(16): I(f"v_mov_b32 {v(VE+r)}, 0")
        for r in range(16): I(f"v_mov_b32 {v(VNM+r)}, 0")
        for r in range(8): I(f"v_mov_b32 {v(VPB+r)}, 0")
        I(f"v_mov_b32 {v(self.VL)}, 0")
        for r in range(120, 144): I(f"v_accvgpr_write_b32 {a(r)}, 0")
        I("s_waitcnt vmcnt(12)")
        I("s_barrier")
        for th in range(2):
            for ks in range(6):
                I(f"ds_read_b128 {a((th*6+ks)*4,4)}, v34 offset:{ks*2048+th*512}", needs=["own"])
        I("s_waitcnt lgkmcnt(0)")
        for ks in range(6):
            for ft in range(3):
                for th in range(2):
                    D = v(64+(ft*2+th)*4, 4)
                    I(f"v_mfma_f32_16x16x32_bf16 {D}, {a(self.AM+(ft*6+ks)*4,4)}, {a((th*6+ks)*4,4)}, {'0' if ks == 0 else D}", needs=["wf"])
        self.nop(3)
        for ft in range(3):
            for th in range(2):
                b = 64+(ft*2+th)*4; d = 40 + (ft*2+th)*2
                I(f"v_cvt_pk_bf16_f32 {v(d)}, {v(b)}, {v(b+1)}")
                I(f"v_cvt_pk_bf16_f32 {v(d+1)}, {v(b+2)}, {v(b+3)}")
                I(f"ds_write_b64 {v(self.VQW+ft)}, {v(d,2)} offset:{th*256}")
        I("s_waitcnt lgkmcnt(0)")
        I("s_barrier")
        for jj in range(12):
            I(f"ds_read_b128 {a(self.AQP+4*jj,4)}, {v(36+(jj&3))} offset:{jj*1024}")
        I(f"v_add_u32 {v(self.VKA)}, {S_RING}, {v(self.VK0)}")
        I(f"v_add_u32 {v(self.VKB)}, {S_RING}, {v(self.VK1)}")
        for jj in range(12):
            I(f"ds_read_b128 {a(self.AKF+4*jj,4)}, {v(self.VKA+(jj&1))} offset:{jj*1024}", needs=["own"] + [f"t0{q}" for q in range(12)])
        I(f"s_mov_b32 {S_SLV}, {S_RING}")
        I(f"s_add_u32 {S_SLK}, {S_RING}, 12288")
        I(f"s_add_u32 {S_SLD}, {S_RING}, 24576")
        I(f"s_add_u32 s41, {S_RING}, 36864")
        I(f"s_mov_b32 {S_IT}, 0")
        I(f"s_mov_b32 {S_C0}, {hx(f2u(HI_THR))}")
        I(f"s_mov_b32 {S_C1}, {hx(f2u(LO_THR))}")
        I("s_waitcnt lgkmcnt(0)")

        AK, AV, AQ = self.AKF, self.AVF, self.AQP
        def A_phase(last_tail=False):
            pass
        self.stamp(11)
        self.L("L_loop")
        I(f"s_add_u32 s31, {S_IT}, 2")
        I(f"s_cmp_lt_u32 s31, {S_NTL}")
        I(f"s_mul_i32 {S_TOFF}, {S_TN}, {TILEB}")
        I(f"s_cselect_b32 s34, {S_FBASE}, {hx(OOB)}")
        I(f"s_add_u32 {S_TOFF}, {S_TOFF}, s34")
        I(f"v_add_u32 {v(self.VKA)}, {S_SLK}, {v(self.VK0)}")
        I(f"v_add_u32 {v(self.VKB)}, {S_SLK}, {v(self.VK1)}")
        dma = self.dma_tile(S_SLD, S_TOFF, "tn")
        dmaq = []
        for t in dma: dmaq.append(t)
        di = 0
        for jj in range(12):
            I(f"v_mfma_f32_32x32x16_bf16 {v(VS,16)}, {a(AK+4*jj,4)}, {a(AQ+4*jj,4)}, {v(VNM,16) if jj == 0 else v(VS,16)}")
            if jj == 0: I("s_waitcnt lgkmcnt(0)")
            if jj < 4:
                I(f"v_cvt_pk_bf16_f32 {v(VPB+4+jj)}, {v(VE+8+2*jj)}, {v(VE+9+2*jj)}")
            if jj % 3 == 0: I("s_waitcnt vmcnt(9)")
            if not isinstance(dmaq[di], tuple):
                I(dmaq[di]); di += 1
            I(f"ds_read_b128 {a(AK+4*jj,4)}, {v(self.VKA+(jj&1))} offset:{jj*1024}", needs=[f"tn{jj}"])
            I(dmaq[di][0], tag=dmaq[di][1]); di += 1
        I(f"v_add_u32 {v(self.VVA)}, {S_SLV}, {v(self.VV0)}")
        I(f"v_add_u32 {v(self.VVB)}, {S_SLV}, {v(self.VV1)}")
        exps = [f"v_exp_f32 {v(VE+r)}, {v(VS+r)}" for r in range(16)]
        adds = [f"v_add_f32 {v(self.VTS)}, {v(VE)}, {v(VE+1)}", f"v_add_f32 {v(self.VTS2)}, {v(VE+2)}, {v(VE+3)}"]
        for r in range(4, 16): adds.append(f"v_add_f32 {v((self.VTS, self.VTS2)[r & 1])}, {v((self.VTS, self.VTS2)[r & 1])}, {v(VE+r)}")
        adds.append(f"v_add_f32 {v(self.VTS)}, {v(self.VTS)}, {v(self.VTS2)}")
        ei = ai = 0
        for m in range(12):
            s_, ct = divmod(m, 6)
            I(f"v_mfma_f32_32x32x16_bf16 {v(VO+16*ct,16)}, {a(AV+(ct*2+s_)*4,4)}, {v(VPB+4*s_,4)}, {v(VO+16*ct,16)}")
            for e2 in range(2):
                I(f"ds_read_b64_tr_b16 {a(AV+(ct*2+s_)*4+2*e2,2)}, {v(self.VVA+e2)} offset:{ct*2048+s_*512}")
            if m == 1:
                I(f"s_cmp_eq_u32 {S_TILE}, 22")
                I("s_cbranch_scc0 L_nomask", pat="nomask")
                self.nop(4)
                for r in (13, 14, 15): I(f"v_mov_b32 {v(VS+r)}, 0xff800000")
                I(f"v_mov_b32 v52, 0xff800000")
                I(f"v_cndmask_b32 {v(VS+12)}, {v(VS+12)}, v52, {S_MASKH}")
                self.L("L_nomask")
            if m == 3: I("s_waitcnt lgkmcnt(8)")
            if m >= 3 and m <= 10:
                for _ in range(2):
                    I(exps[ei]); ei += 1
            if m >= 4:
                lim = min(len(adds), max(0, (ei - 2) - 1)) if m < 11 else len(adds)
                while ai < lim:
                    I(adds[ai]); ai += 1
            if 7 <= m <= 10:
                k = m - 7
                I(f"v_cvt_pk_bf16_f32 {v(VPB+k)}, {v(VE+2*k)}, {v(VE+2*k+1)}")
        assert ei == 16 and ai == len(adds)
        I(f"v_add_f32 v52, {v(self.VL)}, {v(self.VTS)}")
        I(f"v_cmp_nge_f32 vcc, {S_C0}, {v(self.VTS)}")
        I(f"v_cmp_gt_f32 s[64:65], {S_C1}, v52")
        I(f"s_mov_b32 {S_SLV}, {S_SLK}")
        I(f"s_mov_b32 {S_SLK}, {S_SLD}")
        I(f"s_add_u32 {S_SLD}, {S_SLD}, 12288")
        I(f"s_cmp_ge_u32 {S_SLD}, s41")
        I(f"s_cselect_b32 {S_SLD}, {S_RING}, {S_SLD}")
        self.next_tile(S_TILE, S_TILE)
        self.next_tile(S_TN, S_TN)
        I("s_or_b64 vcc, vcc, s[64:65]")
        I("s_cbranch_vccnz L_rare", pat="rare")
        self.L("L_back")
        I(f"v_add_f32 {v(self.VL)}, {v(self.VL)}, {v(self.VTS)}")
        I(f"s_add_u32 {S_IT}, {S_IT}, 1")
        I(f"s_cmp_lt_u32 {S_IT}, {S_NTL}")
        I("s_cbranch_scc1 L_loop", pat="loop")
        self.stamp(12)
        I("s_waitcnt lgkmcnt(0)")
        for k in range(4):
            I(f"v_cvt_pk_bf16_f32 {v(VPB+4+k)}, {v(VE+8+2*k)}, {v(VE+9+2*k)}")
        I("v_and_b32 v52, 15, v1")
        I("v_lshrrev_b32 v53, 4, v1")
        I("v_and_b32 v54, 1, v53")
        I("v_lshl_add_u32 v54, v54, 4, v52")
        I("v_lshrrev_b32 v55, 1, v53")
        I("v_lshrrev_b32 v56, 2, v54")
        I("v_bfe_u32 v57, v54, 3, 1")
        I("v_xor_b32 v57, v57, v55")
        I("v_lshlrev_b32 v57, 6, v57")
        I("v_and_b32 v58, 3, v54")
        I("v_lshl_add_u32 v57, v58, 4, v57")
        I("v_lshl_add_u32 v40, v56, 7, v57")
        I("v_xor_b32 v56, 1, v56")
        I("v_lshl_add_u32 v41, v56, 7, v57")
        I(f"s_mul_i32 s31, {S_J}, {TILEB}")
        I(f"s_add_u32 s31, s31, {S_FBASE}")
        I(f"s_add_u32 s31, s31, {WS_X1}")
        I(f"s_mul_i32 s34, {S_W}, 3072")
        I("s_add_u32 s31, s31, s34")
        I(f"s_and_b32 s35, {S_W}, 1")
        I("s_cmp_eq_u32 s35, 0")
        I("s_cselect_b64 s[64:65], -1, 0")
        I("v_cndmask_b32 v42, v41, v40, s[64:65]")
        I("v_cndmask_b32 v43, v40, v41, s[64:65]")
        for m in range(12):
            s_, ct = divmod(m, 6)
            I(f"v_mfma_f32_32x32x16_bf16 {v(VO+16*ct,16)}, {a(AV+(ct*2+s_)*4,4)}, {v(VPB+4*s_,4)}, {v(VO+16*ct,16)}")
            if m < 3:
                I(f"buffer_load_dwordx4 {v(self.VX1+4*m,4)}, {v(42+(m&1))}, {srd(SWS)}, s31 offen offset:{m*1024} sc1", tag="x1")
        I(f"s_mul_i32 s34, {S_X8}, {N}")
        I(f"s_lshl_b32 s35, {S_J}, 5")
        I("v_add_u32 v56, s35, v54")
        I("v_add_u32 v57, s34, v56")
        I("v_mul_u32_u24 v57, 384, v57")
        I(f"s_mul_i32 s35, {S_W}, 96")
        I("v_lshl_add_u32 v57, v55, 4, v57")
        I("v_add_u32 v57, s35, v57")
        I(f"v_mov_b32 v58, {hx(OOB)}")
        I(f"v_cmp_gt_u32 vcc, {N}, v56")
        I(f"v_mov_b32 v45, {v(self.VL)}")
        I(f"v_mov_b32 v46, {v(self.VL)}")
        I(f"v_cndmask_b32 {v(self.VOUT)}, v58, v57, vcc")
        I("s_nop 0")
        I("v_permlane32_swap_b32 v45, v46")
        I(f"v_sub_f32 v44, 0, {v(VNM)}")
        I("v_add_f32 v45, v45, v46")
        I("v_and_b32 v46, 31, v1")
        I("v_lshlrev_b32 v46, 3, v46")
        I(f"s_lshl_b32 s31, {S_W}, 8")
        I(f"s_add_u32 s31, s31, {L_ML}")
        I("v_add_u32 v47, s31, v46")
        I("ds_write_b64 v47, v[44:45]")
        I("s_waitcnt vmcnt(3)")
        I("v_lshlrev_b32 v48, 4, v1")
        I(f"v_add_u32 v48, {S_RING}, v48")
        for d in range(4):
            I(f"s_cmp_eq_u32 {S_W}, {d}")
            I(f"s_cbranch_scc1 L_own{d}", pat=f"own{d}")
            if d == 0: self.nop(2)
            for u in range(6):
                I(f"ds_write_b128 v48, {v(VO+24*d+4*u,4)} offset:{(d*6+u)*1024}")
            I(f"s_branch L_nxt{d}")
            self.L(f"L_own{d}")
            self.nop(10)
            for r in range(24): I(f"v_mov_b32 {v(64+r)}, {v(VO+24*d+r)}")
            self.L(f"L_nxt{d}")
        I("s_waitcnt lgkmcnt(0)")
        I("s_barrier")
        for k in range(1, 4):
            I(f"s_add_u32 s31, {S_W}, {k}")
            I("s_and_b32 s31, s31, 3")
            I("s_lshl_b32 s34, s31, 8")
            I(f"s_add_u32 s34, s34, {L_ML}")
            I(f"v_add_u32 v47, s34, v46")
            I(f"ds_read_b64 {v(48+2*k,2)}, v47")
            I("s_mul_i32 s34, s31, 36864")
            I(f"s_mul_i32 s35, {S_W}, 6144")
            I("s_add_u32 s34, s34, s35")
            I("v_lshlrev_b32 v56, 4, v1")
            I(f"v_add_u32 v56, s34, v56")
            for u in range(6):
                I(f"ds_read_b128 {v(VO+(k-1)*24+4*u,4)}, v56 offset:{u*1024}")
        I("s_waitcnt lgkmcnt(6)")
        I("v_max3_f32 v57, v44, v50, v52")
        I("v_max_f32 v57, v57, v54")
        for src in (44, 50, 52, 54): I(f"v_sub_f32 {v(src)}, {v(src)}, v57")
        for src in (44, 50, 52, 54): I(f"v_exp_f32 {v(src)}, {v(src)}")
        I("s_nop 0")
        I("v_mul_f32 v57, v44, v45")
        for src in (50, 52, 54): I(f"v_fmac_f32 v57, {v(src)}, {v(src+1)}")
        I("v_rcp_f32 v57, v57")
        I("s_nop 0")
        for src in (44, 50, 52, 54): I(f"v_mul_f32 {v(src)}, {v(src)}, v57")
        for r in range(24): I(f"v_mul_f32 {v(64+r)}, {v(64+r)}, v44")
        for r in range(24): I(f"v_fmac_f32 {v(64+r)}, {v(VO+r)}, v50")
        for r in range(24): I(f"v_fmac_f32 {v(64+r)}, {v(VO+24+r)}, v52")
        I("s_waitcnt lgkmcnt(0)")
        for r in range(24): I(f"v_fmac_f32 {v(64+r)}, {v(VO+48+r)}, v54")
        I("v_and_b32 v56, 31, v1")
        I("v_lshrrev_b32 v57, 5, v1")
        I("v_lshlrev_b32 v57, 3, v57")
        I(f"s_mul_i32 s31, {S_W}, 6")
        I(f"s_mul_i32 s34, {S_W}, 3072")
        I(f"s_add_u32 s34, s34, {L_Q}")
        I("v_add_u32 v57, s34, v57")
        for u in range(6):
            I(f"s_add_u32 s35, s31, {u}")
            I("s_and_b32 s35, s35, 7")
            I("v_xor_b32 v58, s35, v56")
            I("v_lshl_add_u32 v58, v58, 4, v57")
            I(f"v_cvt_pk_bf16_f32 {v(88+2*u)}, {v(64+4*u)}, {v(65+4*u)}")
            I(f"v_cvt_pk_bf16_f32 {v(89+2*u)}, {v(66+4*u)}, {v(67+4*u)}")
            I(f"ds_write_b64 v58, {v(88+2*u,2)} offset:{u*512}")
        self.stamp(13)
        I("s_waitcnt vmcnt(0)")
        for ft in range(3):
            b = self.VX1 + 4*ft
            I(f"v_permlane16_swap_b32 {v(b)}, {v(b+2)}")
            I(f"v_permlane16_swap_b32 {v(b+1)}, {v(b+3)}")
        I("s_waitcnt lgkmcnt(0)")
        I("s_barrier")
        for th in range(2):
            for ks in range(6):
                I(f"ds_read_b128 {a((th*6+ks)*4,4)}, {v(self.VHR2+(ks&1))} offset:{ks*2048+th*256}")
        for ft in range(3):
            for th in range(2):
                src = self.VX1 + 4*ft + 2*th; d = 64 + (ft*2+th)*4
                I(f"v_lshlrev_b32 {v(d)}, 16, {v(src)}")
                I(f"v_and_b32 {v(d+1)}, 0xffff0000, {v(src)}")
                I(f"v_lshlrev_b32 {v(d+2)}, 16, {v(src+1)}")
                I(f"v_and_b32 {v(d+3)}, 0xffff0000, {v(src+1)}")
        I("s_waitcnt lgkmcnt(0)")
        for ks in range(6):
            for ft in range(3):
                for th in range(2):
                    D = v(64+(ft*2+th)*4, 4)
                    I(f"v_mfma_f32_16x16x32_bf16 {D}, {a(self.AWV+(ft*6+ks)*4,4)}, {a((th*6+ks)*4,4)}, {D}")
        self.nop(3)
        for ft in range(3):
            for th in range(2):
                b = 64+(ft*2+th)*4; d = 96 + ft*4 + th*2
                I(f"v_cvt_pk_bf16_f32 {v(d)}, {v(b)}, {v(b+1)}")
                I(f"v_cvt_pk_bf16_f32 {v(d+1)}, {v(b+2)}, {v(b+3)}")
        self.nop(1)
        for ft in range(3):
            d = 96 + ft*4
            I(f"v_permlane16_swap_b32 {v(d)}, {v(d+2)}")
            I(f"v_permlane16_swap_b32 {v(d+1)}, {v(d+3)}")
        for ft in range(3):
            I(f"buffer_store_dwordx4 {v(96+ft*4,4)}, {v(self.VOUT)}, {srd(SOUT)}, 0 offen offset:{ft*32}")
        self.stamp(14)
        if self.dbg.get("stamps"):
            I("s_waitcnt vmcnt(0)")
            self.stamp(15)
            self.stamps_out()
        I("s_branch L_end")

        self.L("L_rare")
        self.nop(12)
        I(f"v_max3_f32 v52, {v(VS)}, {v(VS+1)}, {v(VS+2)}")
        for r in range(3, 15, 2): I(f"v_max3_f32 v52, v52, {v(VS+r)}, {v(VS+r+1)}")
        I(f"v_max_f32 v52, v52, {v(VS+15)}")
        I("v_mov_b32 v53, v52")
        I(f"v_mov_b32 v54, {v(self.VL)}")
        I(f"v_mov_b32 v55, {v(self.VL)}")
        self.nop(1)
        I("v_permlane32_swap_b32 v52, v53")
        I("v_permlane32_swap_b32 v54, v55")
        I("v_max_f32 v52, v52, v53")
        I("v_add_f32 v54, v54, v55")
        I("v_max_f32 v53, 0, v52")
        I("v_cmp_eq_f32 vcc, 0, v54")
        self.nop(2)
        I("v_cndmask_b32 v52, v53, v52, vcc")
        I("v_sub_f32 v53, 0, v52")
        I("v_exp_f32 v53, v53")
        I("s_nop 0")
        I("v_cndmask_b32 v53, v53, 1.0, vcc")
        for r in range(96): I(f"v_mul_f32 {v(VO+r)}, {v(VO+r)}, v53")
        I(f"v_mul_f32 {v(self.VL)}, {v(self.VL)}, v53")
        for r in range(16): I(f"v_sub_f32 {v(VNM+r)}, {v(VNM+r)}, v52")
        for r in range(16): I(f"v_sub_f32 {v(VS+r)}, {v(VS+r)}, v52")
        for r in range(16): I(f"v_exp_f32 {v(VE+r)}, {v(VS+r)}")
        I("s_nop 0")
        I(f"v_add_f32 {v(self.VTS)}, {v(VE)}, {v(VE+1)}")
        for r in range(2, 16): I(f"v_add_f32 {v(self.VTS)}, {v(self.VTS)}, {v(VE+r)}")
        for k in range(4): I(f"v_cvt_pk_bf16_f32 {v(VPB+k)}, {v(VE+2*k)}, {v(VE+2*k+1)}")
        I("s_branch L_back")

    def next_tile(self, dst, src):
        self.I(f"s_add_u32 {dst}, {src}, 4")
        self.I(f"s_cmp_ge_u32 {dst}, 23")
        self.I(f"s_cselect_b32 s34, 23, 0")
        self.I(f"s_sub_u32 {dst}, {dst}, s34")

    def emit_dma_tile(self, slot, soff, tag):
        for t in self.dma_tile(slot, soff, tag):
            if isinstance(t, tuple): self.I(t[0], tag=t[1])
            else:
                self.I(t); self.I("s_nop 0")

    def build(self):
        self.entry()
        self.s1()
        self.handoff()
        self.s2()
        self.fusion()
        self.L("L_end")
        self.I("s_endpgm")
        self.L("L_codeend")
        return self.p

HEADER = """; TimeSformer block (temporal attention + spatial attention), one persistent launch.
; @launch grid=(256,1,1) block=(256,1,1) lds=%d
.amdgcn_target "amdgcn-amd-amdhsa--gfx950"
.text
.globl %s
.p2align 8
.type %s,@function
"""
FOOTER = """
.section .rodata,"a"
.p2align 6
.amdhsa_kernel %s
  .amdhsa_next_free_vgpr 512
  .amdhsa_next_free_sgpr 102
  .amdhsa_accum_offset 256
  .amdhsa_group_segment_fixed_size 0
  .amdhsa_kernarg_size 64
  .amdhsa_user_sgpr_count 2
  .amdhsa_user_sgpr_kernarg_segment_ptr 1
  .amdhsa_system_sgpr_workgroup_id_x 1
  .amdhsa_float_denorm_mode_32 3
.end_amdhsa_kernel
"""

def scenarios():
    base = {"L_fdone": [1], "L_hpoll": [0], "L_end": [0]}
    out = {}
    for w in range(4):
        for rare in (0, 1):
            n = 5 if w == 3 else 6
            c = dict(base)
            c.update({"w0": [1 if w == 0 else 0], "loop": [1] * (n - 1) + [0], "nomask": [1, 0, 1], "rare": [rare, 0, rare, 0],
                      "L_hwait": [0 if w == 0 else 1]})
            for d in range(4): c[f"own{d}"] = [1 if d == w else 0]
            out[f"main_w{w}_rare{rare}"] = c
    out["fus_m"] = {"L_fusion": [1], "L_fus_vo": [0], "L_fus_nozero": [0], "L_end": [0, 0]}
    out["fus_vo"] = {"L_fusion": [1], "L_fus_vo": [1], "L_fus_nozero": [1], "L_end": [0, 1]}
    return out

def generate(path, dbg=None):
    g = Gen(dbg); p = g.build()
    errs = []
    for name, ch in scenarios().items():
        tr = p.trace(KNAME, ch)
        errs += check_hazards(tr, name) + check_waits(tr, name)
    uniq = list(dict.fromkeys(errs))
    for e in uniq[:40]: print(e)
    print(f"{len(uniq)} checker findings; {len(p.ins)} lines")
    txt = HEADER % (LDS_BYTES, KNAME, KNAME) + p.text() + FOOTER % KNAME
    open(path, "w").write(txt)
    return len(uniq)

if __name__ == "__main__":
    out = sys.argv[1] if len(sys.argv) > 1 else "standalone__video_timesformer__vision.s"
    generate(out, {k: 1 for k in sys.argv[2:]})
```

```python
import struct, sys
from asmdsl import *

def f2u(x): return struct.unpack("<I", struct.pack("<f", x))[0]
def hx(x): return "0x%08x" % (x & 0xffffffff)

KNAME = "standalone__video_timesformer__vision_kernel"
T, N, C = 8, 729, 192
XFRAME = N * 384
TILEB, NT = 12288, 23
FRAMEB = NT * TILEB
WS_H2, WS_STAT, WS_WM, WS_WVO, WS_SYNC, WS_STAMP, WS_SIZE = 0, 0x240000, 0x480000, 0x4A0000, 0x4C0000, 0x4D0000, 0x500000
X_BYTES = T * N * 384
WQKV_BYTES, WO_BYTES = 192 * 1152, 192 * 384
OOB = 0x40000000
SCALE_L2E = (C ** -0.5) * 1.4426950408889634
SPIN_MAX = 1 << 20
HI_THR, LO_THR = 2.0 ** 30, 2.0 ** -30
NINF = "0xff800000"

SX, SWQ, SWO, SWS, SOUT, SDBG = 4, 8, 12, 16, 20, 24
def srd(b): return f"s[{b}:{b+3}]"
S_W, S_J, S_X8 = "s28", "s29", "s30"
S_1152, S_384, S_SOFF, S_RING = "s37", "s38", "s39", "s40"
S_MASKP, S_MASKH = "s[42:43]", "s[44:45]"
S_TOF = ["s46", "s47", "s48", "s49", "s50", "s51"]
S_R22 = "s52"
S_ST = ("s55", "s56", "s57")
S_FBASE, S_RING2 = "s59", "s60"
S_C0, S_C1, S_C2 = "s61", "s62", "s63"
S_WV0, S_H2O, S_STO, S_RND = "s64", "s65", "s66", "s67"
STAMP0 = 70

R1 = 9
L_H, L_X, L_O, L_SX, L_ST = 110592, 122880, 135168, 147456, 155648
L_Q, L_ML = 147456, 159744
LDS_BYTES = 160768

def v(n, k=1): return f"v{n}" if k == 1 else f"v[{n}:{n+k-1}]"
def a(n, k=1): return f"a{n}" if k == 1 else f"a[{n}:{n+k-1}]"

VXO, VA, VB, VTR, VHR, VXR, VHW, VST = 2, 3, 6, 9, 10, 12, 15, 16
VD, VK0, VK1, VV0, VV1, VSTA, VSTW, VSTR = 17, 20, 21, 22, 23, 24, 25, 26
VHR2, VQW, VOUT, VOWN, VQR, VOW = 28, 30, 33, 34, 35, 39
VML, VEX, VEXR, VMLR = 45, 47, 48, 51
VL, VTS, VTS2 = 54, 55, 56
VMU = 58
VR1 = 26
XR, F, AQ, AK, AV, AO, TP, PT = 64, 76, 100, 124, 148, 172, 196, 240
AH, AW, AOF = 0, 48, 84
VSB, VE, VNM, VO, VPB, VPD = (64, 80), 96, 112, 128, 224, 232
AQP, AKF, AVF, AWV, AM = 0, 48, 96, 144, 48

class Gen:
    def __init__(self, dbg=None):
        self.p = Prog(); self.dbg = dbg or {}
        self.vmq, self.vm_done, self.lgq, self.lg_done = [], 0, [], 0
        self.clock = 0.0; self.pace = None
    def cost(self, t):
        mn = t.split()[0]
        if mn == "s_nop": return 4 * (int(t.split()[1]) + 1)
        if mn in TRANS: return 8.3
        if mn.startswith("v_mfma"): return 16 if "16x16" in mn else 32
        return 4.3
    def I(self, t, **k):
        self.p.I(t, **k)
        self.clock += self.cost(t.strip())
        if self.pace is not None: self.pace()
    def L(self, n): self.p.L(n)
    def nop(self, n):
        while n > 0:
            k = min(n, 16); self.I(f"s_nop {k-1}"); n -= k
    def vm(self, text, tag):
        save, self.pace = self.pace, None
        self.I(text, tag=tag); self.vmq.append(tag); self.pace = save
    def ds(self, text, tag="", needs=()):
        self.lgq.append(tag); self.I(text, tag=tag or None, needs=needs)
    def wait_vm(self, tag):
        idx = max(i for i, t in enumerate(self.vmq) if t == tag)
        if idx < self.vm_done: return
        n = len(self.vmq) - 1 - idx
        self.vm_done = idx + 1
        self.I(f"s_waitcnt vmcnt({n})")
    def wait_lg(self, tag=None):
        idx = len(self.lgq) - 1 if tag is None else max(i for i, t in enumerate(self.lgq) if t == tag)
        if idx < self.lg_done: return
        n = min(len(self.lgq) - 1 - idx, 15)
        self.lg_done = len(self.lgq) - n
        self.I(f"s_waitcnt lgkmcnt({n})")
    def vm_all(self):
        self.I("s_waitcnt vmcnt(0)"); self.vm_done = len(self.vmq)
    def barrier(self):
        self.wait_lg(); self.I("s_barrier")

    def stamp(self, k):
        if self.dbg.get("stamps") and k < 15: self.p.I(f"s_memrealtime s[{STAMP0+2*k}:{STAMP0+2*k+1}]")
    def stamps_out(self):
        I = self.I
        I("s_memtime s[34:35]")
        I("s_waitcnt lgkmcnt(0)")
        I("s_sub_u32 s36, s34, s100")
        I("s_lshl_b32 s31, s2, 2")
        I(f"s_add_u32 s31, s31, {S_W}")
        I("s_lshl_b32 s31, s31, 7")
        I(f"s_add_u32 s31, s31, {WS_STAMP}")
        I("v_mov_b32 v2, s31")
        I("s_mov_b64 exec, 1")
        for k in range(15):
            I(f"v_mov_b32 v3, s{STAMP0+2*k}")
            I(f"buffer_store_dword v3, v2, {srd(SWS)}, 0 offen offset:{4*k}")
        I("v_mov_b32 v3, s36")
        I(f"buffer_store_dword v3, v2, {srd(SWS)}, 0 offen offset:64")
        I("s_mov_b64 exec, -1")

    def srd_load(self, base, karg_off): self.I(f"s_load_dwordx2 s[{base}:{base+1}], s[0:1], {karg_off}")
    def srd_const(self, base, nbytes):
        self.I(f"s_mov_b32 s{base+2}, {hx(nbytes)}")
        self.I(f"s_mov_b32 s{base+3}, 0x20000")
    def mk_srd(self, base, karg_off, nbytes):
        self.srd_load(base, karg_off); self.srd_const(base, nbytes)

    def xg_reduce_add(self, regs_, tmps):
        I = self.I
        for swap in ("v_permlane16_swap_b32", "v_permlane32_swap_b32"):
            for r, t in zip(regs_, tmps): I(f"v_mov_b32 {v(t)}, {v(r)}")
            self.nop(max(0, 2 - (len(regs_) - 1)))
            for r, t in zip(regs_, tmps): I(f"{swap} {v(r)}, {v(t)}")
            for r, t in zip(regs_, tmps): I(f"v_add_f32 {v(r)}, {v(r)}, {v(t)}")

    def phase(self, mfmas, queues):
        n = len(mfmas); slots = [[] for _ in range(n)]
        for g0, g1, items in queues:
            for i, it in enumerate(items):
                slots[min(n - 1, g0 + i * (g1 - g0 + 1) // max(1, len(items)))].append(it)
        for g in range(n):
            mfmas[g]()
            for it in slots[g]: it()

    def entry(self):
        I = self.I
        self.L(KNAME)
        self.stamp(0)
        if self.dbg.get("stamps"): I("s_memtime s[100:101]")
        I("s_cmp_ge_u32 s2, 256")
        I("s_cbranch_scc1 L_end")
        I("s_lshr_b32 s3, s2, 3")
        I(f"s_and_b32 {S_X8}, s2, 7")
        I("s_cmp_lt_u32 s3, 9")
        I("s_cbranch_scc1 L_fusion")

    def fusion(self):
        I = self.I
        self.L("L_fusion")
        self.mk_srd(SX, 8, WQKV_BYTES)
        self.mk_srd(SOUT, 16, WO_BYTES)
        self.mk_srd(SWQ, 24, WQKV_BYTES)
        self.mk_srd(SWO, 32, WO_BYTES)
        self.mk_srd(SDBG, 48, 256)
        self.mk_srd(SWS, 56, WS_SIZE)
        I("s_getpc_b64 s[32:33]")
        self.L("L_pc")
        I("v_lshlrev_b32 v2, 7, v0")
        I("s_sub_u32 s32, s32, L_pc-" + KNAME)
        I("s_subb_u32 s33, s33, 0")
        I("v_min_u32 v3, L_codeend-" + KNAME + "-4, v2")
        I("global_load_dword v4, v3, s[32:33]")
        I("v_and_b32 v1, 63, v0")
        I("v_lshrrev_b32 v5, 6, v0")
        I("s_lshl_b32 s31, s3, 15")
        I(f"v_readfirstlane_b32 {S_W}, v5")
        I("v_add_u32 v2, s31, v2")
        I(f"v_subrev_u32 v3, {WQKV_BYTES}, v2")
        I("v_and_b32 v6, 15, v1")
        I("v_lshrrev_b32 v7, 4, v1")
        I("v_mul_u32_u24 v8, 1152, v6")
        I("v_lshl_add_u32 v8, v7, 4, v8")
        I("s_lshl_b32 s34, s3, 3")
        I(f"s_add_u32 s34, s34, {S_X8}")
        I("s_lshl_b32 s35, s34, 2")
        I(f"s_add_u32 s35, s35, {S_W}")
        I("s_cmp_ge_u32 s35, 144")
        I("s_cselect_b32 s36, 1, 0")
        I("s_cselect_b32 s31, 144, 0")
        I("s_sub_u32 s35, s35, s31")
        I("s_mul_i32 s37, s35, 43691")
        I("s_lshr_b32 s37, s37, 19")
        I("s_mul_i32 s38, s37, 12")
        I("s_sub_u32 s38, s35, s38")
        I("s_mul_i32 s39, s37, 18432")
        I("s_mul_i32 s40, s36, 768")
        I("s_add_u32 s39, s39, s40")
        I("s_waitcnt lgkmcnt(0)")
        I(f"buffer_load_dword v9, v2, {srd(SX)}, 0 offen")
        I(f"buffer_load_dword v10, v3, {srd(SOUT)}, 0 offen")
        for ks in range(6):
            I(f"buffer_load_dwordx4 {v(16+4*ks,4)}, v8, {srd(SWQ)}, s39 offen offset:{64*ks}")
        I("s_cmp_eq_u32 s36, 1")
        I("s_cbranch_scc1 L_fus_vo")
        I("s_mul_i32 s39, s38, 18432")
        I("s_add_u32 s39, s39, 384")
        for ks in range(6):
            I(f"buffer_load_dwordx4 {v(40+4*ks,4)}, v8, {srd(SWQ)}, s39 offen offset:{64*ks}")
        I("s_and_b32 s31, s37, 1")
        I("s_lshl_b32 s31, s31, 1")
        I("v_lshrrev_b32 v11, 1, v7")
        I("v_add_u32 v11, s31, v11")
        I("v_lshlrev_b32 v12, 1, v11")
        I("v_mov_b32 v13, 0x78")
        I("v_lshrrev_b32 v12, v12, v13")
        I("v_and_b32 v11, 3, v12")
        I(f"s_mov_b32 s40, {hx(f2u(SCALE_L2E))}")
        I(f"s_mov_b32 s41, {WS_WM}")
        I("s_waitcnt vmcnt(0)")
        for ks in range(6):
            I(f"v_mfma_f32_16x16x32_bf16 v[64:67], {v(16+4*ks,4)}, {v(40+4*ks,4)}, {'0' if ks == 0 else 'v[64:67]'}")
        self.nop(8)
        for r in range(4): I(f"v_mul_f32 {v(64+r)}, s40, {v(64+r)}")
        I("s_branch L_fus_store")
        self.L("L_fus_vo")
        I("v_lshrrev_b32 v11, 1, v1")
        I("v_and_b32 v12, 12, v11")
        I("v_lshlrev_b32 v12, 1, v12")
        I("v_lshrrev_b32 v13, 2, v11")
        I("v_and_b32 v13, 4, v13")
        I("v_and_b32 v14, 3, v11")
        I("v_or3_b32 v12, v12, v13, v14")
        I("v_mul_u32_u24 v12, 384, v12")
        I("v_and_b32 v13, 1, v1")
        I("v_lshl_add_u32 v12, v13, 4, v12")
        I("s_lshl_b32 s39, s38, 5")
        I(f"s_mul_i32 s40, {S_W}, 6144")
        for ks in range(6):
            I(f"s_add_u32 m0, s40, {ks*1024}")
            I(f"s_add_u32 s41, s39, {ks*32*384}")
            I(f"buffer_load_dwordx4 v12, {srd(SWO)}, s41 offen lds", tag=f"fvo{ks}")
        I("v_lshlrev_b32 v13, 3, v1")
        I("v_add_u32 v13, s40, v13")
        I("s_and_b32 s31, s37, 1")
        I("s_lshl_b32 s31, s31, 1")
        I("v_lshrrev_b32 v11, 1, v7")
        I("v_add_u32 v11, s31, v11")
        I(f"s_mov_b32 s41, {WS_WVO}")
        I("s_waitcnt vmcnt(0)")
        for ks in range(6):
            I(f"ds_read_b64_tr_b16 {v(40+4*ks,2)}, v13 offset:{ks*1024}", needs=[f"fvo{ks}"])
            I(f"ds_read_b64_tr_b16 {v(42+4*ks,2)}, v13 offset:{ks*1024+512}", needs=[f"fvo{ks}"])
        I("s_waitcnt lgkmcnt(0)")
        for ks in range(6):
            I(f"v_mfma_f32_16x16x32_bf16 v[64:67], {v(16+4*ks,4)}, {v(40+4*ks,4)}, {'0' if ks == 0 else 'v[64:67]'}")
        self.nop(8)
        self.L("L_fus_store")
        I("v_cvt_pk_bf16_f32 v68, v64, v65")
        I("v_cvt_pk_bf16_f32 v69, v66, v67")
        I("v_lshl_add_u32 v11, v11, 4, v6")
        I("v_lshlrev_b32 v11, 4, v11")
        I("v_and_b32 v12, 1, v7")
        I("v_lshl_add_u32 v11, v12, 3, v11")
        I("s_mul_i32 s39, s38, 6")
        I("s_lshr_b32 s40, s37, 1")
        I("s_add_u32 s39, s39, s40")
        I("s_lshl_b32 s39, s39, 10")
        I("s_add_u32 s39, s39, s41")
        I(f"buffer_store_dwordx2 v[68:69], v11, {srd(SWS)}, s39 offen sc1")
        I("s_cmp_ge_u32 s34, 8")
        I("s_cbranch_scc1 L_fus_nozero")
        for r in range(70, 74): I(f"v_mov_b32 v{r}, 0")
        I("v_lshlrev_b32 v12, 4, v0")
        I("s_lshl_b32 s39, s34, 12")
        I(f"s_add_u32 s39, s39, {WS_SYNC}")
        I(f"buffer_store_dwordx4 v[70:73], v12, {srd(SWS)}, s39 offen sc1")
        self.L("L_fus_nozero")
        I("s_waitcnt vmcnt(0)")
        I("s_barrier")
        I(f"s_cmp_lg_u32 {S_W}, 0")
        I("s_cbranch_scc1 L_end")
        I("v_mov_b32 v12, 0")
        I("v_mov_b32 v13, 1")
        I("s_mov_b64 exec, 1")
        I(f"buffer_atomic_add v13, v12, {srd(SDBG)}, 0 offen sc1")
        I("s_branch L_end")

    def s1_soff(self, s):
        m, ks = divmod(s, 6)
        return ks * 32 * 1152 + m * 384 if m < 3 else ks * 32 * 384
    def s1_dma_one(self):
        d = self.dnext; s, ii = divmod(d, 3); m = s // 6
        save, self.pace = self.pace, None
        if ii == 0:
            self.I(f"s_add_u32 m0, {S_RING}, {(s % R1) * 3072}")
            self.I(f"s_mov_b32 {S_SOFF}, {self.s1_soff(s)}")
        base = VA if m < 3 else VB
        self.vm(f"buffer_load_dwordx4 {v(base+ii)}, {srd(SWQ) if m < 3 else srd(SWO)}, {S_SOFF} offen offset:{ii*1024} lds", f"w{s}_{ii}")
        self.dnext += 1; self.last_dma = self.clock; self.pace = save
    def s1_allowed(self): return self.dnext < 72 and self.dnext // 3 - R1 <= self.consumed
    def s1_pace(self):
        last = self.p.ins[-1].mn
        if last.startswith("s_cmp") or last.startswith("s_cselect"): return
        if self.s1_allowed() and self.clock - self.last_dma >= self.period: self.s1_dma_one()
    def s1_ensure(self, step):
        while self.dnext < 72 and self.dnext // 3 <= step:
            assert self.s1_allowed(), (self.dnext, self.consumed)
            self.s1_dma_one()

    def setup_s1(self):
        I = self.I
        t = [100 + i for i in range(7)]
        I(f"v_lshrrev_b32 {v(t[0])}, 2, v1")
        I(f"v_mul_u32_u24 {v(t[0])}, 96, {v(t[0])}")
        I(f"v_and_b32 {v(t[1])}, 3, v1")
        I(f"v_lshl_add_u32 {v(t[0])}, {v(t[1])}, 3, {v(t[0])}")
        I(f"v_add_u32 {v(VTR)}, {S_RING}, {v(t[0])}")
        I(f"v_lshrrev_b32 {v(t[0])}, 3, v1")
        I(f"v_and_b32 {v(t[1])}, 7, v1")
        I(f"s_lshl_b32 s31, {S_W}, 3")
        I(f"v_add_u32 {v(t[0])}, s31, {v(t[0])}")
        I(f"v_xor_b32 {v(t[0])}, {v(t[0])}, {v(t[1])}")
        I(f"v_lshlrev_b32 {v(t[0])}, 4, {v(t[0])}")
        I(f"v_lshl_add_u32 {v(t[0])}, {v(t[1])}, 9, {v(t[0])}")
        I(f"v_add_u32 {v(VHW)}, {L_H}, {v(t[0])}")
        tk, g = t[5], t[6]
        I(f"v_and_b32 {v(tk)}, 15, v1")
        I(f"v_lshrrev_b32 {v(g)}, 4, v1")
        I(f"v_xor_b32 {v(t[0])}, {v(tk)}, {v(g)}")
        I(f"v_xor_b32 {v(t[1])}, 4, {v(t[0])}")
        I(f"v_lshlrev_b32 {v(t[2])}, 9, {v(g)}")
        I(f"v_add_u32 {v(t[2])}, {L_H}, {v(t[2])}")
        I(f"v_lshl_add_u32 {v(VHR)}, {v(t[0])}, 4, {v(t[2])}")
        I(f"v_lshl_add_u32 {v(VHR+1)}, {v(t[1])}, 4, {v(t[2])}")
        I(f"s_mul_i32 s31, {S_W}, 6")
        I(f"v_lshrrev_b32 {v(t[0])}, 1, {v(g)}")
        I(f"v_add_u32 {v(t[1])}, s31, {v(t[0])}")
        I(f"v_and_b32 {v(t[2])}, 1, {v(g)}")
        I(f"v_lshlrev_b32 {v(t[3])}, 3, {v(t[2])}")
        I(f"v_add_u32 {v(t[3])}, {L_X}, {v(t[3])}")
        for ft in range(3):
            I(f"v_add_u32 {v(t[4])}, {2*ft}, {v(t[1])}")
            I(f"v_and_b32 {v(VXR+ft)}, 7, {v(t[4])}")
            I(f"v_xor_b32 {v(VXR+ft)}, {v(VXR+ft)}, {v(tk)}")
            I(f"v_lshlrev_b32 {v(VXR+ft)}, 4, {v(VXR+ft)}")
            I(f"v_lshl_add_u32 {v(VXR+ft)}, {v(t[4])}, 9, {v(VXR+ft)}")
            I(f"v_add_u32 {v(VXR+ft)}, {v(VXR+ft)}, {v(t[3])}")
        I(f"v_lshrrev_b32 {v(t[1])}, 3, {v(tk)}")
        I(f"v_cmp_eq_u32 {S_MASKP}, {v(t[0])}, {v(t[1])}")
        I(f"v_lshlrev_b32 {v(VD)}, 4, v1")
        I(f"v_lshl_add_u32 {v(t[3])}, {v(t[2])}, 4, {v(tk)}")
        I(f"v_and_b32 {v(t[4])}, 7, {v(t[3])}")
        I(f"v_lshrrev_b32 {v(t[3])}, 3, {v(t[3])}")
        I(f"v_mul_u32_u24 {v(t[1])}, {FRAMEB}, {v(t[4])}")
        I(f"v_lshl_add_u32 {v(t[1])}, {v(t[3])}, 4, {v(t[1])}")
        I(f"s_bfe_u32 s31, {S_X8}, 0x10001")
        I(f"v_xor_b32 {v(VST)}, s31, {v(t[0])}")
        I(f"v_lshl_add_u32 {v(VST)}, {v(VST)}, 6, {v(t[1])}")
        I(f"v_mul_u32_u24 {v(t[4])}, 736, {v(t[4])}")
        I(f"v_add_u32 {v(t[4])}, {v(t[4])}, {v(t[3])}")
        I(f"s_lshl_b32 s31, {S_J}, 5")
        I(f"s_lshl_b32 s34, {S_X8}, 2")
        I("s_add_u32 s31, s31, s34")
        I(f"v_add_u32 {v(t[4])}, s31, {v(t[4])}")
        I(f"v_lshlrev_b32 {v(t[4])}, 3, {v(t[4])}")
        I(f"v_add_u32 {v(t[4])}, {WS_STAT}, {v(t[4])}")
        I(f"v_cmp_lt_u32 {S_MASKH}, 31, v1")
        I(f"v_mov_b32 {v(t[1])}, {hx(OOB)}")
        I(f"s_mul_i32 s35, {S_J}, {TILEB}")
        I(f"s_mul_i32 s31, {S_W}, 3")
        I(f"v_cndmask_b32 {v(VSTA)}, {v(t[4])}, {v(t[1])}, {S_MASKH}")
        for ft in range(3):
            if ft: I("s_add_u32 s31, s31, 1")
            I("s_and_b32 s34, s31, 1")
            I(f"s_xor_b32 s34, s34, {S_X8}")
            I("s_lshl_b32 s34, s34, 7")
            I(f"s_lshl_b32 {S_ST[ft]}, s31, 10")
            I(f"s_add_u32 {S_ST[ft]}, {S_ST[ft]}, s34")
            I(f"s_add_u32 {S_ST[ft]}, {S_ST[ft]}, s35")
        I(f"v_lshlrev_b32 {v(t[4])}, 3, {v(tk)}")
        I(f"s_lshl_b32 s31, {S_W}, 8")
        I(f"s_add_u32 s31, s31, {L_ST}")
        I(f"v_add_u32 {v(VSTW)}, s31, {v(t[4])}")
        I(f"v_add_u32 {v(VSTR)}, {L_ST}, {v(t[4])}")

    def s1(self):
        I = self.I
        self.srd_load(SX, 0); self.srd_load(SWQ, 8); self.srd_load(SWO, 16)
        I("v_lshrrev_b32 v100, 6, v0")
        I("v_and_b32 v1, 63, v0")
        I(f"s_sub_u32 {S_J}, s3, 9")
        I(f"v_readfirstlane_b32 {S_W}, v100")
        I(f"s_lshl_b32 s31, {S_J}, 5")
        I(f"s_lshl_b32 s34, {S_X8}, 2")
        I("s_add_u32 s31, s31, s34")
        I("v_lshrrev_b32 v100, 3, v1")
        I("v_and_b32 v101, 7, v1")
        I(f"s_add_u32 s31, s31, {S_W}")
        I("s_mul_i32 s34, s31, 384")
        I(f"s_cmp_ge_u32 s31, {N}")
        I(f"s_cselect_b32 s34, {hx(OOB)}, s34")
        I(f"v_mul_u32_u24 v102, {XFRAME}, v100")
        I("v_lshl_add_u32 v102, v101, 4, v102")
        I(f"v_add_u32 {v(VXO)}, s34, v102")
        self.srd_const(SX, X_BYTES)
        I("s_waitcnt lgkmcnt(0)")
        for ii in range(3):
            self.vm(f"buffer_load_dwordx4 {v(XR+4*ii,4)}, {v(VXO)}, {srd(SX)}, 0 offen offset:{128*ii}", f"x{ii}")
        self.srd_load(SWS, 56); self.srd_load(SDBG, 48); self.srd_load(SOUT, 40)
        self.srd_const(SWQ, WQKV_BYTES); self.srd_const(SWO, WO_BYTES)
        I(f"s_mov_b32 {S_1152}, 1152")
        I(f"s_mov_b32 {S_384}, 384")
        I(f"s_mul_i32 s35, {S_W}, 96")
        I(f"s_mul_i32 {S_RING}, {S_W}, {R1*3072}")
        for ii in range(3):
            I(f"v_add_u32 v100, {64*ii}, v1" if ii else "v_mov_b32 v100, v1")
            I("v_mul_u32_u24 v101, 171, v100")
            I("v_lshrrev_b32 v101, 10, v101")
            I("v_mul_u32_u24 v102, 6, v101")
            I("v_sub_u32 v100, v100, v102")
            I("v_and_b32 v102, 12, v101")
            I("v_lshlrev_b32 v102, 1, v102")
            I("v_lshrrev_b32 v103, 2, v101")
            I("v_and_b32 v103, 4, v103")
            I("v_and_b32 v101, 3, v101")
            I("v_or3_b32 v101, v101, v102, v103")
            I(f"s_sub_u32 s36, s35, {1024*ii}" if ii else "s_mov_b32 s36, s35")
            I("v_lshlrev_b32 v100, 4, v100")
            I("v_add_u32 v100, s36, v100")
            I(f"v_mad_u32_u24 {v(VA+ii)}, v101, {S_1152}, v100")
            I(f"v_mad_u32_u24 {v(VB+ii)}, v101, {S_384}, v100")
        self.dnext, self.consumed, self.last_dma = 0, -1, self.clock
        self.s1_ensure(self.dbg.get("pre", 2) - 1)
        self.period = self.dbg.get("p0", 64)
        self.pace = self.s1_pace
        self.srd_const(SWS, WS_SIZE); self.srd_const(SDBG, 256); self.srd_const(SOUT, X_BYTES)
        self.setup_s1()
        I("s_waitcnt lgkmcnt(0)")
        self.stamp(1)
        self.wait_vm("x2")
        self.stamp(2)
        X = XR
        for k in range(12):
            I(f"v_lshlrev_b32 {v(F+2*k)}, 16, {v(X+k)}")
            I(f"v_and_b32 {v(F+2*k+1)}, 0xffff0000, {v(X+k)}")
        I(f"v_pk_add_f32 v[100:101], {v(F,2)}, {v(F+2,2)}")
        I(f"v_pk_mul_f32 v[102:103], {v(F,2)}, {v(F,2)}")
        I(f"v_pk_fma_f32 v[102:103], {v(F+2,2)}, {v(F+2,2)}, v[102:103]")
        for k in range(2, 12):
            I(f"v_pk_add_f32 v[100:101], v[100:101], {v(F+2*k,2)}")
            I(f"v_pk_fma_f32 v[102:103], {v(F+2*k,2)}, {v(F+2*k,2)}, v[102:103]")
        I("v_add_f32 v100, v100, v101")
        I("v_add_f32 v102, v102, v103")
        I(f"s_mov_b32 {S_C0}, {hx(f2u(1.0/192))}")
        for mod in ("quad_perm:[1,0,3,2]", "quad_perm:[2,3,0,1]", "row_half_mirror"):
            I("s_nop 0")
            I(f"v_add_f32_dpp v100, v100, v100 {mod} row_mask:0xf bank_mask:0xf")
            I(f"v_add_f32_dpp v102, v102, v102 {mod} row_mask:0xf bank_mask:0xf")
        I(f"s_mov_b32 {S_C1}, {hx(f2u(1e-5))}")
        I(f"v_mul_f32 v100, {S_C0}, v100")
        I(f"v_mov_b32 v101, {S_C1}")
        I(f"v_fmac_f32 v101, {S_C0}, v102")
        I("v_fma_f32 v101, -v100, v100, v101")
        I(f"v_max_f32 v101, {S_C1}, v101")
        I("v_rsq_f32 v102, v101")
        I("s_nop 0")
        I("v_mul_f32 v100, v100, v102")
        I("v_mov_b32 v103, v102")
        I("v_mov_b32 v101, v100")
        for k in range(12):
            I(f"v_pk_fma_f32 {v(F+2*k,2)}, {v(F+2*k,2)}, v[102:103], v[100:101] neg_lo:[0,0,1] neg_hi:[0,0,1]")
        for k in range(12):
            I(f"v_cvt_pk_bf16_f32 {v(F+k)}, {v(F+2*k)}, {v(F+2*k+1)}")
            if k % 4 == 3:
                ii = k // 4
                self.ds(f"ds_write_b128 {v(VHW)}, {v(F+4*ii,4)} offset:{ii*4096}")
                self.ds(f"ds_write_b128 {v(VHW)}, {v(X+4*ii,4)} offset:{ii*4096 + (L_X-L_H)}")
        self.barrier()
        for ks in range(6):
            for th in range(2):
                self.ds(f"ds_read_b128 {a(AH+(th*6+ks)*4,4)}, {v(VHR+(ks&1))} offset:{ks*2048+th*256}", f"h{ks}")
        self.stamp(3)
        self.period = self.dbg.get("p1", 70)

        def trread(s, ft, e2):
            buf = AW + (s % 3) * 12
            self.ds(f"ds_read_b64_tr_b16 {a(buf+ft*4+e2*2,2)}, {v(VTR)} offset:{(s%R1)*3072 + e2*1536 + ft*32}",
                    f"W{s}_{ft}", needs=[f"w{s}_{ii}" for ii in range(3)])
        def mfma(s, ft, th):
            m, ks = divmod(s, 6)
            W = a(AW + (s % 3) * 12 + ft*4, 4)
            if m < 2:
                D = v((AQ if m == 0 else AK) + (ft*2+th)*4, 4)
                I(f"v_mfma_f32_16x16x32_bf16 {D}, {W}, {a(AH+(th*6+ks)*4,4)}, {'0' if ks == 0 else D}")
            elif m == 2:
                D = v(AV + (ft*2+th)*4, 4)
                I(f"v_mfma_f32_16x16x32_bf16 {D}, {a(AH+(th*6+ks)*4,4)}, {W}, {'0' if ks == 0 else D}")
            else:
                D = v(AO + (ft*2+th)*4, 4)
                I(f"v_mfma_f32_16x16x32_bf16 {D}, {W}, {a(AOF+(th*6+ks)*4,4)}, {D}")
        def step(s):
            m, ks = divmod(s, 6)
            if s + 1 < 24:
                self.s1_ensure(min(s + 1 + self.dbg.get("lead", 3), self.consumed + R1))
                self.wait_vm(f"w{s+1}_2")
            if m < 3 and s < 6: self.wait_lg(f"h{ks}")
            if m == 3: self.wait_lg(f"of{ks}")
            for ft in range(3):
                self.wait_lg(f"W{s}_{ft}")
                if ft == 2: self.consumed = s
                for th in range(2):
                    mfma(s, ft, th)
                    if s + 1 < 24: trread(s + 1, ft, th)

        def xinit():
            for ft in range(3):
                for th in range(2):
                    self.ds(f"ds_read_b64 {v(TP+32+(ft*2+th)*2,2)}, {v(VXR+ft)} offset:{th*256}", "xi")
        def xinit_unpack():
            self.wait_lg("xi")
            for ft in range(3):
                for th in range(2):
                    src = TP+32 + (ft*2+th)*2; d = AO + (ft*2+th)*4
                    I(f"v_lshlrev_b32 {v(d)}, 16, {v(src)}")
                    I(f"v_and_b32 {v(d+1)}, 0xffff0000, {v(src)}")
                    I(f"v_lshlrev_b32 {v(d+2)}, 16, {v(src+1)}")
                    I(f"v_and_b32 {v(d+3)}, 0xffff0000, {v(src+1)}")
        def s_partial():
            self.nop(3)
            for base, dst in ((AQ, TP), (AK, TP+12)):
                for ft in range(3):
                    for th in range(2):
                        src = base + (ft*2+th)*4; d = dst + th*6 + ft*2
                        I(f"v_cvt_pk_bf16_f32 {v(d)}, {v(src)}, {v(src+1)}")
                        I(f"v_cvt_pk_bf16_f32 {v(d+1)}, {v(src+2)}, {v(src+3)}")
            I(f"s_lshl_b32 s31, {S_W}, 11")
            I(f"s_add_u32 s31, s31, {L_SX}")
            for th in range(2):
                I(f"v_mfma_f32_16x16x32_bf16 {v(TP+24+4*th,4)}, {v(TP+12+th*6,4)}, {v(TP+th*6,4)}, 0")
            I(f"v_add_u32 v57, s31, {v(VD)}")
            I(f"v_add_u32 v62, {L_SX}, {v(VD)}")
            for th in range(2):
                I(f"v_mfma_f32_16x16x16_bf16 {v(TP+24+4*th,4)}, {v(TP+12+th*6+4,2)}, {v(TP+th*6+4,2)}, {v(TP+24+4*th,4)}")
            self.nop(7)
            for th in range(2):
                self.ds(f"ds_write_b128 v57, {v(TP+24+4*th,4)} offset:{th*1024}", "sp")
        def softmax_read():
            for w in range(4):
                for th in range(2):
                    self.ds(f"ds_read_b128 {v(TP+(w*2+th)*4,4)}, v62 offset:{w*2048+th*1024}", "sr")
        def softmax_t():
            b0 = TP
            self.wait_lg("sr")
            I(f"s_mov_b32 {S_C2}, {hx(f2u(SCALE_L2E))}")
            for th in range(2):
                for h in range(2):
                    b = b0 + th*4 + 2*h
                    I(f"v_pk_add_f32 {v(b,2)}, {v(b,2)}, {v(b+8,2)}")
                    I(f"v_pk_add_f32 {v(b+16,2)}, {v(b+16,2)}, {v(b+24,2)}")
            for th in range(2):
                for h in range(2):
                    b = b0 + th*4 + 2*h
                    I(f"v_pk_add_f32 {v(b,2)}, {v(b,2)}, {v(b+16,2)}")
            m, t = b0 + 8, b0 + 10
            for th in range(2): I(f"v_max3_f32 {v(m+th)}, {v(b0+th*4)}, {v(b0+th*4+1)}, {v(b0+th*4+2)}")
            for th in range(2): I(f"v_max_f32 {v(m+th)}, {v(m+th)}, {v(b0+th*4+3)}")
            for th in range(2): I(f"v_mov_b32 {v(t+th)}, {v(m+th)}")
            self.nop(1)
            for th in range(2): I(f"v_permlane16_swap_b32 {v(m+th)}, {v(t+th)}")
            for th in range(2): I(f"v_max_f32 {v(m+th)}, {v(m+th)}, {v(t+th)}")
            for th in range(2): I(f"v_mul_f32 {v(m+th)}, {S_C2}, {v(m+th)}")
            for th in range(2):
                for r in range(4): I(f"v_fma_f32 {v(b0+th*4+r)}, {v(b0+th*4+r)}, {S_C2}, -{v(m+th)}")
            for th in range(2):
                for r in range(4): I(f"v_exp_f32 {v(b0+th*4+r)}, {v(b0+th*4+r)}")
            I("s_nop 0")
            for th in range(2):
                I(f"v_add_f32 {v(m+th)}, {v(b0+th*4)}, {v(b0+th*4+1)}")
                I(f"v_add_f32 {v(t+th)}, {v(b0+th*4+2)}, {v(b0+th*4+3)}")
            for th in range(2): I(f"v_add_f32 {v(m+th)}, {v(m+th)}, {v(t+th)}")
            for th in range(2): I(f"v_mov_b32 {v(t+th)}, {v(m+th)}")
            self.nop(1)
            for th in range(2): I(f"v_permlane16_swap_b32 {v(m+th)}, {v(t+th)}")
            for th in range(2): I(f"v_add_f32 {v(m+th)}, {v(m+th)}, {v(t+th)}")
            for th in range(2): I(f"v_rcp_f32 {v(m+th)}, {v(m+th)}")
            I("s_nop 0")
            for th in range(2):
                for r in range(4): I(f"v_mul_f32 {v(b0+th*4+r)}, {v(b0+th*4+r)}, {v(m+th)}")
            for th in range(2):
                I(f"v_cvt_pk_bf16_f32 {v(PT+2*th)}, {v(b0+th*4)}, {v(b0+th*4+1)}")
                I(f"v_cvt_pk_bf16_f32 {v(PT+1+2*th)}, {v(b0+th*4+2)}, {v(b0+th*4+3)}")
            for r in range(4): I(f"v_cndmask_b32 {v(PT+r)}, 0, {v(PT+r)}, {S_MASKP}")
        def pv_t():
            self.nop(3)
            for ft in range(3):
                for th in range(2):
                    src = AV + (ft*2+th)*4; d = TP + (ft*2+th)*2
                    I(f"v_cvt_pk_bf16_f32 {v(d)}, {v(src)}, {v(src+1)}")
                    I(f"v_cvt_pk_bf16_f32 {v(d+1)}, {v(src+2)}, {v(src+3)}")
            I("s_nop 0")
            for ft in range(3):
                for th in range(2):
                    I(f"v_mfma_f32_16x16x16_bf16 {v(AV+(ft*2+th)*4,4)}, {v(TP+(ft*2+th)*2,2)}, {v(PT+2*th,2)}, 0")
            self.nop(3)
            for ft in range(3):
                for th in range(2):
                    src = AV + (ft*2+th)*4; d = TP+12 + (ft*2+th)*2
                    I(f"v_cvt_pk_bf16_f32 {v(d)}, {v(src)}, {v(src+1)}")
                    I(f"v_cvt_pk_bf16_f32 {v(d+1)}, {v(src+2)}, {v(src+3)}")
                    self.ds(f"ds_write_b64 {v(VXR+ft)}, {v(d,2)} offset:{(L_O-L_X)+th*256}", "ow")
            self.barrier()
            for ks in range(6):
                for th in range(2):
                    self.ds(f"ds_read_b128 {a(AOF+(th*6+ks)*4,4)}, {v(VHR+(ks&1))} offset:{(L_O-L_H)+ks*2048+th*256}", f"of{ks}")

        self.wait_vm("w0_2")
        for ft in range(3):
            for e2 in range(2): trread(0, ft, e2)
        for s in range(24):
            if s == 8: xinit()
            step(s)
            if s == 8: xinit_unpack()
            if s == 11:
                self.stamp(5)
                s_partial()
            if s == 12:
                self.wait_lg("sp"); I("s_barrier")
                softmax_read()
            if s == 13: softmax_t()
            if s == 17:
                self.stamp(6)
                pv_t()
            if s == 5: self.stamp(4)
            if self.dnext == 72 and "fus" not in self.vmq:
                I("v_mov_b32 v62, 0") if s > 13 else None
                assert s > 13
                self.vm(f"buffer_load_dword v63, v62, {srd(SDBG)}, 0 offen sc1", "fus")
            if s == 22: self.fusion_check()
        self.pace = None
        self.stamp(7)
        self.ln2_store()
        self.stamp(8)

    def fusion_check(self):
        I = self.I
        self.wait_vm("fus")
        I(f"s_mov_b32 s31, {SPIN_MAX}")
        self.L("L_fpoll")
        I("v_cmp_le_u32 vcc, 72, v63")
        I("s_cbranch_vccnz L_fdone")
        I(f"buffer_load_dword v63, v62, {srd(SDBG)}, 0 offen sc1")
        I("s_sub_u32 s31, s31, 1")
        I("s_waitcnt vmcnt(0)")
        I("s_cmp_lg_u32 s31, 0")
        I("s_cbranch_scc1 L_fpoll", pat="fspin")
        self.L("L_fdone")
        I(f"s_mul_i32 s31, {S_J}, 52")
        I(f"s_mul_i32 s34, {S_W}, 13")
        I("s_add_u32 s31, s31, s34")
        I("v_min_u32 v62, 12, v1")
        I("v_add_u32 v62, s31, v62")
        I("v_add_u32 v63, 448, v62")
        I("v_cmp_gt_u32 vcc, 576, v62")
        I(f"s_mov_b32 s31, {WS_WM}")
        I("s_nop 0")
        I("v_cndmask_b32 v62, v63, v62, vcc")
        I("v_lshlrev_b32 v62, 7, v62")
        self.vm(f"buffer_load_dword v63, v62, {srd(SWS)}, s31 offen sc1", "pf")

    def ln2_store(self):
        I = self.I
        s1, s2 = TP, TP + 4
        self.nop(2)
        for th in range(2):
            I(f"v_pk_add_f32 {v(s1+2*th,2)}, {v(AO+th*4,2)}, {v(AO+th*4+2,2)}")
            I(f"v_pk_mul_f32 {v(s2+2*th,2)}, {v(AO+th*4,2)}, {v(AO+th*4,2)}")
        for ft in range(3):
            for th in range(2):
                b = AO + (ft*2+th)*4
                if ft:
                    I(f"v_pk_add_f32 {v(s1+2*th,2)}, {v(s1+2*th,2)}, {v(b,2)}")
                    I(f"v_pk_fma_f32 {v(s2+2*th,2)}, {v(b,2)}, {v(b,2)}, {v(s2+2*th,2)}")
                    I(f"v_pk_add_f32 {v(s1+2*th,2)}, {v(s1+2*th,2)}, {v(b+2,2)}")
                I(f"v_pk_fma_f32 {v(s2+2*th,2)}, {v(b+2,2)}, {v(b+2,2)}, {v(s2+2*th,2)}")
        P = TP + 8
        for th in range(2):
            I(f"v_add_f32 {v(P+2*th)}, {v(s1+2*th)}, {v(s1+2*th+1)}")
            I(f"v_add_f32 {v(P+2*th+1)}, {v(s2+2*th)}, {v(s2+2*th+1)}")
        self.xg_reduce_add([P, P+1, P+2, P+3], [TP, TP+1, TP+2, TP+3])
        for th in range(2): self.ds(f"ds_write_b64 {v(VSTW)}, {v(P+2*th,2)} offset:{th*128}")
        I(f"s_mov_b32 {S_C0}, {hx(f2u(1.0/192))}")
        I(f"s_mov_b32 {S_C1}, {hx(f2u(1e-5))}")
        self.barrier()
        RB = XR
        for th in range(2):
            for w in range(4):
                self.ds(f"ds_read_b64 {v(RB+(th*4+w)*2,2)}, {v(VSTR)} offset:{w*256+th*128}", f"st{th}")
        for th in range(2):
            b = RB + th*8
            self.wait_lg(f"st{th}")
            I(f"v_pk_add_f32 {v(b,2)}, {v(b,2)}, {v(b+2,2)}")
            I(f"v_pk_add_f32 {v(b+4,2)}, {v(b+4,2)}, {v(b+6,2)}")
        for th in range(2): I(f"v_pk_add_f32 {v(RB+th*8,2)}, {v(RB+th*8,2)}, {v(RB+th*8+4,2)}")
        for th in range(2):
            b = RB + th*8
            I(f"v_mul_f32 {v(b)}, {S_C0}, {v(b)}")
            I(f"v_mov_b32 {v(b+2)}, {S_C1}")
        for th in range(2): I(f"v_fmac_f32 {v(RB+th*8+2)}, {S_C0}, {v(RB+th*8+1)}")
        for th in range(2): I(f"v_fma_f32 {v(RB+th*8+2)}, -{v(RB+th*8)}, {v(RB+th*8)}, {v(RB+th*8+2)}")
        for th in range(2): I(f"v_max_f32 {v(RB+th*8+6)}, {S_C1}, {v(RB+th*8+2)}")
        for th in range(2): I(f"v_rsq_f32 {v(RB+th*8+2)}, {v(RB+th*8+6)}")
        I("s_nop 0")
        for th in range(2):
            b = RB + th*8
            I(f"v_mul_f32 {v(b+4)}, {v(b)}, {v(b+2)}")
            I(f"v_mov_b32 {v(b+3)}, {v(b+2)}")
            I(f"v_mov_b32 {v(b+5)}, {v(b+4)}")
        HB = TP + 28
        for ft in range(3):
            for th in range(2):
                b = AO + (ft*2+th)*4; rb = RB + th*8
                I(f"v_pk_fma_f32 {v(b,2)}, {v(b,2)}, {v(rb+2,2)}, {v(rb+4,2)} neg_lo:[0,0,1] neg_hi:[0,0,1]")
                I(f"v_pk_fma_f32 {v(b+2,2)}, {v(b+2,2)}, {v(rb+2,2)}, {v(rb+4,2)} neg_lo:[0,0,1] neg_hi:[0,0,1]")
            for th in range(2):
                b = AO + (ft*2+th)*4; d = HB + ft*4 + th*2
                I(f"v_cvt_pk_bf16_f32 {v(d)}, {v(b)}, {v(b+1)}")
                I(f"v_cvt_pk_bf16_f32 {v(d+1)}, {v(b+2)}, {v(b+3)}")
            if ft:
                d = HB + (ft-1)*4
                I(f"v_permlane16_swap_b32 {v(d)}, {v(d+2)}")
                I(f"v_permlane16_swap_b32 {v(d+1)}, {v(d+3)}")
                self.vm(f"buffer_store_dwordx4 {v(d,4)}, {v(VST)}, {srd(SWS)}, {S_ST[ft-1]} offen sc1", "st")
        I(f"v_mul_f32 {v(RB+1)}, {v(RB+6)}, {v(RB+2)}")
        I(f"v_mul_f32 {v(RB+9)}, {v(RB+14)}, {v(RB+10)}")
        I(f"v_permlane16_swap_b32 {v(HB+8)}, {v(HB+10)}")
        I(f"v_permlane16_swap_b32 {v(HB+9)}, {v(HB+11)}")
        self.vm(f"buffer_store_dwordx4 {v(HB+8,4)}, {v(VST)}, {srd(SWS)}, {S_ST[2]} offen sc1", "st")
        I("v_and_b32 v62, 16, v1")
        I("v_cmp_eq_u32 vcc, 0, v62")
        I(f"s_cmp_lg_u32 {S_W}, 0")
        I("s_cbranch_scc1 L_nostat", pat="nostat")
        I(f"v_cndmask_b32 {v(TP)}, {v(RB+8)}, {v(RB)}, vcc")
        I(f"v_cndmask_b32 {v(TP+1)}, {v(RB+9)}, {v(RB+1)}, vcc")
        I(f"buffer_store_dwordx2 {v(TP,2)}, {v(VSTA)}, {srd(SWS)}, 0 offen sc1")
        self.L("L_nostat")

    def setup_s2(self):
        I = self.I; out = []
        def A(t): out.append(lambda t=t: I(t))
        t = [100 + i for i in range(7)]
        tk, g = t[5], t[6]
        A(f"v_and_b32 {v(tk)}, 15, v1"); A(f"v_lshrrev_b32 {v(g)}, 4, v1")
        A(f"s_mul_i32 {S_RING2}, {S_W}, 36864")
        A(f"s_mul_i32 {S_FBASE}, {S_X8}, {FRAMEB}")
        for k in range(2): A(f"v_add_u32 {v(VHR2+k)}, {L_Q - L_H}, {v(VHR+k)}")
        for k in range(3): A(f"v_add_u32 {v(VQW+k)}, {L_Q - L_X}, {v(VXR+k)}")
        A(f"v_lshrrev_b32 {v(t[0])}, 1, {v(g)}")
        A(f"v_and_b32 {v(t[2])}, 1, {v(g)}")
        A(f"v_lshrrev_b32 {v(t[1])}, 3, {v(tk)}")
        A(f"v_xor_b32 {v(t[4])}, {v(t[2])}, {v(t[0])}")
        A(f"v_xor_b32 {v(t[4])}, {v(t[4])}, {v(t[1])}")
        A(f"v_lshlrev_b32 {v(t[4])}, 6, {v(t[4])}")
        A(f"v_lshrrev_b32 {v(VOWN)}, 2, {v(tk)}")
        A(f"v_xor_b32 {v(VOWN)}, {v(VOWN)}, {v(t[2])}")
        A(f"v_lshl_add_u32 {v(t[4])}, {v(VOWN)}, 7, {v(t[4])}")
        A(f"v_lshl_add_u32 {v(t[4])}, {v(t[2])}, 10, {v(t[4])}")
        A(f"v_and_b32 {v(VOWN)}, 3, {v(tk)}")
        A(f"v_lshl_add_u32 {v(VOWN)}, {v(VOWN)}, 4, {v(t[4])}")
        A(f"v_lshl_add_u32 {v(t[3])}, {v(t[2])}, 4, {v(tk)}")
        A(f"s_lshl_b32 s35, {S_J}, 5")
        A(f"v_add_u32 {v(t[4])}, s35, {v(t[3])}")
        A(f"v_cmp_gt_u32 vcc, {N}, {v(t[4])}")
        A(f"s_mul_i32 s34, {S_X8}, {N}")
        A(f"v_add_u32 {v(t[4])}, s34, {v(t[4])}")
        A(f"v_mul_u32_u24 {v(t[4])}, 384, {v(t[4])}")
        A(f"s_mul_i32 s35, {S_W}, 96")
        A(f"v_lshl_add_u32 {v(t[4])}, {v(t[0])}, 4, {v(t[4])}")
        A(f"v_add_u32 {v(t[4])}, s35, {v(t[4])}")
        A(f"v_mov_b32 {v(VOUT)}, {hx(OOB)}")
        A(f"v_cndmask_b32 {v(VOUT)}, {v(VOUT)}, {v(t[4])}, vcc")
        A(f"v_bfe_u32 {v(t[4])}, {v(t[3])}, 3, 1")
        A(f"v_xor_b32 {v(t[4])}, {v(t[4])}, {v(t[0])}")
        A(f"v_lshlrev_b32 {v(t[4])}, 6, {v(t[4])}")
        A(f"v_and_b32 {v(t[1])}, 3, {v(t[3])}")
        A(f"v_lshl_add_u32 {v(t[4])}, {v(t[1])}, 4, {v(t[4])}")
        A(f"v_lshrrev_b32 {v(t[1])}, 2, {v(t[3])}")
        A(f"s_and_b32 s35, {S_W}, 1")
        A(f"v_xor_b32 {v(t[1])}, s35, {v(t[1])}")
        A(f"v_lshl_add_u32 {v(VR1)}, {v(t[1])}, 7, {v(t[4])}")
        A(f"v_xor_b32 {v(t[1])}, 1, {v(t[1])}")
        A(f"v_lshl_add_u32 {v(VR1+1)}, {v(t[1])}, 7, {v(t[4])}")
        A(f"s_add_u32 s34, {S_RING2}, {12288 + 8192}")
        A(f"v_add_u32 {v(VR1)}, s34, {v(VR1)}")
        A(f"v_add_u32 {v(VR1+1)}, s34, {v(VR1+1)}")
        A(f"s_mul_i32 s34, {S_X8}, 736")
        A(f"s_lshl_b32 s35, {S_J}, 5")
        A(f"s_add_u32 s34, s34, s35")
        A(f"s_lshl_b32 s34, s34, 3")
        A(f"s_add_u32 {S_STO}, s34, {WS_STAT}")
        A(f"v_lshlrev_b32 {v(VSTA)}, 3, {v(tk)}")
        A(f"v_xor_b32 {v(t[4])}, {v(t[0])}, {v(t[2])}")
        A(f"v_lshlrev_b32 {v(t[4])}, 7, {v(t[4])}")
        A(f"v_lshl_add_u32 {v(t[4])}, {v(t[2])}, 10, {v(t[4])}")
        A(f"v_bfe_u32 {v(t[1])}, v1, 2, 2")
        A(f"v_lshl_add_u32 {v(t[4])}, {v(t[1])}, 4, {v(t[4])}")
        A(f"v_and_b32 {v(t[1])}, 1, v1")
        A(f"v_lshl_add_u32 {v(t[4])}, {v(t[1])}, 3, {v(t[4])}")
        A(f"v_add_u32 {v(t[4])}, {S_RING2}, {v(t[4])}")
        A(f"v_bfe_u32 {v(t[1])}, v1, 1, 1")
        A(f"v_lshl_add_u32 {v(VV0)}, {v(t[1])}, 6, {v(t[4])}")
        A(f"v_xor_b32 {v(t[1])}, 1, {v(t[1])}")
        A(f"v_lshl_add_u32 {v(t[4])}, {v(t[1])}, 6, {v(t[4])}")
        A(f"v_add_u32 {v(VV1)}, 256, {v(t[4])}")
        A(f"v_and_b32 {v(t[0])}, 31, v1")
        A(f"v_lshrrev_b32 {v(t[1])}, 5, v1")
        A(f"v_lshrrev_b32 {v(t[2])}, 2, {v(t[0])}")
        A(f"v_bfe_u32 {v(t[3])}, {v(t[0])}, 3, 1")
        A(f"v_xor_b32 {v(t[3])}, {v(t[3])}, {v(t[1])}")
        A(f"v_lshlrev_b32 {v(t[3])}, 6, {v(t[3])}")
        A(f"v_and_b32 {v(t[4])}, 3, {v(t[0])}")
        A(f"v_lshl_add_u32 {v(t[3])}, {v(t[4])}, 4, {v(t[3])}")
        A(f"v_add_u32 {v(t[3])}, {S_RING2}, {v(t[3])}")
        A(f"v_lshl_add_u32 {v(VK0)}, {v(t[2])}, 7, {v(t[3])}")
        A(f"v_xor_b32 {v(t[2])}, 1, {v(t[2])}")
        A(f"v_lshl_add_u32 {v(VK1)}, {v(t[2])}, 7, {v(t[3])}")
        A(f"v_lshlrev_b32 {v(t[2])}, 9, {v(t[1])}")
        A(f"v_add_u32 {v(t[2])}, {L_Q}, {v(t[2])}")
        for k in range(4):
            A(f"v_add_u32 {v(t[3])}, {2*k}, {v(t[1])}")
            A(f"v_xor_b32 {v(t[3])}, {v(t[3])}, {v(t[0])}")
            A(f"v_lshl_add_u32 {v(VQR+k)}, {v(t[3])}, 4, {v(t[2])}")
        A(f"v_lshlrev_b32 {v(t[2])}, 3, {v(t[1])}")
        A(f"s_mul_i32 s34, {S_W}, 3072")
        A(f"s_add_u32 s34, s34, {L_Q}")
        A(f"v_add_u32 {v(t[2])}, s34, {v(t[2])}")
        A(f"s_mul_i32 s36, {S_W}, 6")
        for u in range(6):
            A(f"s_add_u32 s35, s36, {u}")
            A("s_and_b32 s35, s35, 7")
            A(f"v_xor_b32 {v(t[3])}, s35, {v(t[0])}")
            A(f"v_lshl_add_u32 {v(VOW+u)}, {v(t[3])}, 4, {v(t[2])}")
        A(f"v_lshlrev_b32 {v(t[0])}, 3, {v(t[0])}")
        A(f"s_lshl_b32 s34, {S_W}, 8")
        A(f"s_add_u32 s34, s34, {L_ML}")
        A(f"v_add_u32 {v(VML)}, s34, {v(t[0])}")
        A(f"v_add_u32 {v(VEX)}, {S_RING2}, {v(VD)}")
        for k in range(1, 4):
            A(f"s_add_u32 s36, {S_W}, {k}")
            A("s_and_b32 s36, s36, 3")
            A("s_lshl_b32 s34, s36, 8")
            A(f"s_add_u32 s34, s34, {L_ML}")
            A(f"v_add_u32 {v(VMLR+k-1)}, s34, {v(t[0])}")
            A("s_mul_i32 s34, s36, 36864")
            A(f"s_mul_i32 s35, {S_W}, 6144")
            A("s_add_u32 s34, s34, s35")
            A(f"v_add_u32 {v(VEXR+k-1)}, s34, {v(VD)}")
        A(f"v_add_u32 {v(VD+1)}, 4096, {v(VD)}")
        A(f"v_add_u32 {v(VD+2)}, 8192, {v(VD)}")
        A(f"s_add_u32 s36, {S_J}, {S_W}")
        A(f"s_mov_b32 {S_R22}, 99")
        for k in range(6):
            if k: A("s_add_u32 s36, s36, 4")
            grp = ["s_cmp_ge_u32 s36, 23", "s_cselect_b32 s34, 23, 0", "s_sub_u32 s36, s36, s34",
                   "s_cmp_eq_u32 s36, 22", f"s_cselect_b32 {S_R22}, {k}, {S_R22}",
                   f"s_mul_i32 {S_TOF[k]}, s36, {TILEB}", f"s_add_u32 {S_TOF[k]}, {S_TOF[k]}, {S_FBASE}"]
            out.append(lambda grp=grp: [I(x) for x in grp])
        A(f"s_mul_i32 {S_WV0}, {S_W}, 18432")
        A(f"s_add_u32 {S_WV0}, {S_WV0}, {WS_WVO}")
        A(f"s_mul_i32 {S_H2O}, {S_J}, {TILEB}")
        A(f"s_add_u32 {S_H2O}, {S_H2O}, {S_FBASE}")
        A(f"s_mul_i32 s34, {S_W}, 3072")
        A(f"s_add_u32 {S_H2O}, {S_H2O}, s34")
        for r in range(16): A(f"v_mov_b32 {v(VNM+r)}, 0")
        A(f"v_mov_b32 {v(VL)}, 0")
        A(f"s_mov_b32 {S_C0}, {hx(f2u(HI_THR))}")
        A(f"s_mov_b32 {S_C1}, {hx(f2u(LO_THR))}")
        return out

    def handoff(self):
        I = self.I
        self.vm_all()
        self.stamp(9)
        I("s_barrier")
        I(f"s_cmp_lg_u32 {S_W}, 0")
        I("s_cbranch_scc1 L_nosig", pat="nosig")
        I("v_lshlrev_b32 v62, 12, v1")
        I(f"s_lshl_b32 s31, {S_J}, 7")
        I(f"s_add_u32 s31, s31, {WS_SYNC}")
        I("v_mov_b32 v63, 1")
        I("v_add_u32 v62, s31, v62")
        I("s_mov_b64 exec, 0xff")
        I(f"buffer_atomic_add v63, v62, {srd(SWS)}, 0 offen sc1")
        I("s_mov_b64 exec, -1")
        self.L("L_nosig")
        items = self.setup_s2()
        I(f"s_mul_i32 s31, {S_W}, 18432")
        I(f"s_add_u32 s31, s31, {WS_WM}")
        per = -(-len(items) // 18); it = 0
        for q in range(18):
            if q % 4 == 0 and q: I(f"s_add_u32 s31, s31, 4096")
            self.vm(f"buffer_load_dwordx4 {a(AM+4*q,4)}, {v(VD)}, {srd(SWS)}, s31 offen offset:{(q%4)*1024} sc1", "wf")
            for _ in range(per):
                if it < len(items): items[it](); it += 1
        while it < len(items): items[it](); it += 1
        I(f"s_cmp_lg_u32 {S_W}, 0")
        I("s_cbranch_scc1 L_hwait", pat="hwait")
        I("v_min_u32 v62, 22, v1")
        I("v_lshlrev_b32 v62, 7, v62")
        I(f"s_lshl_b32 s31, {S_X8}, 12")
        I(f"s_add_u32 s31, s31, {WS_SYNC}")
        I(f"s_mov_b32 s34, {SPIN_MAX}")
        self.L("L_hpoll")
        I(f"buffer_load_dword v63, v62, {srd(SWS)}, s31 offen sc1")
        I("s_sub_u32 s34, s34, 1")
        I("s_cmp_eq_u32 s34, 0")
        I("s_cbranch_scc1 L_hwait", pat="hspin")
        I("s_waitcnt vmcnt(0)")
        I("v_cmp_gt_u32 vcc, 8, v63")
        I("s_cbranch_vccnz L_hpoll")
        self.L("L_hwait")
        I("s_barrier")
        self.stamp(10)

    def tile_src(self, r, grp):
        if r < 6: return S_TOF[r], []
        if r == 6: return S_WV0, []
        if grp < 2: return "s36", [f"s_add_u32 s36, {S_WV0}, 12288"]
        return S_H2O, []
    def dma_items(self, r, parts):
        out = []
        for part in parts:
            def f(part=part):
                grp = part // 4
                so, pre = self.tile_src(r, grp)
                if part % 4 == 0:
                    self.I(f"s_add_u32 m0, {S_RING2}, {(r % 3) * 12288 + grp * 4096}")
                    if pre: [self.I(x) for x in pre]
                    else: self.I("s_nop 0")
                lane = VD if (r == 7 and grp == 2) else VD + grp
                self.vm(f"buffer_load_dwordx4 {v(lane)}, {srd(SWS)}, {so} offen offset:{(part%4)*1024} sc1 lds", f"t{r}_{part}")
            out.append(f)
        return out

    def s2(self):
        I = self.I
        I(f"s_sub_u32 s35, {S_H2O}, 0")
        I(f"s_mul_i32 s36, {S_W}, 3072")
        I("s_mov_b32 m0, s36")
        I("s_nop 0")
        for q in range(3):
            self.vm(f"buffer_load_dwordx4 {v(VD)}, {srd(SWS)}, s35 offen offset:{q*1024} sc1 lds", "own")
        I(f"s_cmp_eq_u32 {S_W}, 0")
        I("s_cbranch_scc1 L_s2_w0", pat="w0")
        for f in self.dma_items(0, range(12)): f()
        I("s_waitcnt vmcnt(12)")
        I("s_branch L_s2_j")
        self.L("L_s2_w0")
        I("s_waitcnt vmcnt(0)")
        self.L("L_s2_j")
        I("s_barrier")
        own_idx = max(i for i, t in enumerate(self.vmq) if t == "own")
        self.vm_done = own_idx + 1
        for ks in range(6):
            for th in range(2):
                self.ds(f"ds_read_b128 {a((th*6+ks)*4,4)}, {v(VOWN)} offset:{ks*2048+th*512}", f"ob{ks}", needs=["own"])
        for th in range(2):
            self.vm(f"buffer_load_dwordx2 {v(VMU+2*th,2)}, {v(VSTA)}, {srd(SWS)}, {S_STO} offen offset:{128*th} sc1", "mu")
        d1 = self.dma_items(1, range(12)); d2 = self.dma_items(2, range(6))
        n = 0
        for ks in range(6):
            self.wait_lg(f"ob{ks}")
            for ft in range(3):
                for th in range(2):
                    D = v(VPD+(ft*2+th)*4, 4)
                    I(f"v_mfma_f32_16x16x32_bf16 {D}, {a(AM+(ft*6+ks)*4,4)}, {a((th*6+ks)*4,4)}, {'0' if ks == 0 else D}", needs=["wf"])
                    n += 1
                    if n % 3 == 0: d1[n // 3 - 1]()
        self.nop(3)
        for ft in range(3):
            for th in range(2):
                b = VPD+(ft*2+th)*4; d = VE + (ft*2+th)*2
                I(f"v_cvt_pk_bf16_f32 {v(d)}, {v(b)}, {v(b+1)}")
                I(f"v_cvt_pk_bf16_f32 {v(d+1)}, {v(b+2)}, {v(b+3)}")
                self.ds(f"ds_write_b64 {v(VQW+ft)}, {v(d,2)} offset:{th*256}")
            d2[2*ft](); d2[2*ft+1]()
        self.wait_vm("t0_11")
        self.barrier()
        for jj in range(12):
            self.ds(f"ds_read_b128 {a(AQP+4*jj,4)}, {v(VQR+(jj&3))} offset:{jj*1024}", f"q{jj}")
            self.ds(f"ds_read_b128 {a(AKF+4*jj,4)}, {v(VK0+(jj&1))} offset:{jj*1024}", f"k0_{jj}", needs=["own"] + [f"t0_{q}" for q in range(12)])
        self.stamp(11)
        self.rounds()
        self.stamp(12)
        self.tail()
        self.rare()

    def kread(self, r, k):
        def f():
            if k % 3 == 0: self.wait_vm(f"t{r}_{k+2}")
            self.ds(f"ds_read_b128 {a(AKF+4*k,4)}, {v(VK0+(k&1))} offset:{(r%3)*12288 + k*1024}", f"k{r}_{k}", needs=[f"t{r}_{k}"])
        return f
    def vread(self, r, m, e2):
        s_, ct = divmod(m, 6)
        def f():
            self.ds(f"ds_read_b64_tr_b16 {a(AVF+(ct*2+s_)*4+2*e2,2)}, {v(VV0+e2)} offset:{(r%3)*12288 + ct*2048 + s_*512}", f"v{r}_{m}")
        return f
    def smfma(self, r, jj):
        S = VSB[r & 1]
        def f():
            self.wait_lg(f"k{r}_{jj}")
            if r == 0: self.wait_lg(f"q{jj}")
            self.I(f"v_mfma_f32_32x32x16_bf16 {v(S,16)}, {a(AKF+4*jj,4)}, {a(AQP+4*jj,4)}, {v(VNM,16) if jj == 0 else v(S,16)}")
        return f
    def pmfma(self, r, m, order=None):
        s_, ct = divmod(m, 6) if order is None else order
        def f():
            self.wait_lg(f"v{r}_{s_*6+ct}")
            C_ = "0" if (r == 0 and s_ == 0) else v(VO+16*ct, 16)
            self.I(f"v_mfma_f32_32x32x16_bf16 {v(VO+16*ct,16)}, {a(AVF+(ct*2+s_)*4,4)}, {v(VPB+4*s_,4)}, {C_}")
        return f
    def sm_half(self, r, h):
        I = self.I; S = VSB[r & 1]; b = 8 * h
        ex = []
        for k in range(8):
            def f(k=k):
                I(f"v_exp_f32 {v(VE+b+k)}, {v(S+b+k)}")
                if k >= 2 or h == 1:
                    p = b + k - 2
                    if p == 0: pass
                    elif p == 1: I(f"v_add_f32 {v(VTS)}, {v(VE)}, {v(VE+1)}")
                    elif p == 2: I(f"v_mov_b32 {v(VTS2)}, {v(VE+2)}") if False else None
                    elif p == 3: I(f"v_add_f32 {v(VTS2)}, {v(VE+2)}, {v(VE+3)}")
                    else: I(f"v_add_f32 {v((VTS, VTS2)[p & 1])}, {v((VTS, VTS2)[p & 1])}, {v(VE+p)}")
            ex.append(f)
        cv = [(lambda k=k: I(f"v_cvt_pk_bf16_f32 {v(VPB+4*h+k)}, {v(VE+b+2*k)}, {v(VE+b+2*k+1)}")) for k in range(4)]
        return ex, cv
    def mask22(self, r):
        def f():
            I = self.I; S = VSB[r & 1]
            I(f"s_cmp_eq_u32 {S_R22}, {r}")
            I(f"s_cbranch_scc0 L_nm{r}", pat=f"nm{r}")
            for k in (13, 14, 15): I(f"v_mov_b32 {v(S+k)}, {NINF}")
            I(f"v_mov_b32 v57, {NINF}")
            I(f"v_cndmask_b32 {v(S+12)}, {v(S+12)}, v57, {S_MASKH}")
            self.L(f"L_nm{r}")
        return f
    def check(self, r):
        I = self.I
        I(f"v_add_f32 {v(VTS)}, {v(VTS)}, {v(VE+14)}")
        I(f"v_add_f32 {v(VTS2)}, {v(VTS2)}, {v(VE+15)}")
        I(f"v_add_f32 {v(VTS)}, {v(VTS)}, {v(VTS2)}")
        I(f"v_add_f32 v57, {v(VL)}, {v(VTS)}")
        I(f"v_cmp_nge_f32 vcc, {S_C0}, {v(VTS)}")
        I(f"v_cmp_gt_f32 s[34:35], {S_C1}, v57")
        I("s_or_b64 vcc, vcc, s[34:35]")
        I(f"s_cbranch_vccnz L_rare_{r}", pat=f"rare{r}")
        self.L(f"L_back_{r}")
        I(f"v_add_f32 {v(VL)}, {v(VL)}, {v(VTS)}")

    def rounds(self):
        q = [(0, 11, [self.kread(1, k) for k in range(12)]),
             (0, 11, [self.vread(0, m, e) for m in range(12) for e in range(2)]),
             (1, 11, self.dma_items(2, range(6, 12)))]
        self.phase([self.smfma(0, jj) for jj in range(12)], q)
        for r in range(1, 6):
            q = []
            e2, c2 = self.sm_half(r - 1, 1)
            if r == 1:
                e1, c1 = self.sm_half(0, 0)
                q.append((2, 6, e1)); q.append((6, 6, [self.mask22(0)])); q.append((7, 10, e2))
                q.append((7, 9, c1)); q.append((11, 11, c2))
            else:
                q.append((0, 0, [self.mask22(r - 1)])); q.append((0, 8, e2)); q.append((3, 10, c2))
            if r + 1 < 6: q.append((0, 11, [self.kread(r + 1, k) for k in range(12)]))
            free = lambda r=r: self.wait_lg(f"v{r-1}_11")
            q.append((1, 1, [free]))
            q.append((1, 11, self.dma_items(r + 2, range(8))))
            self.phase([self.smfma(r, jj) for jj in range(12)], q)
            self.check(r - 1)
            e1, c1 = self.sm_half(r, 0)
            q = [(0, 11, [self.vread(r, m, e) for m in range(12) for e in range(2)])]
            if r == 5: q.append((2, 2, [self.mask_dummy]))
            q.append((3 if r == 5 else 2, 9, e1)); q.append((8, 11, c1))
            q.append((0, 7, self.dma_items(r + 2, range(8, 12))))
            self.phase([self.pmfma(r - 1, m) for m in range(12)], q)
    def mask_dummy(self):
        I = self.I; S = VSB[1]
        I(f"s_cmp_eq_u32 {S_W}, 3")
        I("s_cbranch_scc0 L_ndum", pat="ndum")
        for k in range(16): I(f"v_mov_b32 {v(S+k)}, {NINF}")
        self.L("L_ndum")

    def tail(self):
        I = self.I
        e2, c2 = self.sm_half(5, 1)
        self.mask22(5)()
        for f in e2: f()
        for f in c2: f()
        self.check(5)
        I(f"v_mov_b32 v62, {v(VL)}")
        I(f"v_mov_b32 v63, {v(VL)}")
        order = [(s_, ct) for ct in range(6) for s_ in range(2)]
        pv = [self.pmfma(5, 0, o) for o in order]
        pv[0]()
        I(f"v_sub_f32 v88, 0, {v(VNM)}")
        I("v_permlane32_swap_b32 v62, v63")
        I("v_add_f32 v89, v62, v63")
        pv[1]()
        self.ds(f"ds_write_b64 {v(VML)}, v[88:89]")
        I(f"v_add_u32 v62, {S_RING2}, {v(VD)}")
        pv[2](); pv[3]()
        self.vm_all()
        rd = [f"ds_read_b128 {a(AWV+4*q,4)}, v62 offset:{q*1024}" for q in range(12)]
        rd += [f"ds_read_b128 {a(AWV+48+4*q,4)}, v62 offset:{12288+q*1024}" for q in range(6)]
        rd += [f"ds_read_b128 {v(VPD+4*ft,4)}, {v(VR1+(ft&1))} offset:{ft*1024}" for ft in range(3)]
        ri = 0
        for n in range(4, 12):
            pv[n]()
            for _ in range(3):
                if ri < len(rd): self.ds(rd[ri], "wv"); ri += 1
        assert ri == len(rd)
        self.wait_lg()
        for d in range(4):
            I(f"s_cmp_eq_u32 {S_W}, {d}")
            I(f"s_cbranch_scc1 L_own{d}", pat=f"own{d}")
            if d == 3: self.nop(4)
            for u in range(6):
                I(f"ds_write_b128 {v(VEX)}, {v(VO+24*d+4*u,4)} offset:{(d*6+u)*1024}")
            I(f"s_branch L_nxt{d}")
            self.L(f"L_own{d}")
            if d == 3: self.nop(4)
            for r in range(24): I(f"v_mov_b32 {v(64+r)}, {v(VO+24*d+r)}")
            self.L(f"L_nxt{d}")
        XI = 96
        for ft in range(3):
            b = VPD + 4*ft
            I(f"v_permlane16_swap_b32 {v(b)}, {v(b+2)}")
            I(f"v_permlane16_swap_b32 {v(b+1)}, {v(b+3)}")
        self.wait_vm("mu")
        for ft in range(3):
            for th in range(2):
                src = VPD + 4*ft + 2*th; d = XI + (ft*2+th)*4
                I(f"v_lshlrev_b32 {v(d)}, 16, {v(src)}")
                I(f"v_and_b32 {v(d+1)}, 0xffff0000, {v(src)}")
                I(f"v_lshlrev_b32 {v(d+2)}, 16, {v(src+1)}")
                I(f"v_and_b32 {v(d+3)}, 0xffff0000, {v(src+1)}")
        for ft in range(3):
            for th in range(2):
                d = XI + (ft*2+th)*4
                for r in range(4): I(f"v_fma_f32 {v(d+r)}, {v(d+r)}, {v(VMU+2*th+1)}, {v(VMU+2*th)}")
        I("s_waitcnt lgkmcnt(0)")
        I("s_barrier")
        self.lgq, self.lg_done = [], 0
        for k in range(1, 4): self.ds(f"ds_read_b64 {v(88+2*k,2)}, {v(VMLR+k-1)}", "ml")
        for k in range(1, 4):
            for u in range(6):
                self.ds(f"ds_read_b128 {v(VO+(k-1)*24+4*u,4)}, {v(VEXR+k-1)} offset:{u*1024}", f"o{k}")
        self.wait_lg("ml")
        I("v_max3_f32 v57, v88, v90, v92")
        I("v_max_f32 v57, v57, v94")
        for src in (88, 90, 92, 94): I(f"v_sub_f32 {v(src)}, {v(src)}, v57")
        for src in (88, 90, 92, 94): I(f"v_exp_f32 {v(src)}, {v(src)}")
        I("s_nop 0")
        I("v_mul_f32 v57, v88, v89")
        for src in (90, 92, 94): I(f"v_fmac_f32 v57, {v(src)}, {v(src+1)}")
        I("v_rcp_f32 v57, v57")
        I("s_nop 0")
        for src in (88, 90, 92, 94): I(f"v_mul_f32 {v(src)}, {v(src)}, v57")
        for src in (88, 90, 92, 94): I(f"v_mov_b32 {v(src+1)}, {v(src)}")
        for r in range(0, 24, 2): I(f"v_pk_mul_f32 {v(64+r,2)}, {v(64+r,2)}, v[88:89]")
        self.wait_lg("o1")
        for r in range(0, 24, 2): I(f"v_pk_fma_f32 {v(64+r,2)}, {v(VO+r,2)}, v[90:91], {v(64+r,2)}")
        self.wait_lg("o2")
        for r in range(0, 24, 2): I(f"v_pk_fma_f32 {v(64+r,2)}, {v(VO+24+r,2)}, v[92:93], {v(64+r,2)}")
        self.wait_lg("o3")
        for u in range(6):
            for h2 in range(2):
                r = 4*u + 2*h2
                I(f"v_pk_fma_f32 {v(64+r,2)}, {v(VO+48+r,2)}, v[94:95], {v(64+r,2)}")
            I(f"v_cvt_pk_bf16_f32 {v(120+2*(u&3))}, {v(64+4*u)}, {v(65+4*u)}")
            I(f"v_cvt_pk_bf16_f32 {v(121+2*(u&3))}, {v(66+4*u)}, {v(67+4*u)}")
            self.ds(f"ds_write_b64 {v(VOW+u)}, {v(120+2*(u&3),2)} offset:{u*512}")
        self.stamp(13)
        self.barrier()
        for ks in range(6):
            for th in range(2):
                self.ds(f"ds_read_b128 {a((th*6+ks)*4,4)}, {v(VHR2+(ks&1))} offset:{ks*2048+th*256}", f"f{ks}")
        for ks in range(6):
            self.wait_lg(f"f{ks}")
            for ft in range(3):
                for th in range(2):
                    D = v(XI+(ft*2+th)*4, 4)
                    I(f"v_mfma_f32_16x16x32_bf16 {D}, {a(AWV+(ft*6+ks)*4,4)}, {a((th*6+ks)*4,4)}, {D}")
        self.nop(3)
        for ft in range(3):
            for th in range(2):
                b = XI+(ft*2+th)*4; d = 64 + ft*4 + th*2
                I(f"v_cvt_pk_bf16_f32 {v(d)}, {v(b)}, {v(b+1)}")
                I(f"v_cvt_pk_bf16_f32 {v(d+1)}, {v(b+2)}, {v(b+3)}")
            if ft:
                d = 64 + (ft-1)*4
                I(f"v_permlane16_swap_b32 {v(d)}, {v(d+2)}")
                I(f"v_permlane16_swap_b32 {v(d+1)}, {v(d+3)}")
                I(f"buffer_store_dwordx4 {v(d,4)}, {v(VOUT)}, {srd(SOUT)}, 0 offen offset:{(ft-1)*32}")
        I("s_nop 0")
        I("v_permlane16_swap_b32 v72, v74")
        I("v_permlane16_swap_b32 v73, v75")
        I(f"buffer_store_dwordx4 v[72:75], {v(VOUT)}, {srd(SOUT)}, 0 offen offset:64")
        if self.dbg.get("stamps"):
            I("s_waitcnt vmcnt(0)")
            self.stamp(14)
            self.stamps_out()
        I("s_branch L_end")

    def rare(self):
        I = self.I
        for r in range(6):
            self.L(f"L_rare_{r}")
            I(f"s_mov_b32 {S_RND}, {r}")
            I(f"s_branch L_rare_p{r & 1}")
        for p in range(2):
            S, Sn = VSB[p], VSB[1 - p]
            self.L(f"L_rare_p{p}")
            self.nop(12)
            I(f"v_max3_f32 v57, {v(S)}, {v(S+1)}, {v(S+2)}")
            for r in range(3, 15, 2): I(f"v_max3_f32 v57, v57, {v(S+r)}, {v(S+r+1)}")
            I(f"v_max_f32 v57, v57, {v(S+15)}")
            I("v_mov_b32 v62, v57")
            I(f"v_mov_b32 v63, {v(VL)}")
            I(f"v_mov_b32 v46, {v(VL)}")
            self.nop(1)
            I("v_permlane32_swap_b32 v57, v62")
            I("v_permlane32_swap_b32 v63, v46")
            I("v_max_f32 v57, v57, v62")
            I("v_add_f32 v63, v63, v46")
            I("v_max_f32 v62, 0, v57")
            I("v_cmp_eq_f32 vcc, 0, v63")
            self.nop(2)
            I("v_cndmask_b32 v57, v62, v57, vcc")
            I("v_sub_f32 v62, 0, v57")
            I("v_exp_f32 v62, v62")
            I("s_nop 0")
            I("v_cndmask_b32 v62, v62, 1.0, vcc")
            I(f"s_cmp_eq_u32 {S_RND}, 0")
            I(f"s_cbranch_scc1 L_rare_noO{p}", pat=f"noO{p}")
            for r in range(96): I(f"v_mul_f32 {v(VO+r)}, {v(VO+r)}, v62")
            self.L(f"L_rare_noO{p}")
            I(f"v_mul_f32 {v(VL)}, {v(VL)}, v62")
            for r in range(16): I(f"v_sub_f32 {v(VNM+r)}, {v(VNM+r)}, v57")
            for r in range(16): I(f"v_sub_f32 {v(S+r)}, {v(S+r)}, v57")
            I(f"s_cmp_eq_u32 {S_RND}, 5")
            I(f"s_cbranch_scc1 L_rare_noN{p}", pat=f"noN{p}")
            for r in range(16): I(f"v_sub_f32 {v(Sn+r)}, {v(Sn+r)}, v57")
            self.L(f"L_rare_noN{p}")
            for r in range(16): I(f"v_exp_f32 {v(VE+r)}, {v(S+r)}")
            I("s_nop 0")
            I(f"v_add_f32 {v(VTS)}, {v(VE)}, {v(VE+1)}")
            for r in range(2, 16): I(f"v_add_f32 {v(VTS)}, {v(VTS)}, {v(VE+r)}")
            for k in range(8): I(f"v_cvt_pk_bf16_f32 {v(VPB+k)}, {v(VE+2*k)}, {v(VE+2*k+1)}")
            for r in range(p, 6, 2):
                I(f"s_cmp_eq_u32 {S_RND}, {r}")
                I(f"s_cbranch_scc1 L_back_{r}", pat=f"ret{r}")
            I("s_branch L_end")

    def build(self):
        self.entry(); self.s1(); self.handoff(); self.s2(); self.fusion()
        self.L("L_end"); self.I("s_endpgm"); self.L("L_codeend")
        return self.p

HEADER = """; TimeSformer block (temporal attention + spatial attention), one persistent launch.
; Workgroups with id>>3 < 9 fuse the spatial weights (Wq Wk^T, Wv Wo) and prefetch weights and code into L2.
; @launch grid=(256,1,1) block=(256,1,1) lds=%d
.amdgcn_target "amdgcn-amd-amdhsa--gfx950"
.text
.globl %s
.p2align 8
.type %s,@function
"""
FOOTER = """
.section .rodata,"a"
.p2align 6
.amdhsa_kernel %s
  .amdhsa_next_free_vgpr 512
  .amdhsa_next_free_sgpr 102
  .amdhsa_accum_offset 256
  .amdhsa_group_segment_fixed_size 0
  .amdhsa_kernarg_size 64
  .amdhsa_user_sgpr_count 2
  .amdhsa_user_sgpr_kernarg_segment_ptr 1
  .amdhsa_system_sgpr_workgroup_id_x 1
  .amdhsa_float_denorm_mode_32 3
.end_amdhsa_kernel
"""

def scenarios():
    base = {"L_fdone": [1], "L_hpoll": [0], "L_end": [0]}
    out = {}
    for w in range(4):
        for rare in (None, 0, 1, 2, 3, 4, 5):
            for r22 in (99, 0, 3, 5):
                if rare is not None and r22 not in (99, rare): continue
                c = dict(base)
                c.update({"w0": [1 if w == 0 else 0], "hwait": [0 if w == 0 else 1], "nosig": [0 if w == 0 else 1],
                          "nostat": [0 if w == 0 else 1], "ndum": [0 if w == 3 else 1]})
                for d in range(4): c[f"own{d}"] = [1 if d == w else 0]
                for r in range(6):
                    c[f"nm{r}"] = [0 if r == r22 else 1]
                    c[f"rare{r}"] = [1 if r == rare else 0]
                    c[f"ret{r}"] = [1 if r == rare else 0]
                for p in range(2):
                    c[f"noO{p}"] = [1 if rare == 0 else 0]; c[f"noN{p}"] = [1 if rare == 5 else 0]
                out[f"main_w{w}_rare{rare}_m{r22}"] = c
    out["fus_m"] = {"L_fusion": [1], "L_fus_vo": [0], "L_fus_nozero": [0], "L_end": [0, 0]}
    out["fus_vo"] = {"L_fusion": [1], "L_fus_vo": [1], "L_fus_nozero": [1], "L_end": [0, 1]}
    return out

def generate(path, dbg=None):
    g = Gen(dbg); p = g.build()
    errs = []
    for name, ch in scenarios().items():
        tr = p.trace(KNAME, ch)
        errs += check_hazards(tr, name) + check_waits(tr, name)
    uniq = list(dict.fromkeys(e.split("]", 1)[1] for e in errs))
    for e in uniq[:40]: print(e)
    print(f"{len(uniq)} checker findings; {len(p.ins)} lines")
    open(path, "w").write(HEADER % (LDS_BYTES, KNAME, KNAME) + p.text() + FOOTER % KNAME)
    return len(uniq)

def parse_opts(args):
    d = {}
    for x in args:
        if "=" in x:
            k, val = x.split("="); d[k] = int(val)
        else: d[x] = 1
    return d

if __name__ == "__main__":
    out = sys.argv[1] if len(sys.argv) > 1 else "standalone__video_timesformer__vision.s"
    generate(out, parse_opts(sys.argv[2:]))
```

```python
import struct, sys
from asmdsl import *

def f2u(x): return struct.unpack("<I", struct.pack("<f", x))[0]
def hx(x): return "0x%08x" % (x & 0xffffffff)

KNAME = "standalone__video_timesformer__vision_kernel"
T, N, C = 8, 729, 192
XFRAME = N * 384
TILEB, NT = 12288, 23
FRAMEB = NT * TILEB
WS_H2, WS_STAT, WS_WM, WS_WVO, WS_SYNC, WS_STAMP, WS_SIZE = 0, 0x240000, 0x480000, 0x4A0000, 0x4C0000, 0x4D0000, 0x500000
X_BYTES = T * N * 384
WQKV_BYTES, WO_BYTES = 192 * 1152, 192 * 384
OOB = 0x40000000
SCALE_L2E = (C ** -0.5) * 1.4426950408889634
SPIN_MAX = 1 << 20
HI_THR, LO_THR = 2.0 ** 30, 2.0 ** -30
NINF = "0xff800000"

SX, SWQ, SWO, SWS, SOUT, SDBG = 4, 8, 12, 16, 20, 24
def srd(b): return f"s[{b}:{b+3}]"
S_W, S_J, S_X8 = "s28", "s29", "s30"
S_1152, S_384, S_SOFF, S_RING = "s37", "s38", "s39", "s40"
S_MASKP, S_MASKH = "s[42:43]", "s[44:45]"
S_TOF = ["s46", "s47", "s48", "s49", "s50", "s51"]
S_R22 = "s52"
S_ST = ("s55", "s56", "s57")
S_FBASE, S_RING2 = "s59", "s60"
S_C0, S_C1, S_C2 = "s61", "s62", "s63"
S_WV0, S_H2O, S_STO, S_RND = "s64", "s65", "s66", "s67"
STAMP0 = 70

R1 = 9
L_H, L_X, L_O, L_SX, L_ST = 110592, 122880, 135168, 147456, 155648
L_Q, L_ML = 147456, 159744
LDS_BYTES = 160768

def v(n, k=1): return f"v{n}" if k == 1 else f"v[{n}:{n+k-1}]"
def a(n, k=1): return f"a{n}" if k == 1 else f"a[{n}:{n+k-1}]"

VXO, VA, VB, VTR, VHR, VXR, VHW, VST = 2, 3, 6, 9, 10, 12, 15, 16
VD, VK0, VK1, VV0, VV1, VSTA, VSTW, VSTR = 17, 20, 21, 22, 23, 24, 25, 26
VHR2, VQW, VOUT, VOWN, VQR, VOW = 28, 30, 33, 34, 35, 39
VML, VEX, VEXR, VMLR = 45, 47, 48, 51
VL, VTS, VTS2 = 54, 55, 56
VMU = 58
VR1 = 26
XR, F, AQ, AK, AV, AO, TP, PT = 64, 76, 100, 124, 148, 172, 196, 240
AH, AW, AOF = 0, 48, 84
VSB, VE, VNM, VO, VPB, VPD = (64, 80), 96, 112, 128, 224, 232
AQP, AKF, AVF, AWV, AM = 0, 48, 96, 144, 48

class Gen:
    def __init__(self, dbg=None):
        self.p = Prog(); self.dbg = dbg or {}
        self.vmq, self.vm_done, self.lgq, self.lg_done = [], 0, [], 0
        self.clock = 0.0; self.pace = None
    def cost(self, t):
        mn = t.split()[0]
        if mn == "s_nop": return 4 * (int(t.split()[1]) + 1)
        if mn in TRANS: return 8.3
        if mn.startswith("v_mfma"): return 16 if "16x16" in mn else 32
        return 4.3
    def I(self, t, **k):
        self.p.I(t, **k)
        self.clock += self.cost(t.strip())
        if self.pace is not None: self.pace()
    def L(self, n): self.p.L(n)
    def nop(self, n):
        while n > 0:
            k = min(n, 16); self.I(f"s_nop {k-1}"); n -= k
    def vm(self, text, tag):
        save, self.pace = self.pace, None
        self.I(text, tag=tag); self.vmq.append(tag); self.pace = save
    def ds(self, text, tag="", needs=()):
        self.lgq.append(tag); self.I(text, tag=tag or None, needs=needs)
    def wait_vm(self, tag):
        idx = max(i for i, t in enumerate(self.vmq) if t == tag)
        if idx < self.vm_done: return
        n = len(self.vmq) - 1 - idx
        self.vm_done = idx + 1
        self.I(f"s_waitcnt vmcnt({n})")
    def wait_lg(self, tag=None):
        idx = len(self.lgq) - 1 if tag is None else max(i for i, t in enumerate(self.lgq) if t == tag)
        if idx < self.lg_done: return
        n = min(len(self.lgq) - 1 - idx, 15)
        self.lg_done = len(self.lgq) - n
        self.I(f"s_waitcnt lgkmcnt({n})")
    def vm_all(self):
        self.I("s_waitcnt vmcnt(0)"); self.vm_done = len(self.vmq)
    def barrier(self):
        self.wait_lg(); self.I("s_barrier")

    def stamp(self, k):
        if self.dbg.get("stamps") and k < 15: self.p.I(f"s_memrealtime s[{STAMP0+2*k}:{STAMP0+2*k+1}]")
    def stamps_out(self):
        I = self.I
        I("s_memtime s[34:35]")
        I("s_waitcnt lgkmcnt(0)")
        I("s_sub_u32 s36, s34, s100")
        I("s_lshl_b32 s31, s2, 2")
        I(f"s_add_u32 s31, s31, {S_W}")
        I("s_lshl_b32 s31, s31, 7")
        I(f"s_add_u32 s31, s31, {WS_STAMP}")
        I("v_mov_b32 v2, s31")
        I("s_mov_b64 exec, 1")
        for k in range(15):
            I(f"v_mov_b32 v3, s{STAMP0+2*k}")
            I(f"buffer_store_dword v3, v2, {srd(SWS)}, 0 offen offset:{4*k}")
        I("v_mov_b32 v3, s36")
        I(f"buffer_store_dword v3, v2, {srd(SWS)}, 0 offen offset:64")
        I("s_mov_b64 exec, -1")

    def srd_load(self, base, karg_off): self.I(f"s_load_dwordx2 s[{base}:{base+1}], s[0:1], {karg_off}")
    def srd_const(self, base, nbytes):
        self.I(f"s_mov_b32 s{base+2}, {hx(nbytes)}")
        self.I(f"s_mov_b32 s{base+3}, 0x20000")
    def mk_srd(self, base, karg_off, nbytes):
        self.srd_load(base, karg_off); self.srd_const(base, nbytes)

    def xg_reduce_add(self, regs_, tmps):
        I = self.I
        for swap in ("v_permlane16_swap_b32", "v_permlane32_swap_b32"):
            for r, t in zip(regs_, tmps): I(f"v_mov_b32 {v(t)}, {v(r)}")
            self.nop(max(0, 2 - (len(regs_) - 1)))
            for r, t in zip(regs_, tmps): I(f"{swap} {v(r)}, {v(t)}")
            for r, t in zip(regs_, tmps): I(f"v_add_f32 {v(r)}, {v(r)}, {v(t)}")

    def phase(self, mfmas, queues):
        n = len(mfmas); slots = [[] for _ in range(n)]
        for g0, g1, items in queues:
            for i, it in enumerate(items):
                slots[min(n - 1, g0 + i * (g1 - g0 + 1) // max(1, len(items)))].append(it)
        for g in range(n):
            mfmas[g]()
            for it in slots[g]: it()

    def entry(self):
        I = self.I
        self.L(KNAME)
        self.stamp(0)
        if self.dbg.get("stamps"): I("s_memtime s[100:101]")
        I("s_cmp_ge_u32 s2, 256")
        I("s_cbranch_scc1 L_end")
        I("s_lshr_b32 s3, s2, 3")
        I(f"s_and_b32 {S_X8}, s2, 7")
        I("s_cmp_lt_u32 s3, 9")
        I("s_cbranch_scc1 L_fusion")

    def fusion(self):
        I = self.I
        self.L("L_fusion")
        self.mk_srd(SX, 8, WQKV_BYTES)
        self.mk_srd(SOUT, 16, WO_BYTES)
        self.mk_srd(SWQ, 24, WQKV_BYTES)
        self.mk_srd(SWO, 32, WO_BYTES)
        self.mk_srd(SDBG, 48, 256)
        self.mk_srd(SWS, 56, WS_SIZE)
        I("s_getpc_b64 s[32:33]")
        self.L("L_pc")
        I("v_lshlrev_b32 v2, 7, v0")
        I("s_sub_u32 s32, s32, L_pc-" + KNAME)
        I("s_subb_u32 s33, s33, 0")
        I("v_min_u32 v3, L_codeend-" + KNAME + "-4, v2")
        I("global_load_dword v4, v3, s[32:33]")
        I("v_and_b32 v1, 63, v0")
        I("v_lshrrev_b32 v5, 6, v0")
        I("s_lshl_b32 s31, s3, 15")
        I(f"v_readfirstlane_b32 {S_W}, v5")
        I("v_add_u32 v2, s31, v2")
        I(f"v_subrev_u32 v3, {WQKV_BYTES}, v2")
        I("v_and_b32 v6, 15, v1")
        I("v_lshrrev_b32 v7, 4, v1")
        I("v_mul_u32_u24 v8, 1152, v6")
        I("v_lshl_add_u32 v8, v7, 4, v8")
        I("s_lshl_b32 s34, s3, 3")
        I(f"s_add_u32 s34, s34, {S_X8}")
        I("s_lshl_b32 s35, s34, 2")
        I(f"s_add_u32 s35, s35, {S_W}")
        I("s_cmp_ge_u32 s35, 144")
        I("s_cselect_b32 s36, 1, 0")
        I("s_cselect_b32 s31, 144, 0")
        I("s_sub_u32 s35, s35, s31")
        I("s_mul_i32 s37, s35, 43691")
        I("s_lshr_b32 s37, s37, 19")
        I("s_mul_i32 s38, s37, 12")
        I("s_sub_u32 s38, s35, s38")
        I("s_mul_i32 s39, s37, 18432")
        I("s_mul_i32 s40, s36, 768")
        I("s_add_u32 s39, s39, s40")
        I("s_waitcnt lgkmcnt(0)")
        I(f"buffer_load_dword v9, v2, {srd(SX)}, 0 offen")
        I(f"buffer_load_dword v10, v3, {srd(SOUT)}, 0 offen")
        for ks in range(6):
            I(f"buffer_load_dwordx4 {v(16+4*ks,4)}, v8, {srd(SWQ)}, s39 offen offset:{64*ks}")
        I("s_cmp_eq_u32 s36, 1")
        I("s_cbranch_scc1 L_fus_vo")
        I("s_mul_i32 s39, s38, 18432")
        I("s_add_u32 s39, s39, 384")
        for ks in range(6):
            I(f"buffer_load_dwordx4 {v(40+4*ks,4)}, v8, {srd(SWQ)}, s39 offen offset:{64*ks}")
        I("s_and_b32 s31, s37, 1")
        I("s_lshl_b32 s31, s31, 1")
        I("v_lshrrev_b32 v11, 1, v7")
        I("v_add_u32 v11, s31, v11")
        I("v_lshlrev_b32 v12, 1, v11")
        I("v_mov_b32 v13, 0x78")
        I("v_lshrrev_b32 v12, v12, v13")
        I("v_and_b32 v11, 3, v12")
        I(f"s_mov_b32 s40, {hx(f2u(SCALE_L2E))}")
        I(f"s_mov_b32 s41, {WS_WM}")
        I("s_waitcnt vmcnt(0)")
        for ks in range(6):
            I(f"v_mfma_f32_16x16x32_bf16 v[64:67], {v(16+4*ks,4)}, {v(40+4*ks,4)}, {'0' if ks == 0 else 'v[64:67]'}")
        self.nop(8)
        for r in range(4): I(f"v_mul_f32 {v(64+r)}, s40, {v(64+r)}")
        I("s_branch L_fus_store")
        self.L("L_fus_vo")
        I("v_lshrrev_b32 v11, 1, v1")
        I("v_and_b32 v12, 12, v11")
        I("v_lshlrev_b32 v12, 1, v12")
        I("v_lshrrev_b32 v13, 2, v11")
        I("v_and_b32 v13, 4, v13")
        I("v_and_b32 v14, 3, v11")
        I("v_or3_b32 v12, v12, v13, v14")
        I("v_mul_u32_u24 v12, 384, v12")
        I("v_and_b32 v13, 1, v1")
        I("v_lshl_add_u32 v12, v13, 4, v12")
        I("s_lshl_b32 s39, s38, 5")
        I(f"s_mul_i32 s40, {S_W}, 6144")
        for ks in range(6):
            I(f"s_add_u32 m0, s40, {ks*1024}")
            I(f"s_add_u32 s41, s39, {ks*32*384}")
            I(f"buffer_load_dwordx4 v12, {srd(SWO)}, s41 offen lds", tag=f"fvo{ks}")
        I("v_lshlrev_b32 v13, 3, v1")
        I("v_add_u32 v13, s40, v13")
        I("s_and_b32 s31, s37, 1")
        I("s_lshl_b32 s31, s31, 1")
        I("v_lshrrev_b32 v11, 1, v7")
        I("v_add_u32 v11, s31, v11")
        I(f"s_mov_b32 s41, {WS_WVO}")
        I("s_waitcnt vmcnt(0)")
        for ks in range(6):
            I(f"ds_read_b64_tr_b16 {v(40+4*ks,2)}, v13 offset:{ks*1024}", needs=[f"fvo{ks}"])
            I(f"ds_read_b64_tr_b16 {v(42+4*ks,2)}, v13 offset:{ks*1024+512}", needs=[f"fvo{ks}"])
        I("s_waitcnt lgkmcnt(0)")
        for ks in range(6):
            I(f"v_mfma_f32_16x16x32_bf16 v[64:67], {v(16+4*ks,4)}, {v(40+4*ks,4)}, {'0' if ks == 0 else 'v[64:67]'}")
        self.nop(8)
        self.L("L_fus_store")
        I("v_cvt_pk_bf16_f32 v68, v64, v65")
        I("v_cvt_pk_bf16_f32 v69, v66, v67")
        I("v_lshl_add_u32 v11, v11, 4, v6")
        I("v_lshlrev_b32 v11, 4, v11")
        I("v_and_b32 v12, 1, v7")
        I("v_lshl_add_u32 v11, v12, 3, v11")
        I("s_mul_i32 s39, s38, 6")
        I("s_lshr_b32 s40, s37, 1")
        I("s_add_u32 s39, s39, s40")
        I("s_lshl_b32 s39, s39, 10")
        I("s_add_u32 s39, s39, s41")
        I(f"buffer_store_dwordx2 v[68:69], v11, {srd(SWS)}, s39 offen sc1")
        I("s_cmp_ge_u32 s34, 8")
        I("s_cbranch_scc1 L_fus_nozero")
        for r in range(70, 74): I(f"v_mov_b32 v{r}, 0")
        I("v_lshlrev_b32 v12, 4, v0")
        I("s_lshl_b32 s39, s34, 12")
        I(f"s_add_u32 s39, s39, {WS_SYNC}")
        I(f"buffer_store_dwordx4 v[70:73], v12, {srd(SWS)}, s39 offen sc1")
        self.L("L_fus_nozero")
        I("s_waitcnt vmcnt(0)")
        I("s_barrier")
        I(f"s_cmp_lg_u32 {S_W}, 0")
        I("s_cbranch_scc1 L_end")
        I("v_mov_b32 v12, 0")
        I("v_mov_b32 v13, 1")
        I("s_mov_b64 exec, 1")
        I(f"buffer_atomic_add v13, v12, {srd(SDBG)}, 0 offen sc1")
        I("s_branch L_end")

    def s1_soff(self, s):
        m, ks = divmod(s, 6)
        return ks * 32 * 1152 + m * 384 if m < 3 else ks * 32 * 384
    def s1_dma_one(self):
        d = self.dnext; s, ii = divmod(d, 3); m = s // 6
        save, self.pace = self.pace, None
        if ii == 0:
            self.I(f"s_add_u32 m0, {S_RING}, {(s % R1) * 3072}")
            self.I(f"s_mov_b32 {S_SOFF}, {self.s1_soff(s)}")
        base = VA if m < 3 else VB
        self.vm(f"buffer_load_dwordx4 {v(base+ii)}, {srd(SWQ) if m < 3 else srd(SWO)}, {S_SOFF} offen offset:{ii*1024} lds", f"w{s}_{ii}")
        self.dnext += 1; self.last_dma = self.clock; self.pace = save
    def s1_allowed(self): return self.dnext < 72 and self.dnext // 3 - R1 <= self.consumed
    def s1_pace(self):
        last = self.p.ins[-1].mn
        if last.startswith("s_cmp") or last.startswith("s_cselect"): return
        if self.s1_allowed() and self.clock - self.last_dma >= self.period: self.s1_dma_one()
    def s1_ensure(self, step):
        while self.dnext < 72 and self.dnext // 3 <= step:
            assert self.s1_allowed(), (self.dnext, self.consumed)
            self.s1_dma_one()

    def setup_s1(self):
        I = self.I
        t = [100 + i for i in range(7)]
        I(f"v_lshrrev_b32 {v(t[0])}, 2, v1")
        I(f"v_mul_u32_u24 {v(t[0])}, 96, {v(t[0])}")
        I(f"v_and_b32 {v(t[1])}, 3, v1")
        I(f"v_lshl_add_u32 {v(t[0])}, {v(t[1])}, 3, {v(t[0])}")
        I(f"v_add_u32 {v(VTR)}, {S_RING}, {v(t[0])}")
        I(f"v_lshrrev_b32 {v(t[0])}, 3, v1")
        I(f"v_and_b32 {v(t[1])}, 7, v1")
        I(f"s_lshl_b32 s31, {S_W}, 3")
        I(f"v_add_u32 {v(t[0])}, s31, {v(t[0])}")
        I(f"v_xor_b32 {v(t[0])}, {v(t[0])}, {v(t[1])}")
        I(f"v_lshlrev_b32 {v(t[0])}, 4, {v(t[0])}")
        I(f"v_lshl_add_u32 {v(t[0])}, {v(t[1])}, 9, {v(t[0])}")
        I(f"v_add_u32 {v(VHW)}, {L_H}, {v(t[0])}")
        tk, g = t[5], t[6]
        I(f"v_and_b32 {v(tk)}, 15, v1")
        I(f"v_lshrrev_b32 {v(g)}, 4, v1")
        I(f"v_xor_b32 {v(t[0])}, {v(tk)}, {v(g)}")
        I(f"v_xor_b32 {v(t[1])}, 4, {v(t[0])}")
        I(f"v_lshlrev_b32 {v(t[2])}, 9, {v(g)}")
        I(f"v_add_u32 {v(t[2])}, {L_H}, {v(t[2])}")
        I(f"v_lshl_add_u32 {v(VHR)}, {v(t[0])}, 4, {v(t[2])}")
        I(f"v_lshl_add_u32 {v(VHR+1)}, {v(t[1])}, 4, {v(t[2])}")
        I(f"s_mul_i32 s31, {S_W}, 6")
        I(f"v_lshrrev_b32 {v(t[0])}, 1, {v(g)}")
        I(f"v_add_u32 {v(t[1])}, s31, {v(t[0])}")
        I(f"v_and_b32 {v(t[2])}, 1, {v(g)}")
        I(f"v_lshlrev_b32 {v(t[3])}, 3, {v(t[2])}")
        I(f"v_add_u32 {v(t[3])}, {L_X}, {v(t[3])}")
        for ft in range(3):
            I(f"v_add_u32 {v(t[4])}, {2*ft}, {v(t[1])}")
            I(f"v_and_b32 {v(VXR+ft)}, 7, {v(t[4])}")
            I(f"v_xor_b32 {v(VXR+ft)}, {v(VXR+ft)}, {v(tk)}")
            I(f"v_lshlrev_b32 {v(VXR+ft)}, 4, {v(VXR+ft)}")
            I(f"v_lshl_add_u32 {v(VXR+ft)}, {v(t[4])}, 9, {v(VXR+ft)}")
            I(f"v_add_u32 {v(VXR+ft)}, {v(VXR+ft)}, {v(t[3])}")
        I(f"v_lshrrev_b32 {v(t[1])}, 3, {v(tk)}")
        I(f"v_cmp_eq_u32 {S_MASKP}, {v(t[0])}, {v(t[1])}")
        I(f"v_lshlrev_b32 {v(VD)}, 4, v1")
        I(f"v_lshl_add_u32 {v(t[3])}, {v(t[2])}, 4, {v(tk)}")
        I(f"v_and_b32 {v(t[4])}, 7, {v(t[3])}")
        I(f"v_lshrrev_b32 {v(t[3])}, 3, {v(t[3])}")
        I(f"v_mul_u32_u24 {v(t[1])}, {FRAMEB}, {v(t[4])}")
        I(f"v_lshl_add_u32 {v(t[1])}, {v(t[3])}, 4, {v(t[1])}")
        I(f"s_bfe_u32 s31, {S_X8}, 0x10001")
        I(f"v_xor_b32 {v(VST)}, s31, {v(t[0])}")
        I(f"v_lshl_add_u32 {v(VST)}, {v(VST)}, 6, {v(t[1])}")
        I(f"v_mul_u32_u24 {v(t[4])}, 736, {v(t[4])}")
        I(f"v_add_u32 {v(t[4])}, {v(t[4])}, {v(t[3])}")
        I(f"s_lshl_b32 s31, {S_J}, 5")
        I(f"s_lshl_b32 s34, {S_X8}, 2")
        I("s_add_u32 s31, s31, s34")
        I(f"v_add_u32 {v(t[4])}, s31, {v(t[4])}")
        I(f"v_lshlrev_b32 {v(t[4])}, 3, {v(t[4])}")
        I(f"v_add_u32 {v(t[4])}, {WS_STAT}, {v(t[4])}")
        I(f"v_cmp_lt_u32 {S_MASKH}, 31, v1")
        I(f"v_mov_b32 {v(t[1])}, {hx(OOB)}")
        I(f"s_mul_i32 s35, {S_J}, {TILEB}")
        I(f"s_mul_i32 s31, {S_W}, 3")
        I(f"v_cndmask_b32 {v(VSTA)}, {v(t[4])}, {v(t[1])}, {S_MASKH}")
        for ft in range(3):
            if ft: I("s_add_u32 s31, s31, 1")
            I("s_and_b32 s34, s31, 1")
            I(f"s_xor_b32 s34, s34, {S_X8}")
            I("s_lshl_b32 s34, s34, 7")
            I(f"s_lshl_b32 {S_ST[ft]}, s31, 10")
            I(f"s_add_u32 {S_ST[ft]}, {S_ST[ft]}, s34")
            I(f"s_add_u32 {S_ST[ft]}, {S_ST[ft]}, s35")
        I(f"v_lshlrev_b32 {v(t[4])}, 3, {v(tk)}")
        I(f"s_lshl_b32 s31, {S_W}, 8")
        I(f"s_add_u32 s31, s31, {L_ST}")
        I(f"v_add_u32 {v(VSTW)}, s31, {v(t[4])}")
        I(f"v_add_u32 {v(VSTR)}, {L_ST}, {v(t[4])}")

    def s1(self):
        I = self.I
        self.srd_load(SX, 0); self.srd_load(SWQ, 8); self.srd_load(SWO, 16)
        I("v_lshrrev_b32 v100, 6, v0")
        I("v_and_b32 v1, 63, v0")
        I(f"s_sub_u32 {S_J}, s3, 9")
        I(f"v_readfirstlane_b32 {S_W}, v100")
        I(f"s_lshl_b32 s31, {S_J}, 5")
        I(f"s_lshl_b32 s34, {S_X8}, 2")
        I("s_add_u32 s31, s31, s34")
        I("v_lshrrev_b32 v100, 3, v1")
        I("v_and_b32 v101, 7, v1")
        I(f"s_add_u32 s31, s31, {S_W}")
        I("s_mul_i32 s34, s31, 384")
        I(f"s_cmp_ge_u32 s31, {N}")
        I(f"s_cselect_b32 s34, {hx(OOB)}, s34")
        I(f"v_mul_u32_u24 v102, {XFRAME}, v100")
        I("v_lshl_add_u32 v102, v101, 4, v102")
        I(f"v_add_u32 {v(VXO)}, s34, v102")
        self.srd_const(SX, X_BYTES)
        I("s_waitcnt lgkmcnt(0)")
        for ii in range(3):
            self.vm(f"buffer_load_dwordx4 {v(XR+4*ii,4)}, {v(VXO)}, {srd(SX)}, 0 offen offset:{128*ii}", f"x{ii}")
        self.srd_load(SWS, 56); self.srd_load(SDBG, 48); self.srd_load(SOUT, 40)
        self.srd_const(SWQ, WQKV_BYTES); self.srd_const(SWO, WO_BYTES)
        I(f"s_mov_b32 {S_1152}, 1152")
        I(f"s_mov_b32 {S_384}, 384")
        I(f"s_mul_i32 s35, {S_W}, 96")
        I(f"s_mul_i32 {S_RING}, {S_W}, {R1*3072}")
        for ii in range(3):
            I(f"v_add_u32 v100, {64*ii}, v1" if ii else "v_mov_b32 v100, v1")
            I("v_mul_u32_u24 v101, 171, v100")
            I("v_lshrrev_b32 v101, 10, v101")
            I("v_mul_u32_u24 v102, 6, v101")
            I("v_sub_u32 v100, v100, v102")
            I("v_and_b32 v102, 12, v101")
            I("v_lshlrev_b32 v102, 1, v102")
            I("v_lshrrev_b32 v103, 2, v101")
            I("v_and_b32 v103, 4, v103")
            I("v_and_b32 v101, 3, v101")
            I("v_or3_b32 v101, v101, v102, v103")
            I(f"s_sub_u32 s36, s35, {1024*ii}" if ii else "s_mov_b32 s36, s35")
            I("v_lshlrev_b32 v100, 4, v100")
            I("v_add_u32 v100, s36, v100")
            I(f"v_mad_u32_u24 {v(VA+ii)}, v101, {S_1152}, v100")
            I(f"v_mad_u32_u24 {v(VB+ii)}, v101, {S_384}, v100")
        self.dnext, self.consumed, self.last_dma = 0, -1, self.clock
        self.s1_ensure(self.dbg.get("pre", 2) - 1)
        self.period = self.dbg.get("p0", 64)
        self.pace = self.s1_pace
        self.srd_const(SWS, WS_SIZE); self.srd_const(SDBG, 256); self.srd_const(SOUT, X_BYTES)
        self.setup_s1()
        I("s_waitcnt lgkmcnt(0)")
        self.stamp(1)
        self.wait_vm("x2")
        self.stamp(2)
        X = XR
        for k in range(12):
            I(f"v_lshlrev_b32 {v(F+2*k)}, 16, {v(X+k)}")
            I(f"v_and_b32 {v(F+2*k+1)}, 0xffff0000, {v(X+k)}")
        I(f"v_pk_add_f32 v[100:101], {v(F,2)}, {v(F+2,2)}")
        I(f"v_pk_mul_f32 v[102:103], {v(F,2)}, {v(F,2)}")
        I(f"v_pk_fma_f32 v[102:103], {v(F+2,2)}, {v(F+2,2)}, v[102:103]")
        for k in range(2, 12):
            I(f"v_pk_add_f32 v[100:101], v[100:101], {v(F+2*k,2)}")
            I(f"v_pk_fma_f32 v[102:103], {v(F+2*k,2)}, {v(F+2*k,2)}, v[102:103]")
        I("v_add_f32 v100, v100, v101")
        I("v_add_f32 v102, v102, v103")
        I(f"s_mov_b32 {S_C0}, {hx(f2u(1.0/192))}")
        for mod in ("quad_perm:[1,0,3,2]", "quad_perm:[2,3,0,1]", "row_half_mirror"):
            I("s_nop 0")
            I(f"v_add_f32_dpp v100, v100, v100 {mod} row_mask:0xf bank_mask:0xf")
            I(f"v_add_f32_dpp v102, v102, v102 {mod} row_mask:0xf bank_mask:0xf")
        I(f"s_mov_b32 {S_C1}, {hx(f2u(1e-5))}")
        I(f"v_mul_f32 v100, {S_C0}, v100")
        I(f"v_mov_b32 v101, {S_C1}")
        I(f"v_fmac_f32 v101, {S_C0}, v102")
        I("v_fma_f32 v101, -v100, v100, v101")
        I(f"v_max_f32 v101, {S_C1}, v101")
        I("v_rsq_f32 v102, v101")
        I("s_nop 0")
        I("v_mul_f32 v100, v100, v102")
        I("v_mov_b32 v103, v102")
        I("v_mov_b32 v101, v100")
        for k in range(12):
            I(f"v_pk_fma_f32 {v(F+2*k,2)}, {v(F+2*k,2)}, v[102:103], v[100:101] neg_lo:[0,0,1] neg_hi:[0,0,1]")
        for k in range(12):
            I(f"v_cvt_pk_bf16_f32 {v(F+k)}, {v(F+2*k)}, {v(F+2*k+1)}")
            if k % 4 == 3:
                ii = k // 4
                self.ds(f"ds_write_b128 {v(VHW)}, {v(F+4*ii,4)} offset:{ii*4096}")
                self.ds(f"ds_write_b128 {v(VHW)}, {v(X+4*ii,4)} offset:{ii*4096 + (L_X-L_H)}")
        self.barrier()
        for ks in range(6):
            for th in range(2):
                self.ds(f"ds_read_b128 {a(AH+(th*6+ks)*4,4)}, {v(VHR+(ks&1))} offset:{ks*2048+th*256}", f"h{ks}")
        self.stamp(3)
        self.period = self.dbg.get("p1", 70)

        def trread(s, ft, e2):
            buf = AW + (s % 3) * 12
            self.ds(f"ds_read_b64_tr_b16 {a(buf+ft*4+e2*2,2)}, {v(VTR)} offset:{(s%R1)*3072 + e2*1536 + ft*32}",
                    f"W{s}_{ft}", needs=[f"w{s}_{ii}" for ii in range(3)])
        def mfma(s, ft, th):
            m, ks = divmod(s, 6)
            W = a(AW + (s % 3) * 12 + ft*4, 4)
            if m < 2:
                D = v((AQ if m == 0 else AK) + (ft*2+th)*4, 4)
                I(f"v_mfma_f32_16x16x32_bf16 {D}, {W}, {a(AH+(th*6+ks)*4,4)}, {'0' if ks == 0 else D}")
            elif m == 2:
                D = v(AV + (ft*2+th)*4, 4)
                I(f"v_mfma_f32_16x16x32_bf16 {D}, {a(AH+(th*6+ks)*4,4)}, {W}, {'0' if ks == 0 else D}")
            else:
                D = v(AO + (ft*2+th)*4, 4)
                I(f"v_mfma_f32_16x16x32_bf16 {D}, {W}, {a(AOF+(th*6+ks)*4,4)}, {D}")
        def step(s):
            m, ks = divmod(s, 6)
            if s + 1 < 24:
                self.s1_ensure(min(s + 1 + self.dbg.get("lead", 3), self.consumed + R1))
                self.wait_vm(f"w{s+1}_2")
            if m < 3 and s < 6: self.wait_lg(f"h{ks}")
            if m == 3: self.wait_lg(f"of{ks}")
            for ft in range(3):
                self.wait_lg(f"W{s}_{ft}")
                if ft == 2: self.consumed = s
                for th in range(2):
                    mfma(s, ft, th)
                    if s + 1 < 24: trread(s + 1, ft, th)

        def xinit():
            for ft in range(3):
                for th in range(2):
                    self.ds(f"ds_read_b64 {v(TP+32+(ft*2+th)*2,2)}, {v(VXR+ft)} offset:{th*256}", "xi")
        def xinit_unpack():
            self.wait_lg("xi")
            for ft in range(3):
                for th in range(2):
                    src = TP+32 + (ft*2+th)*2; d = AO + (ft*2+th)*4
                    I(f"v_lshlrev_b32 {v(d)}, 16, {v(src)}")
                    I(f"v_and_b32 {v(d+1)}, 0xffff0000, {v(src)}")
                    I(f"v_lshlrev_b32 {v(d+2)}, 16, {v(src+1)}")
                    I(f"v_and_b32 {v(d+3)}, 0xffff0000, {v(src+1)}")
        def s_partial():
            self.nop(3)
            for base, dst in ((AQ, TP), (AK, TP+12)):
                for ft in range(3):
                    for th in range(2):
                        src = base + (ft*2+th)*4; d = dst + th*6 + ft*2
                        I(f"v_cvt_pk_bf16_f32 {v(d)}, {v(src)}, {v(src+1)}")
                        I(f"v_cvt_pk_bf16_f32 {v(d+1)}, {v(src+2)}, {v(src+3)}")
            I(f"s_lshl_b32 s31, {S_W}, 11")
            I(f"s_add_u32 s31, s31, {L_SX}")
            for th in range(2):
                I(f"v_mfma_f32_16x16x32_bf16 {v(TP+24+4*th,4)}, {v(TP+12+th*6,4)}, {v(TP+th*6,4)}, 0")
            I(f"v_add_u32 v57, s31, {v(VD)}")
            I(f"v_add_u32 v62, {L_SX}, {v(VD)}")
            for th in range(2):
                I(f"v_mfma_f32_16x16x16_bf16 {v(TP+24+4*th,4)}, {v(TP+12+th*6+4,2)}, {v(TP+th*6+4,2)}, {v(TP+24+4*th,4)}")
            self.nop(7)
            for th in range(2):
                self.ds(f"ds_write_b128 v57, {v(TP+24+4*th,4)} offset:{th*1024}", "sp")
        def softmax_read():
            for w in range(4):
                for th in range(2):
                    self.ds(f"ds_read_b128 {v(TP+(w*2+th)*4,4)}, v62 offset:{w*2048+th*1024}", "sr")
        def softmax_t():
            b0 = TP
            self.wait_lg("sr")
            I(f"s_mov_b32 {S_C2}, {hx(f2u(SCALE_L2E))}")
            for th in range(2):
                for h in range(2):
                    b = b0 + th*4 + 2*h
                    I(f"v_pk_add_f32 {v(b,2)}, {v(b,2)}, {v(b+8,2)}")
                    I(f"v_pk_add_f32 {v(b+16,2)}, {v(b+16,2)}, {v(b+24,2)}")
            for th in range(2):
                for h in range(2):
                    b = b0 + th*4 + 2*h
                    I(f"v_pk_add_f32 {v(b,2)}, {v(b,2)}, {v(b+16,2)}")
            m, t = b0 + 8, b0 + 10
            for th in range(2): I(f"v_max3_f32 {v(m+th)}, {v(b0+th*4)}, {v(b0+th*4+1)}, {v(b0+th*4+2)}")
            for th in range(2): I(f"v_max_f32 {v(m+th)}, {v(m+th)}, {v(b0+th*4+3)}")
            for th in range(2): I(f"v_mov_b32 {v(t+th)}, {v(m+th)}")
            self.nop(1)
            for th in range(2): I(f"v_permlane16_swap_b32 {v(m+th)}, {v(t+th)}")
            for th in range(2): I(f"v_max_f32 {v(m+th)}, {v(m+th)}, {v(t+th)}")
            for th in range(2): I(f"v_mul_f32 {v(m+th)}, {S_C2}, {v(m+th)}")
            for th in range(2):
                for r in range(4): I(f"v_fma_f32 {v(b0+th*4+r)}, {v(b0+th*4+r)}, {S_C2}, -{v(m+th)}")
            for th in range(2):
                for r in range(4): I(f"v_exp_f32 {v(b0+th*4+r)}, {v(b0+th*4+r)}")
            I("s_nop 0")
            for th in range(2):
                I(f"v_add_f32 {v(m+th)}, {v(b0+th*4)}, {v(b0+th*4+1)}")
                I(f"v_add_f32 {v(t+th)}, {v(b0+th*4+2)}, {v(b0+th*4+3)}")
            for th in range(2): I(f"v_add_f32 {v(m+th)}, {v(m+th)}, {v(t+th)}")
            for th in range(2): I(f"v_mov_b32 {v(t+th)}, {v(m+th)}")
            self.nop(1)
            for th in range(2): I(f"v_permlane16_swap_b32 {v(m+th)}, {v(t+th)}")
            for th in range(2): I(f"v_add_f32 {v(m+th)}, {v(m+th)}, {v(t+th)}")
            for th in range(2): I(f"v_rcp_f32 {v(m+th)}, {v(m+th)}")
            I("s_nop 0")
            for th in range(2):
                for r in range(4): I(f"v_mul_f32 {v(b0+th*4+r)}, {v(b0+th*4+r)}, {v(m+th)}")
            for th in range(2):
                I(f"v_cvt_pk_bf16_f32 {v(PT+2*th)}, {v(b0+th*4)}, {v(b0+th*4+1)}")
                I(f"v_cvt_pk_bf16_f32 {v(PT+1+2*th)}, {v(b0+th*4+2)}, {v(b0+th*4+3)}")
            for r in range(4): I(f"v_cndmask_b32 {v(PT+r)}, 0, {v(PT+r)}, {S_MASKP}")
        def pv_t():
            self.nop(3)
            for ft in range(3):
                for th in range(2):
                    src = AV + (ft*2+th)*4; d = TP + (ft*2+th)*2
                    I(f"v_cvt_pk_bf16_f32 {v(d)}, {v(src)}, {v(src+1)}")
                    I(f"v_cvt_pk_bf16_f32 {v(d+1)}, {v(src+2)}, {v(src+3)}")
            I("s_nop 0")
            for ft in range(3):
                for th in range(2):
                    I(f"v_mfma_f32_16x16x16_bf16 {v(AV+(ft*2+th)*4,4)}, {v(TP+(ft*2+th)*2,2)}, {v(PT+2*th,2)}, 0")
            self.nop(3)
            for ft in range(3):
                for th in range(2):
                    src = AV + (ft*2+th)*4; d = TP+12 + (ft*2+th)*2
                    I(f"v_cvt_pk_bf16_f32 {v(d)}, {v(src)}, {v(src+1)}")
                    I(f"v_cvt_pk_bf16_f32 {v(d+1)}, {v(src+2)}, {v(src+3)}")
                    self.ds(f"ds_write_b64 {v(VXR+ft)}, {v(d,2)} offset:{(L_O-L_X)+th*256}", "ow")
            self.barrier()
            for ks in range(6):
                for th in range(2):
                    self.ds(f"ds_read_b128 {a(AOF+(th*6+ks)*4,4)}, {v(VHR+(ks&1))} offset:{(L_O-L_H)+ks*2048+th*256}", f"of{ks}")

        self.wait_vm("w0_2")
        for ft in range(3):
            for e2 in range(2): trread(0, ft, e2)
        for s in range(24):
            if s == 8: xinit()
            step(s)
            if s == 8: xinit_unpack()
            if s == 11:
                self.stamp(5)
                s_partial()
            if s == 12:
                self.wait_lg("sp"); I("s_barrier")
                softmax_read()
            if s == 13: softmax_t()
            if s == 17:
                self.stamp(6)
                pv_t()
            if s == 5: self.stamp(4)
            if self.dnext == 72 and "fus" not in self.vmq:
                I("v_mov_b32 v62, 0") if s > 13 else None
                assert s > 13
                self.vm(f"buffer_load_dword v63, v62, {srd(SDBG)}, 0 offen sc1", "fus")
            if s == 22: self.fusion_check()
        self.pace = None
        self.stamp(7)
        self.ln2_store()
        self.stamp(8)

    def fusion_check(self):
        I = self.I
        self.wait_vm("fus")
        I(f"s_mov_b32 s31, {SPIN_MAX}")
        self.L("L_fpoll")
        I("v_cmp_le_u32 vcc, 72, v63")
        I("s_cbranch_vccnz L_fdone")
        I(f"buffer_load_dword v63, v62, {srd(SDBG)}, 0 offen sc1")
        I("s_sub_u32 s31, s31, 1")
        I("s_waitcnt vmcnt(0)")
        I("s_cmp_lg_u32 s31, 0")
        I("s_cbranch_scc1 L_fpoll", pat="fspin")
        self.L("L_fdone")
        I(f"s_mul_i32 s31, {S_J}, 52")
        I(f"s_mul_i32 s34, {S_W}, 13")
        I("s_add_u32 s31, s31, s34")
        I("v_min_u32 v62, 12, v1")
        I("v_add_u32 v62, s31, v62")
        I("v_add_u32 v63, 448, v62")
        I("v_cmp_gt_u32 vcc, 576, v62")
        I(f"s_mov_b32 s31, {WS_WM}")
        I("s_nop 0")
        I("v_cndmask_b32 v62, v63, v62, vcc")
        I("v_lshlrev_b32 v62, 7, v62")
        self.vm(f"buffer_load_dword v63, v62, {srd(SWS)}, s31 offen sc1", "pf")

    def ln2_store(self):
        I = self.I
        s1, s2 = TP, TP + 4
        self.nop(2)
        for th in range(2):
            I(f"v_pk_add_f32 {v(s1+2*th,2)}, {v(AO+th*4,2)}, {v(AO+th*4+2,2)}")
            I(f"v_pk_mul_f32 {v(s2+2*th,2)}, {v(AO+th*4,2)}, {v(AO+th*4,2)}")
        for ft in range(3):
            for th in range(2):
                b = AO + (ft*2+th)*4
                if ft:
                    I(f"v_pk_add_f32 {v(s1+2*th,2)}, {v(s1+2*th,2)}, {v(b,2)}")
                    I(f"v_pk_fma_f32 {v(s2+2*th,2)}, {v(b,2)}, {v(b,2)}, {v(s2+2*th,2)}")
                    I(f"v_pk_add_f32 {v(s1+2*th,2)}, {v(s1+2*th,2)}, {v(b+2,2)}")
                I(f"v_pk_fma_f32 {v(s2+2*th,2)}, {v(b+2,2)}, {v(b+2,2)}, {v(s2+2*th,2)}")
        P = TP + 8
        for th in range(2):
            I(f"v_add_f32 {v(P+2*th)}, {v(s1+2*th)}, {v(s1+2*th+1)}")
            I(f"v_add_f32 {v(P+2*th+1)}, {v(s2+2*th)}, {v(s2+2*th+1)}")
        self.xg_reduce_add([P, P+1, P+2, P+3], [TP, TP+1, TP+2, TP+3])
        for th in range(2): self.ds(f"ds_write_b64 {v(VSTW)}, {v(P+2*th,2)} offset:{th*128}")
        I(f"s_mov_b32 {S_C0}, {hx(f2u(1.0/192))}")
        I(f"s_mov_b32 {S_C1}, {hx(f2u(1e-5))}")
        self.barrier()
        RB = XR
        for th in range(2):
            for w in range(4):
                self.ds(f"ds_read_b64 {v(RB+(th*4+w)*2,2)}, {v(VSTR)} offset:{w*256+th*128}", f"st{th}")
        for th in range(2):
            b = RB + th*8
            self.wait_lg(f"st{th}")
            I(f"v_pk_add_f32 {v(b,2)}, {v(b,2)}, {v(b+2,2)}")
            I(f"v_pk_add_f32 {v(b+4,2)}, {v(b+4,2)}, {v(b+6,2)}")
        for th in range(2): I(f"v_pk_add_f32 {v(RB+th*8,2)}, {v(RB+th*8,2)}, {v(RB+th*8+4,2)}")
        for th in range(2):
            b = RB + th*8
            I(f"v_mul_f32 {v(b)}, {S_C0}, {v(b)}")
            I(f"v_mov_b32 {v(b+2)}, {S_C1}")
        for th in range(2): I(f"v_fmac_f32 {v(RB+th*8+2)}, {S_C0}, {v(RB+th*8+1)}")
        for th in range(2): I(f"v_fma_f32 {v(RB+th*8+2)}, -{v(RB+th*8)}, {v(RB+th*8)}, {v(RB+th*8+2)}")
        for th in range(2): I(f"v_max_f32 {v(RB+th*8+6)}, {S_C1}, {v(RB+th*8+2)}")
        for th in range(2): I(f"v_rsq_f32 {v(RB+th*8+2)}, {v(RB+th*8+6)}")
        I("s_nop 0")
        for th in range(2):
            b = RB + th*8
            I(f"v_mul_f32 {v(b+4)}, {v(b)}, {v(b+2)}")
            I(f"v_mov_b32 {v(b+3)}, {v(b+2)}")
            I(f"v_mov_b32 {v(b+5)}, {v(b+4)}")
        HB = TP + 28
        for ft in range(3):
            for th in range(2):
                b = AO + (ft*2+th)*4; rb = RB + th*8
                I(f"v_pk_fma_f32 {v(b,2)}, {v(b,2)}, {v(rb+2,2)}, {v(rb+4,2)} neg_lo:[0,0,1] neg_hi:[0,0,1]")
                I(f"v_pk_fma_f32 {v(b+2,2)}, {v(b+2,2)}, {v(rb+2,2)}, {v(rb+4,2)} neg_lo:[0,0,1] neg_hi:[0,0,1]")
            for th in range(2):
                b = AO + (ft*2+th)*4; d = HB + ft*4 + th*2
                I(f"v_cvt_pk_bf16_f32 {v(d)}, {v(b)}, {v(b+1)}")
                I(f"v_cvt_pk_bf16_f32 {v(d+1)}, {v(b+2)}, {v(b+3)}")
            if ft:
                d = HB + (ft-1)*4
                I(f"v_permlane16_swap_b32 {v(d)}, {v(d+2)}")
                I(f"v_permlane16_swap_b32 {v(d+1)}, {v(d+3)}")
                self.vm(f"buffer_store_dwordx4 {v(d,4)}, {v(VST)}, {srd(SWS)}, {S_ST[ft-1]} offen sc1", "st")
        I(f"v_mul_f32 {v(RB+1)}, {v(RB+6)}, {v(RB+2)}")
        I(f"v_mul_f32 {v(RB+9)}, {v(RB+14)}, {v(RB+10)}")
        I(f"v_permlane16_swap_b32 {v(HB+8)}, {v(HB+10)}")
        I(f"v_permlane16_swap_b32 {v(HB+9)}, {v(HB+11)}")
        self.vm(f"buffer_store_dwordx4 {v(HB+8,4)}, {v(VST)}, {srd(SWS)}, {S_ST[2]} offen sc1", "st")
        I("v_and_b32 v62, 16, v1")
        I("v_cmp_eq_u32 vcc, 0, v62")
        I(f"s_cmp_lg_u32 {S_W}, 0")
        I("s_cbranch_scc1 L_nostat", pat="nostat")
        I(f"v_cndmask_b32 {v(TP)}, {v(RB+8)}, {v(RB)}, vcc")
        I(f"v_cndmask_b32 {v(TP+1)}, {v(RB+9)}, {v(RB+1)}, vcc")
        I(f"buffer_store_dwordx2 {v(TP,2)}, {v(VSTA)}, {srd(SWS)}, 0 offen sc1")
        self.L("L_nostat")

    def setup_s2(self):
        I = self.I; out = []
        def A(t): out.append(lambda t=t: I(t))
        t = [100 + i for i in range(7)]
        tk, g = t[5], t[6]
        A(f"v_and_b32 {v(tk)}, 15, v1"); A(f"v_lshrrev_b32 {v(g)}, 4, v1")
        A(f"s_mul_i32 {S_RING2}, {S_W}, 36864")
        A(f"s_mul_i32 {S_FBASE}, {S_X8}, {FRAMEB}")
        for k in range(2): A(f"v_add_u32 {v(VHR2+k)}, {L_Q - L_H}, {v(VHR+k)}")
        for k in range(3): A(f"v_add_u32 {v(VQW+k)}, {L_Q - L_X}, {v(VXR+k)}")
        A(f"v_lshrrev_b32 {v(t[0])}, 1, {v(g)}")
        A(f"v_and_b32 {v(t[2])}, 1, {v(g)}")
        A(f"v_lshrrev_b32 {v(t[1])}, 3, {v(tk)}")
        A(f"v_xor_b32 {v(t[4])}, {v(t[2])}, {v(t[0])}")
        A(f"v_xor_b32 {v(t[4])}, {v(t[4])}, {v(t[1])}")
        A(f"v_lshlrev_b32 {v(t[4])}, 6, {v(t[4])}")
        A(f"v_lshrrev_b32 {v(VOWN)}, 2, {v(tk)}")
        A(f"v_xor_b32 {v(VOWN)}, {v(VOWN)}, {v(t[2])}")
        A(f"v_lshl_add_u32 {v(t[4])}, {v(VOWN)}, 7, {v(t[4])}")
        A(f"v_lshl_add_u32 {v(t[4])}, {v(t[2])}, 10, {v(t[4])}")
        A(f"v_and_b32 {v(VOWN)}, 3, {v(tk)}")
        A(f"v_lshl_add_u32 {v(VOWN)}, {v(VOWN)}, 4, {v(t[4])}")
        A(f"v_lshl_add_u32 {v(t[3])}, {v(t[2])}, 4, {v(tk)}")
        A(f"s_lshl_b32 s35, {S_J}, 5")
        A(f"v_add_u32 {v(t[4])}, s35, {v(t[3])}")
        A(f"v_cmp_gt_u32 vcc, {N}, {v(t[4])}")
        A(f"s_mul_i32 s34, {S_X8}, {N}")
        A(f"v_add_u32 {v(t[4])}, s34, {v(t[4])}")
        A(f"v_mul_u32_u24 {v(t[4])}, 384, {v(t[4])}")
        A(f"s_mul_i32 s35, {S_W}, 96")
        A(f"v_lshl_add_u32 {v(t[4])}, {v(t[0])}, 4, {v(t[4])}")
        A(f"v_add_u32 {v(t[4])}, s35, {v(t[4])}")
        A(f"v_mov_b32 {v(VOUT)}, {hx(OOB)}")
        A(f"v_cndmask_b32 {v(VOUT)}, {v(VOUT)}, {v(t[4])}, vcc")
        A(f"v_bfe_u32 {v(t[4])}, {v(t[3])}, 3, 1")
        A(f"v_xor_b32 {v(t[4])}, {v(t[4])}, {v(t[0])}")
        A(f"v_lshlrev_b32 {v(t[4])}, 6, {v(t[4])}")
        A(f"v_and_b32 {v(t[1])}, 3, {v(t[3])}")
        A(f"v_lshl_add_u32 {v(t[4])}, {v(t[1])}, 4, {v(t[4])}")
        A(f"v_lshrrev_b32 {v(t[1])}, 2, {v(t[3])}")
        A(f"s_and_b32 s35, {S_W}, 1")
        A(f"v_xor_b32 {v(t[1])}, s35, {v(t[1])}")
        A(f"v_lshl_add_u32 {v(VR1)}, {v(t[1])}, 7, {v(t[4])}")
        A(f"v_xor_b32 {v(t[1])}, 1, {v(t[1])}")
        A(f"v_lshl_add_u32 {v(VR1+1)}, {v(t[1])}, 7, {v(t[4])}")
        A(f"s_add_u32 s34, {S_RING2}, {12288 + 8192}")
        A(f"v_add_u32 {v(VR1)}, s34, {v(VR1)}")
        A(f"v_add_u32 {v(VR1+1)}, s34, {v(VR1+1)}")
        A(f"s_mul_i32 s34, {S_X8}, 736")
        A(f"s_lshl_b32 s35, {S_J}, 5")
        A(f"s_add_u32 s34, s34, s35")
        A(f"s_lshl_b32 s34, s34, 3")
        A(f"s_add_u32 {S_STO}, s34, {WS_STAT}")
        A(f"v_lshlrev_b32 {v(VSTA)}, 3, {v(tk)}")
        A(f"v_xor_b32 {v(t[4])}, {v(t[0])}, {v(t[2])}")
        A(f"v_lshlrev_b32 {v(t[4])}, 7, {v(t[4])}")
        A(f"v_lshl_add_u32 {v(t[4])}, {v(t[2])}, 10, {v(t[4])}")
        A(f"v_bfe_u32 {v(t[1])}, v1, 2, 2")
        A(f"v_lshl_add_u32 {v(t[4])}, {v(t[1])}, 4, {v(t[4])}")
        A(f"v_and_b32 {v(t[1])}, 1, v1")
        A(f"v_lshl_add_u32 {v(t[4])}, {v(t[1])}, 3, {v(t[4])}")
        A(f"v_add_u32 {v(t[4])}, {S_RING2}, {v(t[4])}")
        A(f"v_bfe_u32 {v(t[1])}, v1, 1, 1")
        A(f"v_lshl_add_u32 {v(VV0)}, {v(t[1])}, 6, {v(t[4])}")
        A(f"v_xor_b32 {v(t[1])}, 1, {v(t[1])}")
        A(f"v_lshl_add_u32 {v(t[4])}, {v(t[1])}, 6, {v(t[4])}")
        A(f"v_add_u32 {v(VV1)}, 256, {v(t[4])}")
        A(f"v_and_b32 {v(t[0])}, 31, v1")
        A(f"v_lshrrev_b32 {v(t[1])}, 5, v1")
        A(f"v_lshrrev_b32 {v(t[2])}, 2, {v(t[0])}")
        A(f"v_bfe_u32 {v(t[3])}, {v(t[0])}, 3, 1")
        A(f"v_xor_b32 {v(t[3])}, {v(t[3])}, {v(t[1])}")
        A(f"v_lshlrev_b32 {v(t[3])}, 6, {v(t[3])}")
        A(f"v_and_b32 {v(t[4])}, 3, {v(t[0])}")
        A(f"v_lshl_add_u32 {v(t[3])}, {v(t[4])}, 4, {v(t[3])}")
        A(f"v_add_u32 {v(t[3])}, {S_RING2}, {v(t[3])}")
        A(f"v_lshl_add_u32 {v(VK0)}, {v(t[2])}, 7, {v(t[3])}")
        A(f"v_xor_b32 {v(t[2])}, 1, {v(t[2])}")
        A(f"v_lshl_add_u32 {v(VK1)}, {v(t[2])}, 7, {v(t[3])}")
        A(f"v_lshlrev_b32 {v(t[2])}, 9, {v(t[1])}")
        A(f"v_add_u32 {v(t[2])}, {L_Q}, {v(t[2])}")
        for k in range(4):
            A(f"v_add_u32 {v(t[3])}, {2*k}, {v(t[1])}")
            A(f"v_xor_b32 {v(t[3])}, {v(t[3])}, {v(t[0])}")
            A(f"v_lshl_add_u32 {v(VQR+k)}, {v(t[3])}, 4, {v(t[2])}")
        A(f"v_lshlrev_b32 {v(t[2])}, 3, {v(t[1])}")
        A(f"s_mul_i32 s34, {S_W}, 3072")
        A(f"s_add_u32 s34, s34, {L_Q}")
        A(f"v_add_u32 {v(t[2])}, s34, {v(t[2])}")
        A(f"s_mul_i32 s36, {S_W}, 6")
        for u in range(6):
            A(f"s_add_u32 s35, s36, {u}")
            A("s_and_b32 s35, s35, 7")
            A(f"v_xor_b32 {v(t[3])}, s35, {v(t[0])}")
            A(f"v_lshl_add_u32 {v(VOW+u)}, {v(t[3])}, 4, {v(t[2])}")
        A(f"v_lshlrev_b32 {v(t[0])}, 3, {v(t[0])}")
        A(f"s_lshl_b32 s34, {S_W}, 8")
        A(f"s_add_u32 s34, s34, {L_ML}")
        A(f"v_add_u32 {v(VML)}, s34, {v(t[0])}")
        A(f"v_add_u32 {v(VEX)}, {S_RING2}, {v(VD)}")
        for k in range(1, 4):
            A(f"s_add_u32 s36, {S_W}, {k}")
            A("s_and_b32 s36, s36, 3")
            A("s_lshl_b32 s34, s36, 8")
            A(f"s_add_u32 s34, s34, {L_ML}")
            A(f"v_add_u32 {v(VMLR+k-1)}, s34, {v(t[0])}")
            A("s_mul_i32 s34, s36, 36864")
            A(f"s_mul_i32 s35, {S_W}, 6144")
            A("s_add_u32 s34, s34, s35")
            A(f"v_add_u32 {v(VEXR+k-1)}, s34, {v(VD)}")
        A(f"v_add_u32 {v(VD+1)}, 4096, {v(VD)}")
        A(f"v_add_u32 {v(VD+2)}, 8192, {v(VD)}")
        A(f"s_add_u32 s36, {S_J}, {S_W}")
        A(f"s_mov_b32 {S_R22}, 99")
        for k in range(6):
            if k: A("s_add_u32 s36, s36, 4")
            grp = ["s_cmp_ge_u32 s36, 23", "s_cselect_b32 s34, 23, 0", "s_sub_u32 s36, s36, s34",
                   "s_cmp_eq_u32 s36, 22", f"s_cselect_b32 {S_R22}, {k}, {S_R22}",
                   f"s_mul_i32 {S_TOF[k]}, s36, {TILEB}", f"s_add_u32 {S_TOF[k]}, {S_TOF[k]}, {S_FBASE}"]
            out.append(lambda grp=grp: [I(x) for x in grp])
        A(f"s_mul_i32 {S_WV0}, {S_W}, 18432")
        A(f"s_add_u32 {S_WV0}, {S_WV0}, {WS_WVO}")
        A(f"s_mul_i32 {S_H2O}, {S_J}, {TILEB}")
        A(f"s_add_u32 {S_H2O}, {S_H2O}, {S_FBASE}")
        A(f"s_mul_i32 s34, {S_W}, 3072")
        A(f"s_add_u32 {S_H2O}, {S_H2O}, s34")
        for r in range(16): A(f"v_mov_b32 {v(VNM+r)}, 0")
        A(f"v_mov_b32 {v(VL)}, 0")
        A(f"s_mov_b32 {S_C0}, {hx(f2u(HI_THR))}")
        A(f"s_mov_b32 {S_C1}, {hx(f2u(LO_THR))}")
        return out

    def handoff(self):
        I = self.I
        self.vm_all()
        self.stamp(9)
        I("s_barrier")
        I(f"s_cmp_lg_u32 {S_W}, 0")
        I("s_cbranch_scc1 L_nosig", pat="nosig")
        I("v_lshlrev_b32 v62, 12, v1")
        I(f"s_lshl_b32 s31, {S_J}, 7")
        I(f"s_add_u32 s31, s31, {WS_SYNC}")
        I("v_mov_b32 v63, 1")
        I("v_add_u32 v62, s31, v62")
        I("s_mov_b64 exec, 0xff")
        I(f"buffer_atomic_add v63, v62, {srd(SWS)}, 0 offen sc1")
        I("s_mov_b64 exec, -1")
        self.L("L_nosig")
        items = self.setup_s2()
        I(f"s_mul_i32 s31, {S_W}, 18432")
        I(f"s_add_u32 s31, s31, {WS_WM}")
        per = -(-len(items) // 18); it = 0
        for q in range(18):
            if q % 4 == 0 and q: I(f"s_add_u32 s31, s31, 4096")
            self.vm(f"buffer_load_dwordx4 {a(AM+4*q,4)}, {v(VD)}, {srd(SWS)}, s31 offen offset:{(q%4)*1024} sc1", "wf")
            for _ in range(per):
                if it < len(items): items[it](); it += 1
        while it < len(items): items[it](); it += 1
        I(f"s_cmp_lg_u32 {S_W}, 0")
        I("s_cbranch_scc1 L_hwait", pat="hwait")
        I("v_min_u32 v62, 22, v1")
        I("v_lshlrev_b32 v62, 7, v62")
        I(f"s_lshl_b32 s31, {S_X8}, 12")
        I(f"s_add_u32 s31, s31, {WS_SYNC}")
        I(f"s_mov_b32 s34, {SPIN_MAX}")
        self.L("L_hpoll")
        I(f"buffer_load_dword v63, v62, {srd(SWS)}, s31 offen sc1")
        I("s_sub_u32 s34, s34, 1")
        I("s_cmp_eq_u32 s34, 0")
        I("s_cbranch_scc1 L_hwait", pat="hspin")
        I("s_waitcnt vmcnt(0)")
        I("v_cmp_gt_u32 vcc, 8, v63")
        I("s_cbranch_vccnz L_hpoll")
        self.L("L_hwait")
        I("s_barrier")
        self.stamp(10)

    def tile_src(self, r, grp):
        if r < 6: return S_TOF[r], []
        if r == 6: return S_WV0, []
        if grp < 2: return "s36", [f"s_add_u32 s36, {S_WV0}, 12288"]
        return S_H2O, []
    def dma_items(self, r, parts):
        out = []
        for part in parts:
            def f(part=part):
                grp = part // 4
                so, pre = self.tile_src(r, grp)
                if part % 4 == 0:
                    self.I(f"s_add_u32 m0, {S_RING2}, {(r % 3) * 12288 + grp * 4096}")
                    if pre: [self.I(x) for x in pre]
                    else: self.I("s_nop 0")
                lane = VD if (r == 7 and grp == 2) else VD + grp
                self.vm(f"buffer_load_dwordx4 {v(lane)}, {srd(SWS)}, {so} offen offset:{(part%4)*1024} sc1 lds", f"t{r}_{part}")
            out.append(f)
        return out

    def s2(self):
        I = self.I
        I(f"s_sub_u32 s35, {S_H2O}, 0")
        I(f"s_mul_i32 s36, {S_W}, 3072")
        I("s_mov_b32 m0, s36")
        I("s_nop 0")
        for q in range(3):
            self.vm(f"buffer_load_dwordx4 {v(VD)}, {srd(SWS)}, s35 offen offset:{q*1024} sc1 lds", "own")
        I(f"s_cmp_eq_u32 {S_W}, 0")
        I("s_cbranch_scc1 L_s2_w0", pat="w0")
        for f in self.dma_items(0, range(12)): f()
        I("s_waitcnt vmcnt(12)")
        I("s_branch L_s2_j")
        self.L("L_s2_w0")
        I("s_waitcnt vmcnt(0)")
        self.L("L_s2_j")
        I("s_barrier")
        own_idx = max(i for i, t in enumerate(self.vmq) if t == "own")
        self.vm_done = own_idx + 1
        for ks in range(6):
            for th in range(2):
                self.ds(f"ds_read_b128 {a((th*6+ks)*4,4)}, {v(VOWN)} offset:{ks*2048+th*512}", f"ob{ks}", needs=["own"])
        for th in range(2):
            self.vm(f"buffer_load_dwordx2 {v(VMU+2*th,2)}, {v(VSTA)}, {srd(SWS)}, {S_STO} offen offset:{128*th} sc1", "mu")
        d1 = self.dma_items(1, range(12)); d2 = self.dma_items(2, range(6))
        n = 0
        for ks in range(6):
            self.wait_lg(f"ob{ks}")
            for ft in range(3):
                for th in range(2):
                    D = v(VPD+(ft*2+th)*4, 4)
                    I(f"v_mfma_f32_16x16x32_bf16 {D}, {a(AM+(ft*6+ks)*4,4)}, {a((th*6+ks)*4,4)}, {'0' if ks == 0 else D}", needs=["wf"])
                    n += 1
                    if n % 3 == 0: d1[n // 3 - 1]()
        self.nop(3)
        for ft in range(3):
            for th in range(2):
                b = VPD+(ft*2+th)*4; d = VE + (ft*2+th)*2
                I(f"v_cvt_pk_bf16_f32 {v(d)}, {v(b)}, {v(b+1)}")
                I(f"v_cvt_pk_bf16_f32 {v(d+1)}, {v(b+2)}, {v(b+3)}")
                self.ds(f"ds_write_b64 {v(VQW+ft)}, {v(d,2)} offset:{th*256}")
            d2[2*ft](); d2[2*ft+1]()
        self.wait_vm("t0_11")
        self.barrier()
        for jj in range(12):
            self.ds(f"ds_read_b128 {a(AQP+4*jj,4)}, {v(VQR+(jj&3))} offset:{jj*1024}", f"q{jj}")
            self.ds(f"ds_read_b128 {a(AKF+4*jj,4)}, {v(VK0+(jj&1))} offset:{jj*1024}", f"k0_{jj}", needs=["own"] + [f"t0_{q}" for q in range(12)])
        self.stamp(11)
        self.rounds()
        self.stamp(12)
        self.tail()
        self.rare()

    def kread(self, r, k):
        def f():
            if k % 3 == 0: self.wait_vm(f"t{r}_{k+2}")
            self.ds(f"ds_read_b128 {a(AKF+4*k,4)}, {v(VK0+(k&1))} offset:{(r%3)*12288 + k*1024}", f"k{r}_{k}", needs=[f"t{r}_{k}"])
        return f
    def vread(self, r, m, e2):
        s_, ct = divmod(m, 6)
        def f():
            self.ds(f"ds_read_b64_tr_b16 {a(AVF+(ct*2+s_)*4+2*e2,2)}, {v(VV0+e2)} offset:{(r%3)*12288 + ct*2048 + s_*512}", f"v{r}_{m}")
        return f
    def smfma(self, r, jj):
        S = VSB[r & 1]
        def f():
            self.wait_lg(f"k{r}_{jj}")
            if r == 0: self.wait_lg(f"q{jj}")
            self.I(f"v_mfma_f32_32x32x16_bf16 {v(S,16)}, {a(AKF+4*jj,4)}, {a(AQP+4*jj,4)}, {v(VNM,16) if jj == 0 else v(S,16)}")
        return f
    def pmfma(self, r, m, order=None):
        s_, ct = divmod(m, 6) if order is None else order
        def f():
            self.wait_lg(f"v{r}_{s_*6+ct}")
            C_ = "0" if (r == 0 and s_ == 0) else v(VO+16*ct, 16)
            self.I(f"v_mfma_f32_32x32x16_bf16 {v(VO+16*ct,16)}, {a(AVF+(ct*2+s_)*4,4)}, {v(VPB+4*s_,4)}, {C_}")
        return f
    def sm_half(self, r, h):
        I = self.I; S = VSB[r & 1]; b = 8 * h
        ex = []
        for k in range(8):
            def f(k=k):
                I(f"v_exp_f32 {v(VE+b+k)}, {v(S+b+k)}")
                if k >= 2 or h == 1:
                    p = b + k - 2
                    if p == 0: pass
                    elif p == 1: I(f"v_add_f32 {v(VTS)}, {v(VE)}, {v(VE+1)}")
                    elif p == 2: I(f"v_mov_b32 {v(VTS2)}, {v(VE+2)}") if False else None
                    elif p == 3: I(f"v_add_f32 {v(VTS2)}, {v(VE+2)}, {v(VE+3)}")
                    else: I(f"v_add_f32 {v((VTS, VTS2)[p & 1])}, {v((VTS, VTS2)[p & 1])}, {v(VE+p)}")
            ex.append(f)
        cv = [(lambda k=k: I(f"v_cvt_pk_bf16_f32 {v(VPB+4*h+k)}, {v(VE+b+2*k)}, {v(VE+b+2*k+1)}")) for k in range(4)]
        return ex, cv
    def mask22(self, r):
        def f():
            I = self.I; S = VSB[r & 1]
            I(f"s_cmp_eq_u32 {S_R22}, {r}")
            I(f"s_cbranch_scc0 L_nm{r}", pat=f"nm{r}")
            for k in (13, 14, 15): I(f"v_mov_b32 {v(S+k)}, {NINF}")
            I(f"v_mov_b32 v57, {NINF}")
            I(f"v_cndmask_b32 {v(S+12)}, {v(S+12)}, v57, {S_MASKH}")
            self.L(f"L_nm{r}")
        return f
    def check(self, r):
        I = self.I
        I(f"v_add_f32 {v(VTS)}, {v(VTS)}, {v(VE+14)}")
        I(f"v_add_f32 {v(VTS2)}, {v(VTS2)}, {v(VE+15)}")
        I(f"v_add_f32 {v(VTS)}, {v(VTS)}, {v(VTS2)}")
        I(f"v_add_f32 v57, {v(VL)}, {v(VTS)}")
        I(f"v_cmp_nge_f32 vcc, {S_C0}, {v(VTS)}")
        I(f"v_cmp_gt_f32 s[34:35], {S_C1}, v57")
        I("s_or_b64 vcc, vcc, s[34:35]")
        I(f"s_cbranch_vccnz L_rare_{r}", pat=f"rare{r}")
        self.L(f"L_back_{r}")
        I(f"v_add_f32 {v(VL)}, {v(VL)}, {v(VTS)}")

    def rounds(self):
        q = [(0, 11, [self.kread(1, k) for k in range(12)]),
             (0, 11, [self.vread(0, m, e) for m in range(12) for e in range(2)]),
             (1, 11, self.dma_items(2, range(6, 12)))]
        self.phase([self.smfma(0, jj) for jj in range(12)], q)
        for r in range(1, 6):
            q = []
            e2, c2 = self.sm_half(r - 1, 1)
            if r == 1:
                e1, c1 = self.sm_half(0, 0)
                q.append((2, 6, e1)); q.append((6, 6, [self.mask22(0)])); q.append((7, 10, e2))
                q.append((7, 9, c1)); q.append((11, 11, c2))
            else:
                q.append((0, 0, [self.mask22(r - 1)])); q.append((0, 8, e2)); q.append((3, 10, c2))
            if r + 1 < 6: q.append((0, 11, [self.kread(r + 1, k) for k in range(12)]))
            free = lambda r=r: self.wait_lg(f"v{r-1}_11")
            q.append((1, 1, [free]))
            q.append((1, 11, self.dma_items(r + 2, range(8))))
            self.phase([self.smfma(r, jj) for jj in range(12)], q)
            self.check(r - 1)
            e1, c1 = self.sm_half(r, 0)
            q = [(0, 11, [self.vread(r, m, e) for m in range(12) for e in range(2)])]
            if r == 5: q.append((2, 2, [self.mask_dummy]))
            q.append((3 if r == 5 else 2, 9, e1)); q.append((8, 11, c1))
            q.append((0, 7, self.dma_items(r + 2, range(8, 12))))
            self.phase([self.pmfma(r - 1, m) for m in range(12)], q)
    def mask_dummy(self):
        I = self.I; S = VSB[1]
        I(f"s_cmp_eq_u32 {S_W}, 3")
        I("s_cbranch_scc0 L_ndum", pat="ndum")
        for k in range(16): I(f"v_mov_b32 {v(S+k)}, {NINF}")
        self.L("L_ndum")

    def tail(self):
        I = self.I
        e2, c2 = self.sm_half(5, 1)
        self.mask22(5)()
        for f in e2: f()
        for f in c2: f()
        self.check(5)
        I(f"v_mov_b32 v62, {v(VL)}")
        I(f"v_mov_b32 v63, {v(VL)}")
        order = [(s_, ct) for ct in range(6) for s_ in range(2)]
        pv = [self.pmfma(5, 0, o) for o in order]
        pv[0]()
        I(f"v_sub_f32 v88, 0, {v(VNM)}")
        I("v_permlane32_swap_b32 v62, v63")
        I("v_add_f32 v89, v62, v63")
        pv[1]()
        self.ds(f"ds_write_b64 {v(VML)}, v[88:89]")
        I(f"v_add_u32 v62, {S_RING2}, {v(VD)}")
        pv[2](); pv[3]()
        self.vm_all()
        rd = [f"ds_read_b128 {a(AWV+4*q,4)}, v62 offset:{q*1024}" for q in range(12)]
        rd += [f"ds_read_b128 {a(AWV+48+4*q,4)}, v62 offset:{12288+q*1024}" for q in range(6)]
        rd += [f"ds_read_b128 {v(VPD+4*ft,4)}, {v(VR1+(ft&1))} offset:{ft*1024}" for ft in range(3)]
        ri = 0
        for n in range(4, 12):
            pv[n]()
            for _ in range(3):
                if ri < len(rd): self.ds(rd[ri], "wv"); ri += 1
        assert ri == len(rd)
        self.wait_lg()
        for d in range(4):
            I(f"s_cmp_eq_u32 {S_W}, {d}")
            I(f"s_cbranch_scc1 L_own{d}", pat=f"own{d}")
            if d == 3: self.nop(4)
            for u in range(6):
                I(f"ds_write_b128 {v(VEX)}, {v(VO+24*d+4*u,4)} offset:{(d*6+u)*1024}")
            I(f"s_branch L_nxt{d}")
            self.L(f"L_own{d}")
            if d == 3: self.nop(4)
            for r in range(24): I(f"v_mov_b32 {v(64+r)}, {v(VO+24*d+r)}")
            self.L(f"L_nxt{d}")
        XI = 96
        for ft in range(3):
            b = VPD + 4*ft
            I(f"v_permlane16_swap_b32 {v(b)}, {v(b+2)}")
            I(f"v_permlane16_swap_b32 {v(b+1)}, {v(b+3)}")
        self.wait_vm("mu")
        for ft in range(3):
            for th in range(2):
                src = VPD + 4*ft + 2*th; d = XI + (ft*2+th)*4
                I(f"v_lshlrev_b32 {v(d)}, 16, {v(src)}")
                I(f"v_and_b32 {v(d+1)}, 0xffff0000, {v(src)}")
                I(f"v_lshlrev_b32 {v(d+2)}, 16, {v(src+1)}")
                I(f"v_and_b32 {v(d+3)}, 0xffff0000, {v(src+1)}")
        for ft in range(3):
            for th in range(2):
                d = XI + (ft*2+th)*4
                for r in range(4): I(f"v_fma_f32 {v(d+r)}, {v(d+r)}, {v(VMU+2*th+1)}, {v(VMU+2*th)}")
        I("s_waitcnt lgkmcnt(0)")
        I("s_barrier")
        self.lgq, self.lg_done = [], 0
        for k in range(1, 4): self.ds(f"ds_read_b64 {v(88+2*k,2)}, {v(VMLR+k-1)}", "ml")
        for k in range(1, 4):
            for u in range(6):
                self.ds(f"ds_read_b128 {v(VO+(k-1)*24+4*u,4)}, {v(VEXR+k-1)} offset:{u*1024}", f"o{k}")
        self.wait_lg("ml")
        I("v_max3_f32 v57, v88, v90, v92")
        I("v_max_f32 v57, v57, v94")
        for src in (88, 90, 92, 94): I(f"v_sub_f32 {v(src)}, {v(src)}, v57")
        for src in (88, 90, 92, 94): I(f"v_exp_f32 {v(src)}, {v(src)}")
        I("s_nop 0")
        I("v_mul_f32 v57, v88, v89")
        for src in (90, 92, 94): I(f"v_fmac_f32 v57, {v(src)}, {v(src+1)}")
        I("v_rcp_f32 v57, v57")
        I("s_nop 0")
        for src in (88, 90, 92, 94): I(f"v_mul_f32 {v(src)}, {v(src)}, v57")
        for src in (88, 90, 92, 94): I(f"v_mov_b32 {v(src+1)}, {v(src)}")
        for r in range(0, 24, 2): I(f"v_pk_mul_f32 {v(64+r,2)}, {v(64+r,2)}, v[88:89]")
        self.wait_lg("o1")
        for r in range(0, 24, 2): I(f"v_pk_fma_f32 {v(64+r,2)}, {v(VO+r,2)}, v[90:91], {v(64+r,2)}")
        self.wait_lg("o2")
        for r in range(0, 24, 2): I(f"v_pk_fma_f32 {v(64+r,2)}, {v(VO+24+r,2)}, v[92:93], {v(64+r,2)}")
        self.wait_lg("o3")
        for u in range(6):
            for h2 in range(2):
                r = 4*u + 2*h2
                I(f"v_pk_fma_f32 {v(64+r,2)}, {v(VO+48+r,2)}, v[94:95], {v(64+r,2)}")
            I(f"v_cvt_pk_bf16_f32 {v(120+2*(u&3))}, {v(64+4*u)}, {v(65+4*u)}")
            I(f"v_cvt_pk_bf16_f32 {v(121+2*(u&3))}, {v(66+4*u)}, {v(67+4*u)}")
            self.ds(f"ds_write_b64 {v(VOW+u)}, {v(120+2*(u&3),2)} offset:{u*512}")
        self.stamp(13)
        self.barrier()
        for ks in range(6):
            for th in range(2):
                self.ds(f"ds_read_b128 {a((th*6+ks)*4,4)}, {v(VHR2+(ks&1))} offset:{ks*2048+th*256}", f"f{ks}")
        for ks in range(6):
            self.wait_lg(f"f{ks}")
            for ft in range(3):
                for th in range(2):
                    D = v(XI+(ft*2+th)*4, 4)
                    I(f"v_mfma_f32_16x16x32_bf16 {D}, {a(AWV+(ft*6+ks)*4,4)}, {a((th*6+ks)*4,4)}, {D}")
        self.nop(3)
        if self.dbg.get("perturb"):
            self.nop(8)
            I(f"s_lshl_b32 s31, {S_J}, 5")
            I(f"s_add_u32 s31, s31, {S_X8}")
            I(f"s_lshl_b32 s31, s31, 2")
            I(f"s_add_u32 s31, s31, {S_W}")
            I("s_cmp_lg_u32 s31, 0")
            I("s_cbranch_scc1 L_nopert", pat="nopert")
            I("s_mov_b64 exec, 1")
            I(f"v_add_f32 {v(XI)}, {hx(f2u(self.dbg['perturb'] / 1000.0))}, {v(XI)}")
            I("s_mov_b64 exec, -1")
            self.L("L_nopert")
        for ft in range(3):
            for th in range(2):
                b = XI+(ft*2+th)*4; d = 64 + ft*4 + th*2
                I(f"v_cvt_pk_bf16_f32 {v(d)}, {v(b)}, {v(b+1)}")
                I(f"v_cvt_pk_bf16_f32 {v(d+1)}, {v(b+2)}, {v(b+3)}")
            if ft:
                d = 64 + (ft-1)*4
                I(f"v_permlane16_swap_b32 {v(d)}, {v(d+2)}")
                I(f"v_permlane16_swap_b32 {v(d+1)}, {v(d+3)}")
                I(f"buffer_store_dwordx4 {v(d,4)}, {v(VOUT)}, {srd(SOUT)}, 0 offen offset:{(ft-1)*32}")
        I("s_nop 0")
        I("v_permlane16_swap_b32 v72, v74")
        I("v_permlane16_swap_b32 v73, v75")
        I(f"buffer_store_dwordx4 v[72:75], {v(VOUT)}, {srd(SOUT)}, 0 offen offset:64")
        if self.dbg.get("stamps"):
            I("s_waitcnt vmcnt(0)")
            self.stamp(14)
            self.stamps_out()
        I("s_branch L_end")

    def rare(self):
        I = self.I
        for r in range(6):
            self.L(f"L_rare_{r}")
            I(f"s_mov_b32 {S_RND}, {r}")
            I(f"s_branch L_rare_p{r & 1}")
        for p in range(2):
            S, Sn = VSB[p], VSB[1 - p]
            self.L(f"L_rare_p{p}")
            self.nop(12)
            I(f"v_max3_f32 v57, {v(S)}, {v(S+1)}, {v(S+2)}")
            for r in range(3, 15, 2): I(f"v_max3_f32 v57, v57, {v(S+r)}, {v(S+r+1)}")
            I(f"v_max_f32 v57, v57, {v(S+15)}")
            I("v_mov_b32 v62, v57")
            I(f"v_mov_b32 v63, {v(VL)}")
            I(f"v_mov_b32 v46, {v(VL)}")
            self.nop(1)
            I("v_permlane32_swap_b32 v57, v62")
            I("v_permlane32_swap_b32 v63, v46")
            I("v_max_f32 v57, v57, v62")
            I("v_add_f32 v63, v63, v46")
            I("v_max_f32 v62, 0, v57")
            I("v_cmp_eq_f32 vcc, 0, v63")
            self.nop(2)
            I("v_cndmask_b32 v57, v62, v57, vcc")
            I("v_sub_f32 v62, 0, v57")
            I("v_exp_f32 v62, v62")
            I("s_nop 0")
            I("v_cndmask_b32 v62, v62, 1.0, vcc")
            I(f"s_cmp_eq_u32 {S_RND}, 0")
            I(f"s_cbranch_scc1 L_rare_noO{p}", pat=f"noO{p}")
            for r in range(96): I(f"v_mul_f32 {v(VO+r)}, {v(VO+r)}, v62")
            self.L(f"L_rare_noO{p}")
            I(f"v_mul_f32 {v(VL)}, {v(VL)}, v62")
            for r in range(16): I(f"v_sub_f32 {v(VNM+r)}, {v(VNM+r)}, v57")
            for r in range(16): I(f"v_sub_f32 {v(S+r)}, {v(S+r)}, v57")
            I(f"s_cmp_eq_u32 {S_RND}, 5")
            I(f"s_cbranch_scc1 L_rare_noN{p}", pat=f"noN{p}")
            for r in range(16): I(f"v_sub_f32 {v(Sn+r)}, {v(Sn+r)}, v57")
            self.L(f"L_rare_noN{p}")
            for r in range(16): I(f"v_exp_f32 {v(VE+r)}, {v(S+r)}")
            I("s_nop 0")
            I(f"v_add_f32 {v(VTS)}, {v(VE)}, {v(VE+1)}")
            for r in range(2, 16): I(f"v_add_f32 {v(VTS)}, {v(VTS)}, {v(VE+r)}")
            for k in range(8): I(f"v_cvt_pk_bf16_f32 {v(VPB+k)}, {v(VE+2*k)}, {v(VE+2*k+1)}")
            for r in range(p, 6, 2):
                I(f"s_cmp_eq_u32 {S_RND}, {r}")
                I(f"s_cbranch_scc1 L_back_{r}", pat=f"ret{r}")
            I("s_branch L_end")

    def build(self):
        self.entry(); self.s1(); self.handoff(); self.s2(); self.fusion()
        self.L("L_end"); self.I("s_endpgm"); self.L("L_codeend")
        return self.p

HEADER = """; TimeSformer block (temporal attention + spatial attention), one persistent launch.
; Workgroups with id>>3 < 9 fuse the spatial weights (Wq Wk^T, Wv Wo) and prefetch weights and code into L2.
; @launch grid=(256,1,1) block=(256,1,1) lds=%d
.amdgcn_target "amdgcn-amd-amdhsa--gfx950"
.text
.globl %s
.p2align 8
.type %s,@function
"""
FOOTER = """
.section .rodata,"a"
.p2align 6
.amdhsa_kernel %s
  .amdhsa_next_free_vgpr 512
  .amdhsa_next_free_sgpr 102
  .amdhsa_accum_offset 256
  .amdhsa_group_segment_fixed_size 0
  .amdhsa_kernarg_size 64
  .amdhsa_user_sgpr_count 2
  .amdhsa_user_sgpr_kernarg_segment_ptr 1
  .amdhsa_system_sgpr_workgroup_id_x 1
  .amdhsa_float_denorm_mode_32 3
.end_amdhsa_kernel
"""

def scenarios():
    base = {"L_fdone": [1], "L_hpoll": [0], "L_end": [0]}
    out = {}
    for w in range(4):
        for rare in (None, 0, 1, 2, 3, 4, 5):
            for r22 in (99, 0, 3, 5):
                if rare is not None and r22 not in (99, rare): continue
                c = dict(base)
                c.update({"w0": [1 if w == 0 else 0], "hwait": [0 if w == 0 else 1], "nosig": [0 if w == 0 else 1],
                          "nostat": [0 if w == 0 else 1], "ndum": [0 if w == 3 else 1]})
                for d in range(4): c[f"own{d}"] = [1 if d == w else 0]
                for r in range(6):
                    c[f"nm{r}"] = [0 if r == r22 else 1]
                    c[f"rare{r}"] = [1 if r == rare else 0]
                    c[f"ret{r}"] = [1 if r == rare else 0]
                for p in range(2):
                    c[f"noO{p}"] = [1 if rare == 0 else 0]; c[f"noN{p}"] = [1 if rare == 5 else 0]
                out[f"main_w{w}_rare{rare}_m{r22}"] = c
    out["fus_m"] = {"L_fusion": [1], "L_fus_vo": [0], "L_fus_nozero": [0], "L_end": [0, 0]}
    out["fus_vo"] = {"L_fusion": [1], "L_fus_vo": [1], "L_fus_nozero": [1], "L_end": [0, 1]}
    return out

def generate(path, dbg=None):
    g = Gen(dbg); p = g.build()
    errs = []
    for name, ch in scenarios().items():
        tr = p.trace(KNAME, ch)
        errs += check_hazards(tr, name) + check_waits(tr, name)
    uniq = list(dict.fromkeys(e.split("]", 1)[1] for e in errs))
    for e in uniq[:40]: print(e)
    print(f"{len(uniq)} checker findings; {len(p.ins)} lines")
    open(path, "w").write(HEADER % (LDS_BYTES, KNAME, KNAME) + p.text() + FOOTER % KNAME)
    return len(uniq)

def parse_opts(args):
    d = {}
    for x in args:
        if "=" in x:
            k, val = x.split("="); d[k] = int(val)
        else: d[x] = 1
    return d

if __name__ == "__main__":
    out = sys.argv[1] if len(sys.argv) > 1 else "standalone__video_timesformer__vision.s"
    generate(out, parse_opts(sys.argv[2:]))
```

```python
import struct, sys
from asmdsl import *

def f2u(x): return struct.unpack("<I", struct.pack("<f", x))[0]
def hx(x): return "0x%08x" % (x & 0xffffffff)

KNAME = "standalone__video_timesformer__vision_kernel"
T, N, C = 8, 729, 192
XFRAME = N * 384
TILEB, NT = 12288, 23
FRAMEB = NT * TILEB
WS_H2, WS_STAT, WS_WM, WS_WVO, WS_SYNC, WS_STAMP, WS_SIZE = 0, 0x240000, 0x480000, 0x4A0000, 0x4C0000, 0x4D0000, 0x500000
X_BYTES = T * N * 384
WQKV_BYTES, WO_BYTES = 192 * 1152, 192 * 384
OOB = 0x40000000
SCALE_L2E = (C ** -0.5) * 1.4426950408889634
SPIN_MAX = 1 << 20
HI_THR, LO_THR = 2.0 ** 30, 2.0 ** -30
NINF = "0xff800000"

SX, SWQ, SWO, SWS, SOUT, SDBG = 4, 8, 12, 16, 20, 24
def srd(b): return f"s[{b}:{b+3}]"
S_W, S_J, S_X8 = "s28", "s29", "s30"
S_1152, S_384, S_SOFF, S_RING = "s37", "s38", "s39", "s40"
S_MASKP, S_MASKH = "s[42:43]", "s[44:45]"
S_TOF = ["s46", "s47", "s48", "s49", "s50", "s51"]
S_R22 = "s52"
S_ST = ("s55", "s56", "s57")
S_FBASE, S_RING2 = "s59", "s60"
S_C0, S_C1, S_C2 = "s61", "s62", "s63"
S_WV0, S_H2O, S_STO, S_RND = "s64", "s65", "s66", "s67"
STAMP0 = 70

R1 = 9
L_H, L_X, L_O, L_SX, L_ST = 110592, 122880, 135168, 147456, 155648
L_Q, L_ML = 147456, 159744
LDS_BYTES = 160768

def v(n, k=1): return f"v{n}" if k == 1 else f"v[{n}:{n+k-1}]"
def a(n, k=1): return f"a{n}" if k == 1 else f"a[{n}:{n+k-1}]"

VXO, VA, VB, VTR, VHR, VXR, VHW, VST = 2, 3, 6, 9, 10, 12, 15, 16
VD, VK0, VK1, VV0, VV1, VSTA, VSTW, VSTR = 17, 20, 21, 22, 23, 24, 25, 26
VHR2, VQW, VOUT, VOWN, VQR, VOW = 28, 30, 33, 34, 35, 39
VML, VEX, VEXR, VMLR = 45, 47, 48, 51
VL, VTS = 54, 56
VTS2 = 57
VMU = 58
VR1 = 26
XR, F, AQ, AK, AV, AO, TP, PT = 64, 76, 100, 124, 148, 172, 196, 240
AH, AW, AOF = 0, 48, 84
VSB, VE, VNM, VO, VPB, VPD = (64, 80), 96, 112, 128, 224, 232
AQP, AKF, AVF, AWV, AM = 0, 48, 96, 144, 48

class Gen:
    def __init__(self, dbg=None):
        self.p = Prog(); self.dbg = dbg or {}
        self.vmq, self.vm_done, self.lgq, self.lg_done = [], 0, [], 0
        self.clock = 0.0; self.pace = None
    def cost(self, t):
        mn = t.split()[0]
        if mn == "s_nop": return 4 * (int(t.split()[1]) + 1)
        if mn in TRANS: return 8.3
        if mn.startswith("v_mfma"): return 16 if "16x16" in mn else 32
        return 4.3
    def I(self, t, **k):
        self.p.I(t, **k)
        self.clock += self.cost(t.strip())
        if self.pace is not None: self.pace()
    def L(self, n): self.p.L(n)
    def nop(self, n):
        while n > 0:
            k = min(n, 16); self.I(f"s_nop {k-1}"); n -= k
    def vm(self, text, tag):
        save, self.pace = self.pace, None
        self.I(text, tag=tag); self.vmq.append(tag); self.pace = save
    def ds(self, text, tag="", needs=()):
        self.lgq.append(tag); self.I(text, tag=tag or None, needs=needs)
    def wait_vm(self, tag):
        idx = max(i for i, t in enumerate(self.vmq) if t == tag)
        if idx < self.vm_done: return
        n = len(self.vmq) - 1 - idx
        self.vm_done = idx + 1
        self.I(f"s_waitcnt vmcnt({n})")
    def wait_lg(self, tag=None):
        idx = len(self.lgq) - 1 if tag is None else max(i for i, t in enumerate(self.lgq) if t == tag)
        if idx < self.lg_done: return
        n = min(len(self.lgq) - 1 - idx, 15)
        self.lg_done = len(self.lgq) - n
        self.I(f"s_waitcnt lgkmcnt({n})")
    def vm_all(self):
        self.I("s_waitcnt vmcnt(0)"); self.vm_done = len(self.vmq)
    def barrier(self):
        self.wait_lg(); self.I("s_barrier")

    def stamp(self, k):
        if self.dbg.get("stamps") and k < 15 and (not self.dbg.get("fine") or k in (0, 14)):
            self.p.I(f"s_memrealtime s[{STAMP0+2*k}:{STAMP0+2*k+1}]")
    def fst(self, mode, name):
        if self.dbg.get("stamps") and self.dbg.get("fine") == mode:
            self.nf = getattr(self, "nf", 0) + 1
            assert self.nf < 14
            self.fnames = getattr(self, "fnames", []) + [name]
            self.p.I(f"s_memrealtime s[{STAMP0+2*self.nf}:{STAMP0+2*self.nf+1}]")
    def stamps_out(self):
        I = self.I
        I("s_memtime s[34:35]")
        I("s_waitcnt lgkmcnt(0)")
        I("s_sub_u32 s36, s34, s100")
        I("s_lshl_b32 s31, s2, 2")
        I(f"s_add_u32 s31, s31, {S_W}")
        I("s_lshl_b32 s31, s31, 7")
        I(f"s_add_u32 s31, s31, {WS_STAMP}")
        I("v_mov_b32 v2, s31")
        I("s_mov_b64 exec, 1")
        for k in range(15):
            I(f"v_mov_b32 v3, s{STAMP0+2*k}")
            I(f"buffer_store_dword v3, v2, {srd(SWS)}, 0 offen offset:{4*k}")
        I("v_mov_b32 v3, s36")
        I(f"buffer_store_dword v3, v2, {srd(SWS)}, 0 offen offset:64")
        I("s_mov_b64 exec, -1")

    def srd_load(self, base, karg_off): self.I(f"s_load_dwordx2 s[{base}:{base+1}], s[0:1], {karg_off}")
    def srd_const(self, base, nbytes):
        self.I(f"s_mov_b32 s{base+2}, {hx(nbytes)}")
        self.I(f"s_mov_b32 s{base+3}, 0x20000")
    def mk_srd(self, base, karg_off, nbytes):
        self.srd_load(base, karg_off); self.srd_const(base, nbytes)

    def xg_reduce_add(self, regs_, tmps):
        I = self.I
        for swap in ("v_permlane16_swap_b32", "v_permlane32_swap_b32"):
            for r, t in zip(regs_, tmps): I(f"v_mov_b32 {v(t)}, {v(r)}")
            self.nop(max(0, 2 - (len(regs_) - 1)))
            for r, t in zip(regs_, tmps): I(f"{swap} {v(r)}, {v(t)}")
            for r, t in zip(regs_, tmps): I(f"v_add_f32 {v(r)}, {v(r)}, {v(t)}")

    def phase(self, mfmas, queues):
        n = len(mfmas); slots = [[] for _ in range(n)]
        for g0, g1, items in queues:
            for i, it in enumerate(items):
                slots[min(n - 1, g0 + i * (g1 - g0 + 1) // max(1, len(items)))].append(it)
        for g in range(n):
            mfmas[g]()
            for it in slots[g]: it()

    def phase2(self, mfmas, pinned, flex):
        n = len(mfmas)
        total = sum(c for l in pinned.values() for c, _ in l) + sum(c for q in flex for c, _ in q["items"])
        level = max(self.dbg.get("lvl", 16), total / n)
        placed = {q["name"]: 0 for q in flex}
        done_before = dict(placed)
        for g in range(n):
            mfmas[g]()
            cost = 0
            for c, fn in pinned.get(g, []):
                fn(); cost += c
            cnt = {q["name"]: 0 for q in flex}
            while True:
                best = None
                for q in flex:
                    i = placed[q["name"]]; m = len(q["items"])
                    if i >= m or g < q["g0"]: continue
                    g1 = q.get("g1", n - 1)
                    lag = m * min(1.0, (g - q["g0"] + 1) / (g1 - q["g0"] + 1)) - i
                    last = g == n - 1
                    if q.get("dep") and not q["dep"](i, placed if last else done_before): continue
                    if not last:
                        if cnt[q["name"]] >= q.get("per", 2): continue
                        c = q["items"][i][0]
                        if lag < 1.0 and (lag <= 0.0 or cost + c > level + 3): continue
                    if best is None or lag > best[0]: best = (lag, q)
                if best is None: break
                q = best[1]; i = placed[q["name"]]
                q["items"][i][1](); cost += q["items"][i][0]
                placed[q["name"]] += 1; cnt[q["name"]] += 1
            done_before = dict(placed)
        for q in flex: assert placed[q["name"]] == len(q["items"]), (q["name"], placed)

    def entry(self):
        I = self.I
        self.L(KNAME)
        self.stamp(0)
        if self.dbg.get("stamps"): I("s_memtime s[100:101]")
        I("s_cmp_ge_u32 s2, 256")
        I("s_cbranch_scc1 L_end")
        if self.dbg.get("epf", 1):
            I("s_getpc_b64 s[32:33]")
            self.L("L_pc")
            I("v_lshlrev_b32 v2, 7, v0")
            I("v_min_u32 v3, L_codeend-L_pc-4, v2")
            self.vm("global_load_dword v255, v3, s[32:33]", "cpf")
        I("s_lshr_b32 s3, s2, 3")
        I(f"s_and_b32 {S_X8}, s2, 7")
        I("s_cmp_lt_u32 s3, 9")
        I("s_cbranch_scc1 L_fusion")

    def fusion(self):
        I = self.I
        self.L("L_fusion")
        self.mk_srd(SX, 8, WQKV_BYTES)
        self.mk_srd(SOUT, 16, WO_BYTES)
        self.mk_srd(SWQ, 24, WQKV_BYTES)
        self.mk_srd(SWO, 32, WO_BYTES)
        self.mk_srd(SDBG, 48, 256)
        self.mk_srd(SWS, 56, WS_SIZE)
        I("v_lshlrev_b32 v2, 7, v0")
        I("v_and_b32 v1, 63, v0")
        I("v_lshrrev_b32 v5, 6, v0")
        I("s_lshl_b32 s31, s3, 15")
        I(f"v_readfirstlane_b32 {S_W}, v5")
        I("v_add_u32 v2, s31, v2")
        I(f"v_subrev_u32 v3, {WQKV_BYTES}, v2")
        I("v_and_b32 v6, 15, v1")
        I("v_lshrrev_b32 v7, 4, v1")
        I("v_mul_u32_u24 v8, 1152, v6")
        I("v_lshl_add_u32 v8, v7, 4, v8")
        I("s_lshl_b32 s34, s3, 3")
        I(f"s_add_u32 s34, s34, {S_X8}")
        I("s_lshl_b32 s35, s34, 2")
        I(f"s_add_u32 s35, s35, {S_W}")
        I("s_cmp_ge_u32 s35, 144")
        I("s_cselect_b32 s36, 1, 0")
        I("s_cselect_b32 s31, 144, 0")
        I("s_sub_u32 s35, s35, s31")
        I("s_mul_i32 s37, s35, 43691")
        I("s_lshr_b32 s37, s37, 19")
        I("s_mul_i32 s38, s37, 12")
        I("s_sub_u32 s38, s35, s38")
        I("s_mul_i32 s39, s37, 18432")
        I("s_mul_i32 s40, s36, 768")
        I("s_add_u32 s39, s39, s40")
        I("s_waitcnt lgkmcnt(0)")
        I(f"buffer_load_dword v9, v2, {srd(SX)}, 0 offen")
        I(f"buffer_load_dword v10, v3, {srd(SOUT)}, 0 offen")
        for ks in range(6):
            I(f"buffer_load_dwordx4 {v(16+4*ks,4)}, v8, {srd(SWQ)}, s39 offen offset:{64*ks}")
        I("s_cmp_eq_u32 s36, 1")
        I("s_cbranch_scc1 L_fus_vo")
        I("s_mul_i32 s39, s38, 18432")
        I("s_add_u32 s39, s39, 384")
        for ks in range(6):
            I(f"buffer_load_dwordx4 {v(40+4*ks,4)}, v8, {srd(SWQ)}, s39 offen offset:{64*ks}")
        I("s_and_b32 s31, s37, 1")
        I("s_lshl_b32 s31, s31, 1")
        I("v_lshrrev_b32 v11, 1, v7")
        I("v_add_u32 v11, s31, v11")
        I("v_lshlrev_b32 v12, 1, v11")
        I("v_mov_b32 v13, 0x78")
        I("v_lshrrev_b32 v12, v12, v13")
        I("v_and_b32 v11, 3, v12")
        I(f"s_mov_b32 s40, {hx(f2u(SCALE_L2E))}")
        I(f"s_mov_b32 s41, {WS_WM}")
        I("s_waitcnt vmcnt(0)")
        for ks in range(6):
            I(f"v_mfma_f32_16x16x32_bf16 v[64:67], {v(16+4*ks,4)}, {v(40+4*ks,4)}, {'0' if ks == 0 else 'v[64:67]'}")
        self.nop(8)
        for r in range(4): I(f"v_mul_f32 {v(64+r)}, s40, {v(64+r)}")
        I("s_branch L_fus_store")
        self.L("L_fus_vo")
        I("v_lshrrev_b32 v11, 1, v1")
        I("v_and_b32 v12, 12, v11")
        I("v_lshlrev_b32 v12, 1, v12")
        I("v_lshrrev_b32 v13, 2, v11")
        I("v_and_b32 v13, 4, v13")
        I("v_and_b32 v14, 3, v11")
        I("v_or3_b32 v12, v12, v13, v14")
        I("v_mul_u32_u24 v12, 384, v12")
        I("v_and_b32 v13, 1, v1")
        I("v_lshl_add_u32 v12, v13, 4, v12")
        I("s_lshl_b32 s39, s38, 5")
        I(f"s_mul_i32 s40, {S_W}, 6144")
        for ks in range(6):
            I(f"s_add_u32 m0, s40, {ks*1024}")
            I(f"s_add_u32 s41, s39, {ks*32*384}")
            I(f"buffer_load_dwordx4 v12, {srd(SWO)}, s41 offen lds", tag=f"fvo{ks}")
        I("v_lshlrev_b32 v13, 3, v1")
        I("v_add_u32 v13, s40, v13")
        I("s_and_b32 s31, s37, 1")
        I("s_lshl_b32 s31, s31, 1")
        I("v_lshrrev_b32 v11, 1, v7")
        I("v_add_u32 v11, s31, v11")
        I(f"s_mov_b32 s41, {WS_WVO}")
        I("s_waitcnt vmcnt(0)")
        for ks in range(6):
            I(f"ds_read_b64_tr_b16 {v(40+4*ks,2)}, v13 offset:{ks*1024}", needs=[f"fvo{ks}"])
            I(f"ds_read_b64_tr_b16 {v(42+4*ks,2)}, v13 offset:{ks*1024+512}", needs=[f"fvo{ks}"])
        I("s_waitcnt lgkmcnt(0)")
        for ks in range(6):
            I(f"v_mfma_f32_16x16x32_bf16 v[64:67], {v(16+4*ks,4)}, {v(40+4*ks,4)}, {'0' if ks == 0 else 'v[64:67]'}")
        self.nop(8)
        self.L("L_fus_store")
        I("v_cvt_pk_bf16_f32 v68, v64, v65")
        I("v_cvt_pk_bf16_f32 v69, v66, v67")
        I("v_lshl_add_u32 v11, v11, 4, v6")
        I("v_lshlrev_b32 v11, 4, v11")
        I("v_and_b32 v12, 1, v7")
        I("v_lshl_add_u32 v11, v12, 3, v11")
        I("s_mul_i32 s39, s38, 6")
        I("s_lshr_b32 s40, s37, 1")
        I("s_add_u32 s39, s39, s40")
        I("s_lshl_b32 s39, s39, 10")
        I("s_add_u32 s39, s39, s41")
        I(f"buffer_store_dwordx2 v[68:69], v11, {srd(SWS)}, s39 offen sc1")
        I("s_cmp_ge_u32 s34, 8")
        I("s_cbranch_scc1 L_fus_nozero")
        for r in range(70, 74): I(f"v_mov_b32 v{r}, 0")
        I("v_lshlrev_b32 v12, 4, v0")
        I("s_lshl_b32 s39, s34, 12")
        I(f"s_add_u32 s39, s39, {WS_SYNC}")
        I(f"buffer_store_dwordx4 v[70:73], v12, {srd(SWS)}, s39 offen sc1")
        self.L("L_fus_nozero")
        I("s_waitcnt vmcnt(0)")
        I("s_barrier")
        I(f"s_cmp_lg_u32 {S_W}, 0")
        I("s_cbranch_scc1 L_end")
        I("v_mov_b32 v12, 0")
        I("v_mov_b32 v13, 1")
        I("s_mov_b64 exec, 1")
        I(f"buffer_atomic_add v13, v12, {srd(SDBG)}, 0 offen sc1")
        I("s_branch L_end")

    def s1_soff(self, s):
        m, ks = divmod(s, 6)
        return ks * 32 * 1152 + m * 384 if m < 3 else ks * 32 * 384
    def s1_dma_one(self):
        d = self.dnext; s, ii = divmod(d, 3); m = s // 6
        save, self.pace = self.pace, None
        if ii == 0:
            self.I(f"s_add_u32 m0, {S_RING}, {(s % R1) * 3072}")
            self.I(f"s_mov_b32 {S_SOFF}, {self.s1_soff(s)}")
        base = VA if m < 3 else VB
        self.vm(f"buffer_load_dwordx4 {v(base+ii)}, {srd(SWQ) if m < 3 else srd(SWO)}, {S_SOFF} offen offset:{ii*1024} lds", f"w{s}_{ii}")
        self.dnext += 1; self.last_dma = self.clock; self.pace = save
    def s1_allowed(self): return self.dnext < 72 and self.dnext // 3 - R1 <= self.consumed
    def s1_pace(self):
        last = self.p.ins[-1].mn
        if last.startswith("s_cmp") or last.startswith("s_cselect"): return
        if self.s1_allowed() and self.clock - self.last_dma >= self.period: self.s1_dma_one()
    def s1_ensure(self, step):
        while self.dnext < 72 and self.dnext // 3 <= step:
            assert self.s1_allowed(), (self.dnext, self.consumed)
            self.s1_dma_one()

    def setup_s1a(self):
        I = self.I
        t = [100 + i for i in range(7)]
        I(f"v_lshrrev_b32 {v(t[0])}, 2, v1")
        I(f"v_and_b32 {v(t[1])}, 3, v1")
        I(f"v_mul_u32_u24 {v(t[0])}, 96, {v(t[0])}")
        I(f"v_lshl_add_u32 {v(t[0])}, {v(t[1])}, 3, {v(t[0])}")
        I(f"v_add_u32 {v(VTR)}, {S_RING}, {v(t[0])}")
        I(f"v_lshrrev_b32 {v(t[0])}, 3, v1")
        I(f"v_and_b32 {v(t[1])}, 7, v1")
        I(f"v_lshl_add_u32 {v(t[0])}, {S_W}, 3, {v(t[0])}")
        I(f"v_xor_b32 {v(t[0])}, {v(t[0])}, {v(t[1])}")
        I(f"v_lshlrev_b32 {v(t[0])}, 4, {v(t[0])}")
        I(f"v_lshl_add_u32 {v(t[0])}, {v(t[1])}, 9, {v(t[0])}")
        I(f"v_add_u32 {v(VHW)}, {L_H}, {v(t[0])}")
        tk, g = t[5], t[6]
        I(f"v_and_b32 {v(tk)}, 15, v1")
        I(f"v_lshrrev_b32 {v(g)}, 4, v1")
        I(f"v_xor_b32 {v(t[0])}, {v(tk)}, {v(g)}")
        I(f"v_lshlrev_b32 {v(t[2])}, 9, {v(g)}")
        I(f"v_xor_b32 {v(t[1])}, 4, {v(t[0])}")
        I(f"v_add_u32 {v(t[2])}, {L_H}, {v(t[2])}")
        I(f"v_lshl_add_u32 {v(VHR)}, {v(t[0])}, 4, {v(t[2])}")
        I(f"v_lshl_add_u32 {v(VHR+1)}, {v(t[1])}, 4, {v(t[2])}")
    def setup_s1b(self):
        I = self.I
        t = [TP + i for i in range(7)]
        tk, g = t[5], t[6]
        I(f"v_and_b32 {v(tk)}, 15, v1")
        I(f"v_lshrrev_b32 {v(g)}, 4, v1")
        I(f"s_mul_i32 s31, {S_W}, 6")
        I(f"v_lshrrev_b32 {v(t[0])}, 1, {v(g)}")
        I(f"v_add_u32 {v(t[1])}, s31, {v(t[0])}")
        I(f"v_and_b32 {v(t[2])}, 1, {v(g)}")
        I(f"v_lshlrev_b32 {v(t[3])}, 3, {v(t[2])}")
        I(f"v_add_u32 {v(t[3])}, {L_X}, {v(t[3])}")
        for ft in range(3):
            I(f"v_add_u32 {v(t[4])}, {2*ft}, {v(t[1])}")
            I(f"v_and_b32 {v(VXR+ft)}, 7, {v(t[4])}")
            I(f"v_xor_b32 {v(VXR+ft)}, {v(VXR+ft)}, {v(tk)}")
            I(f"v_lshlrev_b32 {v(VXR+ft)}, 4, {v(VXR+ft)}")
            I(f"v_lshl_add_u32 {v(VXR+ft)}, {v(t[4])}, 9, {v(VXR+ft)}")
            I(f"v_add_u32 {v(VXR+ft)}, {v(VXR+ft)}, {v(t[3])}")
        I(f"v_lshrrev_b32 {v(t[1])}, 3, {v(tk)}")
        I(f"v_cmp_eq_u32 {S_MASKP}, {v(t[0])}, {v(t[1])}")
    def setup_s1c(self):
        I = self.I
        t = [TP + 32 + i for i in range(7)]
        tk, g = t[5], t[6]
        I(f"v_and_b32 {v(tk)}, 15, v1")
        I(f"v_lshrrev_b32 {v(g)}, 4, v1")
        I(f"v_lshrrev_b32 {v(t[0])}, 1, {v(g)}")
        I(f"v_and_b32 {v(t[2])}, 1, {v(g)}")
        I(f"v_lshl_add_u32 {v(t[3])}, {v(t[2])}, 4, {v(tk)}")
        I(f"v_and_b32 {v(t[4])}, 7, {v(t[3])}")
        I(f"v_lshrrev_b32 {v(t[3])}, 3, {v(t[3])}")
        I(f"v_mul_u32_u24 {v(t[1])}, {FRAMEB}, {v(t[4])}")
        I(f"s_bfe_u32 s31, {S_X8}, 0x10001")
        I(f"v_lshl_add_u32 {v(t[1])}, {v(t[3])}, 4, {v(t[1])}")
        I(f"v_xor_b32 {v(VST)}, s31, {v(t[0])}")
        I(f"v_lshl_add_u32 {v(VST)}, {v(VST)}, 6, {v(t[1])}")
        I(f"v_mul_u32_u24 {v(t[4])}, 736, {v(t[4])}")
        I(f"s_lshl_b32 s31, {S_J}, 5")
        I(f"s_lshl_b32 s34, {S_X8}, 2")
        I(f"v_add_u32 {v(t[4])}, {v(t[4])}, {v(t[3])}")
        I("s_add_u32 s31, s31, s34")
        I(f"v_add_u32 {v(t[4])}, s31, {v(t[4])}")
        I(f"v_cmp_lt_u32 {S_MASKH}, 31, v1")
        I(f"v_lshlrev_b32 {v(t[4])}, 3, {v(t[4])}")
        I(f"v_mov_b32 {v(t[1])}, {hx(OOB)}")
        I(f"v_add_u32 {v(t[4])}, {WS_STAT}, {v(t[4])}")
        I(f"s_lshl_b32 s31, {S_W}, 8")
        I(f"v_cndmask_b32 {v(VSTA)}, {v(t[4])}, {v(t[1])}, {S_MASKH}")
        I(f"v_lshlrev_b32 {v(t[4])}, 3, {v(tk)}")
        I(f"s_add_u32 s31, s31, {L_ST}")
        I(f"v_add_u32 {v(VSTR)}, {L_ST}, {v(t[4])}")
        I(f"v_add_u32 {v(VSTW)}, s31, {v(t[4])}")
    def setup_s1d(self):
        I = self.I
        I(f"s_mul_i32 s35, {S_J}, {TILEB}")
        I(f"s_mul_i32 s31, {S_W}, 3")
        for ft in range(3):
            if ft: I("s_add_u32 s31, s31, 1")
            I("s_and_b32 s34, s31, 1")
            I(f"s_xor_b32 s34, s34, {S_X8}")
            I("s_lshl_b32 s34, s34, 7")
            I(f"s_lshl_b32 {S_ST[ft]}, s31, 10")
            I(f"s_add_u32 {S_ST[ft]}, {S_ST[ft]}, s34")
            I(f"s_add_u32 {S_ST[ft]}, {S_ST[ft]}, s35")

    def s1(self):
        I = self.I
        self.srd_load(SX, 0); self.srd_load(SWQ, 8); self.srd_load(SWO, 16)
        I("v_lshrrev_b32 v100, 6, v0")
        I("v_and_b32 v1, 63, v0")
        I(f"s_sub_u32 {S_J}, s3, 9")
        I(f"v_readfirstlane_b32 {S_W}, v100")
        I(f"s_lshl_b32 s31, {S_J}, 5")
        I(f"s_lshl_b32 s34, {S_X8}, 2")
        I("s_add_u32 s31, s31, s34")
        I("v_lshrrev_b32 v100, 3, v1")
        I("v_and_b32 v101, 7, v1")
        I(f"s_add_u32 s31, s31, {S_W}")
        I("s_mul_i32 s34, s31, 384")
        I(f"s_cmp_ge_u32 s31, {N}")
        I(f"s_cselect_b32 s34, {hx(OOB)}, s34")
        I(f"v_mul_u32_u24 v102, {XFRAME}, v100")
        I("v_lshl_add_u32 v102, v101, 4, v102")
        I(f"v_add_u32 {v(VXO)}, s34, v102")
        self.srd_const(SX, X_BYTES)
        self.fst(1, "pre-karg")
        I("s_waitcnt lgkmcnt(0)")
        self.fst(1, "kargs")
        for ii in range(3):
            self.vm(f"buffer_load_dwordx4 {v(XR+4*ii,4)}, {v(VXO)}, {srd(SX)}, 0 offen offset:{128*ii}", f"x{ii}")
        self.fst(1, "x issued")
        self.srd_load(SWS, 56); self.srd_load(SDBG, 48); self.srd_load(SOUT, 40)
        self.srd_const(SWQ, WQKV_BYTES); self.srd_const(SWO, WO_BYTES)
        I(f"s_mov_b32 {S_1152}, 1152")
        I(f"s_mov_b32 {S_384}, 384")
        I(f"s_mul_i32 s35, {S_W}, 96")
        I(f"s_mul_i32 {S_RING}, {S_W}, {R1*3072}")
        I(f"v_lshlrev_b32 {v(VD)}, 4, v1")
        I("s_movk_i32 s36, -96")
        I(f"v_add_u32 v104, s35, {v(VD)}")
        for ii in range(3):
            if ii:
                I(f"v_add_u32 v100, {64*ii}, v1")
                I("v_mul_u32_u24 v101, 171, v100")
            else:
                I("v_mul_u32_u24 v101, 171, v1")
            I("v_lshrrev_b32 v101, 10, v101")
            I("v_and_b32 v102, 12, v101")
            I("v_lshrrev_b32 v103, 4, v101")
            I("v_add_u32 v102, v102, v101")
            I("v_mad_i32_i24 v100, v101, s36, v104")
            I("v_mad_i32_i24 v102, v103, -12, v102")
            I(f"v_mad_u32_u24 {v(VA+ii)}, v102, {S_1152}, v100")
            I(f"v_mad_u32_u24 {v(VB+ii)}, v102, {S_384}, v100")
        self.fst(1, "dma addr")
        self.dnext, self.consumed, self.last_dma = 0, -1, self.clock
        self.s1_ensure(self.dbg.get("pre", 2) - 1)
        self.fst(1, "pre dma")
        self.period = self.dbg.get("p0", 64)
        self.setup_s1a()
        self.srd_const(SWS, WS_SIZE); self.srd_const(SDBG, 256); self.srd_const(SOUT, X_BYTES)
        self.s1_ensure(self.dbg.get("pre2", 3) - 1)
        self.fst(1, "setup")
        I("s_waitcnt lgkmcnt(0)")
        self.stamp(1)
        self.wait_vm("x2")
        self.stamp(2)
        self.fst(1, "x arrived")
        self.last_dma = self.clock
        self.pace = self.s1_pace
        X = XR
        for k in range(12):
            I(f"v_lshlrev_b32 {v(F+2*k)}, 16, {v(X+k)}")
            I(f"v_and_b32 {v(F+2*k+1)}, 0xffff0000, {v(X+k)}")
        I(f"v_pk_add_f32 v[100:101], {v(F,2)}, {v(F+2,2)}")
        I(f"v_pk_mul_f32 v[102:103], {v(F,2)}, {v(F,2)}")
        I(f"v_pk_fma_f32 v[102:103], {v(F+2,2)}, {v(F+2,2)}, v[102:103]")
        for k in range(2, 12):
            I(f"v_pk_add_f32 v[100:101], v[100:101], {v(F+2*k,2)}")
            I(f"v_pk_fma_f32 v[102:103], {v(F+2*k,2)}, {v(F+2*k,2)}, v[102:103]")
        I("v_add_f32 v100, v100, v101")
        I("v_add_f32 v102, v102, v103")
        I(f"s_mov_b32 {S_C0}, {hx(f2u(1.0/192))}")
        for mod in ("quad_perm:[1,0,3,2]", "quad_perm:[2,3,0,1]", "row_half_mirror"):
            I("s_nop 0")
            I(f"v_add_f32_dpp v100, v100, v100 {mod} row_mask:0xf bank_mask:0xf")
            I(f"v_add_f32_dpp v102, v102, v102 {mod} row_mask:0xf bank_mask:0xf")
        I(f"s_mov_b32 {S_C1}, {hx(f2u(1e-5))}")
        I(f"v_mul_f32 v100, {S_C0}, v100")
        I(f"v_mov_b32 v101, {S_C1}")
        I(f"v_fmac_f32 v101, {S_C0}, v102")
        I("v_fma_f32 v101, -v100, v100, v101")
        I(f"v_max_f32 v101, {S_C1}, v101")
        I("v_rsq_f32 v102, v101")
        I("s_nop 0")
        I("v_mul_f32 v100, v100, v102")
        I("v_mov_b32 v103, v102")
        I("v_mov_b32 v101, v100")
        for k in range(12):
            I(f"v_pk_fma_f32 {v(F+2*k,2)}, {v(F+2*k,2)}, v[102:103], v[100:101] neg_lo:[0,0,1] neg_hi:[0,0,1]")
        for k in range(12):
            I(f"v_cvt_pk_bf16_f32 {v(F+k)}, {v(F+2*k)}, {v(F+2*k+1)}")
            if k % 4 == 3:
                ii = k // 4
                self.ds(f"ds_write_b128 {v(VHW)}, {v(F+4*ii,4)} offset:{ii*4096}")
                self.ds(f"ds_write_b128 {v(VHW)}, {v(X+4*ii,4)} offset:{ii*4096 + (L_X-L_H)}")
        self.fst(1, "LN math")
        self.barrier()
        self.fst(1, "LN barrier")
        for ks in range(6):
            for th in range(2):
                self.ds(f"ds_read_b128 {a(AH+(th*6+ks)*4,4)}, {v(VHR+(ks&1))} offset:{ks*2048+th*256}", f"h{ks}")
        self.stamp(3)
        self.setup_s1b()
        self.period = self.dbg.get("p1", 70)

        def trread(s, ft, e2):
            buf = AW + (s % 3) * 12
            self.ds(f"ds_read_b64_tr_b16 {a(buf+ft*4+e2*2,2)}, {v(VTR)} offset:{(s%R1)*3072 + e2*1536 + ft*32}",
                    f"W{s}_{ft}", needs=[f"w{s}_{ii}" for ii in range(3)])
        def mfma(s, ft, th):
            m, ks = divmod(s, 6)
            W = a(AW + (s % 3) * 12 + ft*4, 4)
            if m < 2:
                D = v((AQ if m == 0 else AK) + (ft*2+th)*4, 4)
                I(f"v_mfma_f32_16x16x32_bf16 {D}, {W}, {a(AH+(th*6+ks)*4,4)}, {'0' if ks == 0 else D}")
            elif m == 2:
                D = v(AV + (ft*2+th)*4, 4)
                I(f"v_mfma_f32_16x16x32_bf16 {D}, {a(AH+(th*6+ks)*4,4)}, {W}, {'0' if ks == 0 else D}")
            else:
                D = v(AO + (ft*2+th)*4, 4)
                I(f"v_mfma_f32_16x16x32_bf16 {D}, {W}, {a(AOF+(th*6+ks)*4,4)}, {D}")
        def step(s):
            m, ks = divmod(s, 6)
            if s + 1 < 24:
                self.s1_ensure(min(s + 1 + self.dbg.get("lead", 3), self.consumed + R1))
                self.wait_vm(f"w{s+1}_2")
            if m < 3 and s < 6: self.wait_lg(f"h{ks}")
            if m == 3: self.wait_lg(f"of{ks}")
            for ft in range(3):
                self.wait_lg(f"W{s}_{ft}")
                if ft == 2: self.consumed = s
                for th in range(2):
                    mfma(s, ft, th)
                    if s + 1 < 24: trread(s + 1, ft, th)

        def xinit():
            for ft in range(3):
                for th in range(2):
                    self.ds(f"ds_read_b64 {v(TP+32+(ft*2+th)*2,2)}, {v(VXR+ft)} offset:{th*256}", "xi")
        def xinit_unpack():
            self.wait_lg("xi")
            for ft in range(3):
                for th in range(2):
                    src = TP+32 + (ft*2+th)*2; d = AO + (ft*2+th)*4
                    I(f"v_lshlrev_b32 {v(d)}, 16, {v(src)}")
                    I(f"v_and_b32 {v(d+1)}, 0xffff0000, {v(src)}")
                    I(f"v_lshlrev_b32 {v(d+2)}, 16, {v(src+1)}")
                    I(f"v_and_b32 {v(d+3)}, 0xffff0000, {v(src+1)}")
        def s_partial():
            self.nop(3)
            for base, dst in ((AQ, TP), (AK, TP+12)):
                for ft in range(3):
                    for th in range(2):
                        src = base + (ft*2+th)*4; d = dst + th*6 + ft*2
                        I(f"v_cvt_pk_bf16_f32 {v(d)}, {v(src)}, {v(src+1)}")
                        I(f"v_cvt_pk_bf16_f32 {v(d+1)}, {v(src+2)}, {v(src+3)}")
            I(f"s_lshl_b32 s31, {S_W}, 11")
            I(f"s_add_u32 s31, s31, {L_SX}")
            for th in range(2):
                I(f"v_mfma_f32_16x16x32_bf16 {v(TP+24+4*th,4)}, {v(TP+12+th*6,4)}, {v(TP+th*6,4)}, 0")
            I(f"v_add_u32 v57, s31, {v(VD)}")
            I(f"v_add_u32 v62, {L_SX}, {v(VD)}")
            for th in range(2):
                I(f"v_mfma_f32_16x16x16_bf16 {v(TP+24+4*th,4)}, {v(TP+12+th*6+4,2)}, {v(TP+th*6+4,2)}, {v(TP+24+4*th,4)}")
            self.nop(7)
            for th in range(2):
                self.ds(f"ds_write_b128 v57, {v(TP+24+4*th,4)} offset:{th*1024}", "sp")
        def softmax_read():
            for w in range(4):
                for th in range(2):
                    self.ds(f"ds_read_b128 {v(TP+(w*2+th)*4,4)}, v62 offset:{w*2048+th*1024}", "sr")
        def softmax_t():
            b0 = TP
            self.wait_lg("sr")
            I(f"s_mov_b32 {S_C2}, {hx(f2u(SCALE_L2E))}")
            for th in range(2):
                for h in range(2):
                    b = b0 + th*4 + 2*h
                    I(f"v_pk_add_f32 {v(b,2)}, {v(b,2)}, {v(b+8,2)}")
                    I(f"v_pk_add_f32 {v(b+16,2)}, {v(b+16,2)}, {v(b+24,2)}")
            for th in range(2):
                for h in range(2):
                    b = b0 + th*4 + 2*h
                    I(f"v_pk_add_f32 {v(b,2)}, {v(b,2)}, {v(b+16,2)}")
            m, t = b0 + 8, b0 + 10
            for th in range(2): I(f"v_max3_f32 {v(m+th)}, {v(b0+th*4)}, {v(b0+th*4+1)}, {v(b0+th*4+2)}")
            for th in range(2): I(f"v_max_f32 {v(m+th)}, {v(m+th)}, {v(b0+th*4+3)}")
            for th in range(2): I(f"v_mov_b32 {v(t+th)}, {v(m+th)}")
            self.nop(1)
            for th in range(2): I(f"v_permlane16_swap_b32 {v(m+th)}, {v(t+th)}")
            for th in range(2): I(f"v_max_f32 {v(m+th)}, {v(m+th)}, {v(t+th)}")
            for th in range(2): I(f"v_mul_f32 {v(m+th)}, {S_C2}, {v(m+th)}")
            for th in range(2):
                for r in range(4): I(f"v_fma_f32 {v(b0+th*4+r)}, {v(b0+th*4+r)}, {S_C2}, -{v(m+th)}")
            for th in range(2):
                for r in range(4): I(f"v_exp_f32 {v(b0+th*4+r)}, {v(b0+th*4+r)}")
            I("s_nop 0")
            for th in range(2):
                I(f"v_add_f32 {v(m+th)}, {v(b0+th*4)}, {v(b0+th*4+1)}")
                I(f"v_add_f32 {v(t+th)}, {v(b0+th*4+2)}, {v(b0+th*4+3)}")
            for th in range(2): I(f"v_add_f32 {v(m+th)}, {v(m+th)}, {v(t+th)}")
            for th in range(2): I(f"v_mov_b32 {v(t+th)}, {v(m+th)}")
            self.nop(1)
            for th in range(2): I(f"v_permlane16_swap_b32 {v(m+th)}, {v(t+th)}")
            for th in range(2): I(f"v_add_f32 {v(m+th)}, {v(m+th)}, {v(t+th)}")
            for th in range(2): I(f"v_rcp_f32 {v(m+th)}, {v(m+th)}")
            I("s_nop 0")
            for th in range(2):
                for r in range(4): I(f"v_mul_f32 {v(b0+th*4+r)}, {v(b0+th*4+r)}, {v(m+th)}")
            for th in range(2):
                I(f"v_cvt_pk_bf16_f32 {v(PT+2*th)}, {v(b0+th*4)}, {v(b0+th*4+1)}")
                I(f"v_cvt_pk_bf16_f32 {v(PT+1+2*th)}, {v(b0+th*4+2)}, {v(b0+th*4+3)}")
            for r in range(4): I(f"v_cndmask_b32 {v(PT+r)}, 0, {v(PT+r)}, {S_MASKP}")
        def pv_t():
            self.nop(3)
            for ft in range(3):
                for th in range(2):
                    src = AV + (ft*2+th)*4; d = TP + (ft*2+th)*2
                    I(f"v_cvt_pk_bf16_f32 {v(d)}, {v(src)}, {v(src+1)}")
                    I(f"v_cvt_pk_bf16_f32 {v(d+1)}, {v(src+2)}, {v(src+3)}")
            I("s_nop 0")
            for ft in range(3):
                for th in range(2):
                    I(f"v_mfma_f32_16x16x16_bf16 {v(AV+(ft*2+th)*4,4)}, {v(TP+(ft*2+th)*2,2)}, {v(PT+2*th,2)}, 0")
            self.nop(3)
            for ft in range(3):
                for th in range(2):
                    src = AV + (ft*2+th)*4; d = TP+12 + (ft*2+th)*2
                    I(f"v_cvt_pk_bf16_f32 {v(d)}, {v(src)}, {v(src+1)}")
                    I(f"v_cvt_pk_bf16_f32 {v(d+1)}, {v(src+2)}, {v(src+3)}")
                    self.ds(f"ds_write_b64 {v(VXR+ft)}, {v(d,2)} offset:{(L_O-L_X)+th*256}", "ow")
            self.barrier()
            for ks in range(6):
                for th in range(2):
                    self.ds(f"ds_read_b128 {a(AOF+(th*6+ks)*4,4)}, {v(VHR+(ks&1))} offset:{(L_O-L_H)+ks*2048+th*256}", f"of{ks}")
            self.setup_s1d()

        self.wait_vm("w0_2")
        self.fst(1, "w0 landed")
        for ft in range(3):
            for e2 in range(2): trread(0, ft, e2)
        for s in range(24):
            if s == 8: xinit()
            step(s)
            if s == 8: xinit_unpack()
            if s == 11:
                self.stamp(5)
                self.fst(4, "step11")
                s_partial()
                self.fst(4, "s_partial")
            if s == 12:
                self.fst(4, "step12")
                self.wait_lg("sp"); I("s_barrier")
                self.fst(4, "sp barrier")
                softmax_read()
                self.setup_s1c()
                self.fst(4, "s1c")
            if s == 13:
                self.fst(4, "step13")
                softmax_t()
                self.fst(4, "softmax")
            if s == 17:
                self.stamp(6)
                self.fst(4, "step17")
                pv_t()
                self.fst(4, "pv+gather")
            if s in (18, 21, 23): self.fst(4, f"step{s}")
            if s == 5: self.stamp(4)
            if s in (0, 2): self.fst(1, f"step{s}")
            if self.dnext == 72 and "fus" not in self.vmq:
                I("v_mov_b32 v62, 0") if s > 13 else None
                assert s > 13
                self.vm(f"buffer_load_dword v63, v62, {srd(SDBG)}, 0 offen sc1", "fus")
            if s == 22: self.fusion_check()
        self.pace = None
        self.stamp(7)
        self.ln2_store()
        self.stamp(8)

    def fusion_check(self):
        I = self.I
        self.wait_vm("fus")
        I(f"s_mov_b32 s31, {SPIN_MAX}")
        self.L("L_fpoll")
        I("v_cmp_le_u32 vcc, 72, v63")
        I("s_cbranch_vccnz L_fdone")
        I(f"buffer_load_dword v63, v62, {srd(SDBG)}, 0 offen sc1")
        I("s_sub_u32 s31, s31, 1")
        I("s_waitcnt vmcnt(0)")
        I("s_cmp_lg_u32 s31, 0")
        I("s_cbranch_scc1 L_fpoll", pat="fspin")
        self.L("L_fdone")
        I(f"s_mul_i32 s31, {S_J}, 52")
        I(f"s_mul_i32 s34, {S_W}, 13")
        I("s_add_u32 s31, s31, s34")
        I("v_min_u32 v62, 12, v1")
        I("v_add_u32 v62, s31, v62")
        I("v_add_u32 v63, 448, v62")
        I("v_cmp_gt_u32 vcc, 576, v62")
        I(f"s_mov_b32 s31, {WS_WM}")
        I("s_nop 0")
        I("v_cndmask_b32 v62, v63, v62, vcc")
        I("v_lshlrev_b32 v62, 7, v62")
        self.vm(f"buffer_load_dword v63, v62, {srd(SWS)}, s31 offen sc1", "pf")

    def ln2_store(self):
        I = self.I
        s1, s2 = TP, TP + 4
        self.nop(2)
        for th in range(2):
            I(f"v_pk_add_f32 {v(s1+2*th,2)}, {v(AO+th*4,2)}, {v(AO+th*4+2,2)}")
            I(f"v_pk_mul_f32 {v(s2+2*th,2)}, {v(AO+th*4,2)}, {v(AO+th*4,2)}")
        for ft in range(3):
            for th in range(2):
                b = AO + (ft*2+th)*4
                if ft:
                    I(f"v_pk_add_f32 {v(s1+2*th,2)}, {v(s1+2*th,2)}, {v(b,2)}")
                    I(f"v_pk_fma_f32 {v(s2+2*th,2)}, {v(b,2)}, {v(b,2)}, {v(s2+2*th,2)}")
                    I(f"v_pk_add_f32 {v(s1+2*th,2)}, {v(s1+2*th,2)}, {v(b+2,2)}")
                I(f"v_pk_fma_f32 {v(s2+2*th,2)}, {v(b+2,2)}, {v(b+2,2)}, {v(s2+2*th,2)}")
        P = TP + 8
        for th in range(2):
            I(f"v_add_f32 {v(P+2*th)}, {v(s1+2*th)}, {v(s1+2*th+1)}")
            I(f"v_add_f32 {v(P+2*th+1)}, {v(s2+2*th)}, {v(s2+2*th+1)}")
        self.xg_reduce_add([P, P+1, P+2, P+3], [TP, TP+1, TP+2, TP+3])
        for th in range(2): self.ds(f"ds_write_b64 {v(VSTW)}, {v(P+2*th,2)} offset:{th*128}")
        I(f"s_mov_b32 {S_C0}, {hx(f2u(1.0/192))}")
        I(f"s_mov_b32 {S_C1}, {hx(f2u(1e-5))}")
        self.barrier()
        RB = XR
        for th in range(2):
            for w in range(4):
                self.ds(f"ds_read_b64 {v(RB+(th*4+w)*2,2)}, {v(VSTR)} offset:{w*256+th*128}", f"st{th}")
        for th in range(2):
            b = RB + th*8
            self.wait_lg(f"st{th}")
            I(f"v_pk_add_f32 {v(b,2)}, {v(b,2)}, {v(b+2,2)}")
            I(f"v_pk_add_f32 {v(b+4,2)}, {v(b+4,2)}, {v(b+6,2)}")
        for th in range(2): I(f"v_pk_add_f32 {v(RB+th*8,2)}, {v(RB+th*8,2)}, {v(RB+th*8+4,2)}")
        for th in range(2):
            b = RB + th*8
            I(f"v_mul_f32 {v(b)}, {S_C0}, {v(b)}")
            I(f"v_mov_b32 {v(b+2)}, {S_C1}")
        for th in range(2): I(f"v_fmac_f32 {v(RB+th*8+2)}, {S_C0}, {v(RB+th*8+1)}")
        for th in range(2): I(f"v_fma_f32 {v(RB+th*8+2)}, -{v(RB+th*8)}, {v(RB+th*8)}, {v(RB+th*8+2)}")
        for th in range(2): I(f"v_max_f32 {v(RB+th*8+6)}, {S_C1}, {v(RB+th*8+2)}")
        for th in range(2): I(f"v_rsq_f32 {v(RB+th*8+2)}, {v(RB+th*8+6)}")
        I("s_nop 0")
        for th in range(2):
            b = RB + th*8
            I(f"v_mul_f32 {v(b+4)}, {v(b)}, {v(b+2)}")
            I(f"v_mov_b32 {v(b+3)}, {v(b+2)}")
            I(f"v_mov_b32 {v(b+5)}, {v(b+4)}")
        HB = TP + 28
        for ft in range(3):
            for th in range(2):
                b = AO + (ft*2+th)*4; rb = RB + th*8
                I(f"v_pk_fma_f32 {v(b,2)}, {v(b,2)}, {v(rb+2,2)}, {v(rb+4,2)} neg_lo:[0,0,1] neg_hi:[0,0,1]")
                I(f"v_pk_fma_f32 {v(b+2,2)}, {v(b+2,2)}, {v(rb+2,2)}, {v(rb+4,2)} neg_lo:[0,0,1] neg_hi:[0,0,1]")
            for th in range(2):
                b = AO + (ft*2+th)*4; d = HB + ft*4 + th*2
                I(f"v_cvt_pk_bf16_f32 {v(d)}, {v(b)}, {v(b+1)}")
                I(f"v_cvt_pk_bf16_f32 {v(d+1)}, {v(b+2)}, {v(b+3)}")
            if ft:
                d = HB + (ft-1)*4
                I(f"v_permlane16_swap_b32 {v(d)}, {v(d+2)}")
                I(f"v_permlane16_swap_b32 {v(d+1)}, {v(d+3)}")
                self.vm(f"buffer_store_dwordx4 {v(d,4)}, {v(VST)}, {srd(SWS)}, {S_ST[ft-1]} offen sc1", "st")
        I(f"v_mul_f32 {v(RB+1)}, {v(RB+6)}, {v(RB+2)}")
        I(f"v_mul_f32 {v(RB+9)}, {v(RB+14)}, {v(RB+10)}")
        I(f"v_permlane16_swap_b32 {v(HB+8)}, {v(HB+10)}")
        I(f"v_permlane16_swap_b32 {v(HB+9)}, {v(HB+11)}")
        self.vm(f"buffer_store_dwordx4 {v(HB+8,4)}, {v(VST)}, {srd(SWS)}, {S_ST[2]} offen sc1", "st")
        I("v_and_b32 v62, 16, v1")
        I("v_cmp_eq_u32 vcc, 0, v62")
        I(f"s_cmp_lg_u32 {S_W}, 0")
        I("s_cbranch_scc1 L_nostat", pat="nostat")
        I(f"v_cndmask_b32 {v(TP)}, {v(RB+8)}, {v(RB)}, vcc")
        I(f"v_cndmask_b32 {v(TP+1)}, {v(RB+9)}, {v(RB+1)}, vcc")
        I(f"buffer_store_dwordx2 {v(TP,2)}, {v(VSTA)}, {srd(SWS)}, 0 offen sc1")
        self.L("L_nostat")

    def setup_s2(self):
        I = self.I; out = []
        def A(t): out.append(lambda t=t: I(t))
        t = [100 + i for i in range(7)]
        tk, g = t[5], t[6]
        A(f"v_and_b32 {v(tk)}, 15, v1"); A(f"v_lshrrev_b32 {v(g)}, 4, v1")
        A(f"s_mul_i32 {S_RING2}, {S_W}, 36864")
        A(f"s_mul_i32 {S_FBASE}, {S_X8}, {FRAMEB}")
        for k in range(2): A(f"v_add_u32 {v(VHR2+k)}, {L_Q - L_H}, {v(VHR+k)}")
        for k in range(3): A(f"v_add_u32 {v(VQW+k)}, {L_Q - L_X}, {v(VXR+k)}")
        A(f"v_lshrrev_b32 {v(t[0])}, 1, {v(g)}")
        A(f"v_and_b32 {v(t[2])}, 1, {v(g)}")
        A(f"v_lshrrev_b32 {v(t[1])}, 3, {v(tk)}")
        A(f"v_xor_b32 {v(t[4])}, {v(t[2])}, {v(t[0])}")
        A(f"v_xor_b32 {v(t[4])}, {v(t[4])}, {v(t[1])}")
        A(f"v_lshlrev_b32 {v(t[4])}, 6, {v(t[4])}")
        A(f"v_lshrrev_b32 {v(VOWN)}, 2, {v(tk)}")
        A(f"v_xor_b32 {v(VOWN)}, {v(VOWN)}, {v(t[2])}")
        A(f"v_lshl_add_u32 {v(t[4])}, {v(VOWN)}, 7, {v(t[4])}")
        A(f"v_lshl_add_u32 {v(t[4])}, {v(t[2])}, 10, {v(t[4])}")
        A(f"v_and_b32 {v(VOWN)}, 3, {v(tk)}")
        A(f"v_lshl_add_u32 {v(VOWN)}, {v(VOWN)}, 4, {v(t[4])}")
        A(f"v_lshl_add_u32 {v(t[3])}, {v(t[2])}, 4, {v(tk)}")
        A(f"s_lshl_b32 s35, {S_J}, 5")
        A(f"v_add_u32 {v(t[4])}, s35, {v(t[3])}")
        A(f"v_cmp_gt_u32 vcc, {N}, {v(t[4])}")
        A(f"s_mul_i32 s34, {S_X8}, {N}")
        A(f"v_add_u32 {v(t[4])}, s34, {v(t[4])}")
        A(f"v_mul_u32_u24 {v(t[4])}, 384, {v(t[4])}")
        A(f"s_mul_i32 s35, {S_W}, 96")
        A(f"v_lshl_add_u32 {v(t[4])}, {v(t[0])}, 4, {v(t[4])}")
        A(f"v_add_u32 {v(t[4])}, s35, {v(t[4])}")
        A(f"v_mov_b32 {v(VOUT)}, {hx(OOB)}")
        A(f"v_cndmask_b32 {v(VOUT)}, {v(VOUT)}, {v(t[4])}, vcc")
        A(f"v_bfe_u32 {v(t[4])}, {v(t[3])}, 3, 1")
        A(f"v_xor_b32 {v(t[4])}, {v(t[4])}, {v(t[0])}")
        A(f"v_lshlrev_b32 {v(t[4])}, 6, {v(t[4])}")
        A(f"v_and_b32 {v(t[1])}, 3, {v(t[3])}")
        A(f"v_lshl_add_u32 {v(t[4])}, {v(t[1])}, 4, {v(t[4])}")
        A(f"v_lshrrev_b32 {v(t[1])}, 2, {v(t[3])}")
        A(f"s_and_b32 s35, {S_W}, 1")
        A(f"v_xor_b32 {v(t[1])}, s35, {v(t[1])}")
        A(f"v_lshl_add_u32 {v(VR1)}, {v(t[1])}, 7, {v(t[4])}")
        A(f"v_xor_b32 {v(t[1])}, 1, {v(t[1])}")
        A(f"v_lshl_add_u32 {v(VR1+1)}, {v(t[1])}, 7, {v(t[4])}")
        A(f"s_add_u32 s34, {S_RING2}, {12288 + 8192}")
        A(f"v_add_u32 {v(VR1)}, s34, {v(VR1)}")
        A(f"v_add_u32 {v(VR1+1)}, s34, {v(VR1+1)}")
        A(f"s_mul_i32 s34, {S_X8}, 736")
        A(f"s_lshl_b32 s35, {S_J}, 5")
        A(f"s_add_u32 s34, s34, s35")
        A(f"s_lshl_b32 s34, s34, 3")
        A(f"s_add_u32 {S_STO}, s34, {WS_STAT}")
        A(f"v_lshlrev_b32 {v(VSTA)}, 3, {v(tk)}")
        A(f"v_xor_b32 {v(t[4])}, {v(t[0])}, {v(t[2])}")
        A(f"v_lshlrev_b32 {v(t[4])}, 7, {v(t[4])}")
        A(f"v_lshl_add_u32 {v(t[4])}, {v(t[2])}, 10, {v(t[4])}")
        A(f"v_bfe_u32 {v(t[1])}, v1, 2, 2")
        A(f"v_lshl_add_u32 {v(t[4])}, {v(t[1])}, 4, {v(t[4])}")
        A(f"v_and_b32 {v(t[1])}, 1, v1")
        A(f"v_lshl_add_u32 {v(t[4])}, {v(t[1])}, 3, {v(t[4])}")
        A(f"v_add_u32 {v(t[4])}, {S_RING2}, {v(t[4])}")
        A(f"v_bfe_u32 {v(t[1])}, v1, 1, 1")
        A(f"v_lshl_add_u32 {v(VV0)}, {v(t[1])}, 6, {v(t[4])}")
        A(f"v_xor_b32 {v(t[1])}, 1, {v(t[1])}")
        A(f"v_lshl_add_u32 {v(t[4])}, {v(t[1])}, 6, {v(t[4])}")
        A(f"v_add_u32 {v(VV1)}, 256, {v(t[4])}")
        A(f"v_and_b32 {v(t[0])}, 31, v1")
        A(f"v_lshrrev_b32 {v(t[1])}, 5, v1")
        A(f"v_lshrrev_b32 {v(t[2])}, 2, {v(t[0])}")
        A(f"v_bfe_u32 {v(t[3])}, {v(t[0])}, 3, 1")
        A(f"v_xor_b32 {v(t[3])}, {v(t[3])}, {v(t[1])}")
        A(f"v_lshlrev_b32 {v(t[3])}, 6, {v(t[3])}")
        A(f"v_and_b32 {v(t[4])}, 3, {v(t[0])}")
        A(f"v_lshl_add_u32 {v(t[3])}, {v(t[4])}, 4, {v(t[3])}")
        A(f"v_add_u32 {v(t[3])}, {S_RING2}, {v(t[3])}")
        A(f"v_lshl_add_u32 {v(VK0)}, {v(t[2])}, 7, {v(t[3])}")
        A(f"v_xor_b32 {v(t[2])}, 1, {v(t[2])}")
        A(f"v_lshl_add_u32 {v(VK1)}, {v(t[2])}, 7, {v(t[3])}")
        A(f"v_lshlrev_b32 {v(t[2])}, 9, {v(t[1])}")
        A(f"v_add_u32 {v(t[2])}, {L_Q}, {v(t[2])}")
        for k in range(4):
            A(f"v_add_u32 {v(t[3])}, {2*k}, {v(t[1])}")
            A(f"v_xor_b32 {v(t[3])}, {v(t[3])}, {v(t[0])}")
            A(f"v_lshl_add_u32 {v(VQR+k)}, {v(t[3])}, 4, {v(t[2])}")
        A(f"v_lshlrev_b32 {v(t[2])}, 3, {v(t[1])}")
        A(f"s_mul_i32 s34, {S_W}, 3072")
        A(f"s_add_u32 s34, s34, {L_Q}")
        A(f"v_add_u32 {v(t[2])}, s34, {v(t[2])}")
        A(f"s_mul_i32 s36, {S_W}, 6")
        for u in range(6):
            A(f"s_add_u32 s35, s36, {u}")
            A("s_and_b32 s35, s35, 7")
            A(f"v_xor_b32 {v(t[3])}, s35, {v(t[0])}")
            A(f"v_lshl_add_u32 {v(VOW+u)}, {v(t[3])}, 4, {v(t[2])}")
        A(f"v_lshlrev_b32 {v(t[0])}, 3, {v(t[0])}")
        A(f"s_lshl_b32 s34, {S_W}, 8")
        A(f"s_add_u32 s34, s34, {L_ML}")
        A(f"v_add_u32 {v(VML)}, s34, {v(t[0])}")
        A(f"v_add_u32 {v(VEX)}, {S_RING2}, {v(VD)}")
        for k in range(1, 4):
            A(f"s_add_u32 s36, {S_W}, {k}")
            A("s_and_b32 s36, s36, 3")
            A("s_lshl_b32 s34, s36, 8")
            A(f"s_add_u32 s34, s34, {L_ML}")
            A(f"v_add_u32 {v(VMLR+k-1)}, s34, {v(t[0])}")
            A("s_mul_i32 s34, s36, 36864")
            A(f"s_mul_i32 s35, {S_W}, 6144")
            A("s_add_u32 s34, s34, s35")
            A(f"v_add_u32 {v(VEXR+k-1)}, s34, {v(VD)}")
        A(f"v_add_u32 {v(VD+1)}, 4096, {v(VD)}")
        A(f"v_add_u32 {v(VD+2)}, 8192, {v(VD)}")
        A(f"s_add_u32 s36, {S_J}, {S_W}")
        A(f"s_mov_b32 {S_R22}, 99")
        for k in range(6):
            if k: A("s_add_u32 s36, s36, 4")
            grp = ["s_cmp_ge_u32 s36, 23", "s_cselect_b32 s34, 23, 0", "s_sub_u32 s36, s36, s34",
                   "s_cmp_eq_u32 s36, 22", f"s_cselect_b32 {S_R22}, {k}, {S_R22}",
                   f"s_mul_i32 {S_TOF[k]}, s36, {TILEB}", f"s_add_u32 {S_TOF[k]}, {S_TOF[k]}, {S_FBASE}"]
            out.append(lambda grp=grp: [I(x) for x in grp])
        A(f"s_mul_i32 {S_WV0}, {S_W}, 18432")
        A(f"s_add_u32 {S_WV0}, {S_WV0}, {WS_WVO}")
        A(f"s_mul_i32 {S_H2O}, {S_J}, {TILEB}")
        A(f"s_add_u32 {S_H2O}, {S_H2O}, {S_FBASE}")
        A(f"s_mul_i32 s34, {S_W}, 3072")
        A(f"s_add_u32 {S_H2O}, {S_H2O}, s34")
        for r in range(16): A(f"v_mov_b32 {v(VNM+r)}, 0")
        A(f"v_mov_b32 {v(VL)}, 0")
        A(f"s_mov_b32 {S_C0}, {hx(f2u(HI_THR))}")
        A(f"s_mov_b32 {S_C1}, {hx(f2u(LO_THR))}")
        return out

    def handoff(self):
        I = self.I
        self.fst(2, "st issued")
        items = self.setup_s2()
        na = int(len(items) * self.dbg.get("fa", 70) / 100)
        for f in items[:na]: f()
        self.fst(2, "setupA")
        self.vm_all()
        self.stamp(9)
        self.fst(2, "drained")
        I("s_barrier")
        I(f"s_cmp_lg_u32 {S_W}, 0")
        I("s_cbranch_scc1 L_nosig", pat="nosig")
        I("v_lshlrev_b32 v62, 12, v1")
        I(f"s_lshl_b32 s31, {S_J}, 7")
        I(f"s_add_u32 s31, s31, {WS_SYNC}")
        I("v_mov_b32 v63, 1")
        I("v_add_u32 v62, s31, v62")
        I("s_mov_b64 exec, 0xff")
        I(f"buffer_atomic_add v63, v62, {srd(SWS)}, 0 offen sc1")
        I("s_mov_b64 exec, -1")
        self.L("L_nosig")
        I(f"s_mul_i32 s31, {S_W}, 18432")
        I(f"s_add_u32 s31, s31, {WS_WM}")
        it = na; per = -(-(len(items) - na) // 18)
        for q in range(18):
            if q % 4 == 0 and q: I(f"s_add_u32 s31, s31, 4096")
            self.vm(f"buffer_load_dwordx4 {a(AM+4*q,4)}, {v(VD)}, {srd(SWS)}, s31 offen offset:{(q%4)*1024} sc1", "wf")
            for _ in range(per):
                if it < len(items): items[it](); it += 1
        while it < len(items): items[it](); it += 1
        self.fst(2, "setupB")
        I(f"s_cmp_lg_u32 {S_W}, 0")
        I("s_cbranch_scc1 L_hwait", pat="hwait")
        I("v_min_u32 v62, 22, v1")
        I("v_lshlrev_b32 v62, 7, v62")
        I(f"s_lshl_b32 s31, {S_X8}, 12")
        I(f"s_add_u32 s31, s31, {WS_SYNC}")
        I(f"s_mov_b32 s34, {SPIN_MAX}")
        self.L("L_hpoll")
        I(f"buffer_load_dword v63, v62, {srd(SWS)}, s31 offen sc1")
        I("s_sub_u32 s34, s34, 1")
        I("s_cmp_eq_u32 s34, 0")
        I("s_cbranch_scc1 L_hwait", pat="hspin")
        I("s_waitcnt vmcnt(0)")
        I("v_cmp_gt_u32 vcc, 8, v63")
        I("s_cbranch_vccnz L_hpoll")
        self.L("L_hwait")
        I("s_barrier")
        self.stamp(10)
        self.fst(2, "go")

    def tile_src(self, r, grp):
        if r < 6: return S_TOF[r], []
        if r == 6: return S_WV0, []
        if grp < 2: return "s36", [f"s_add_u32 s36, {S_WV0}, 12288"]
        return S_H2O, []
    def m0_for(self, r, grp):
        so, pre = self.tile_src(r, grp)
        self.I(f"s_add_u32 m0, {S_RING2}, {(r % 3) * 12288 + grp * 4096}")
        for x in pre: self.I(x)
    def dma_items(self, r, parts, chain=False):
        out = []
        for part in parts:
            def f(part=part):
                grp = part // 4
                so, pre = self.tile_src(r, grp)
                if part % 4 == 0 and not chain:
                    self.m0_for(r, grp)
                    if not pre: self.I("s_nop 0")
                lane = VD if (r == 7 and grp == 2) else VD + grp
                self.vm(f"buffer_load_dwordx4 {v(lane)}, {srd(SWS)}, {so} offen offset:{(part%4)*1024} sc1 lds", f"t{r}_{part}")
                if chain and part % 4 == 3:
                    if part < 11: self.m0_for(r, grp + 1)
                    elif r < 7: self.m0_for(r + 1, 0)
            out.append(f)
        return out

    def s2(self):
        I = self.I
        I(f"s_sub_u32 s35, {S_H2O}, 0")
        I(f"s_mul_i32 s36, {S_W}, 3072")
        I("s_mov_b32 m0, s36")
        I("s_nop 0")
        for q in range(3):
            self.vm(f"buffer_load_dwordx4 {v(VD)}, {srd(SWS)}, s35 offen offset:{q*1024} sc1 lds", "own")
        I(f"s_cmp_eq_u32 {S_W}, 0")
        I("s_cbranch_scc1 L_s2_w0", pat="w0")
        for f in self.dma_items(0, range(12)): f()
        I("s_waitcnt vmcnt(12)")
        I("s_branch L_s2_j")
        self.L("L_s2_w0")
        I("s_waitcnt vmcnt(0)")
        self.L("L_s2_j")
        self.fst(2, "own landed")
        I("s_barrier")
        own_idx = max(i for i, t in enumerate(self.vmq) if t == "own")
        self.vm_done = own_idx + 1
        for ks in range(6):
            for th in range(2):
                self.ds(f"ds_read_b128 {a((th*6+ks)*4,4)}, {v(VOWN)} offset:{ks*2048+th*512}", f"ob{ks}", needs=["own"])
        for th in range(2):
            self.vm(f"buffer_load_dwordx2 {v(VMU+2*th,2)}, {v(VSTA)}, {srd(SWS)}, {S_STO} offen offset:{128*th} sc1", "mu")
        d1 = self.dma_items(1, range(12)); d2 = self.dma_items(2, range(6))
        n = 0
        for ks in range(6):
            self.wait_lg(f"ob{ks}")
            for ft in range(3):
                for th in range(2):
                    D = v(VPD+(ft*2+th)*4, 4)
                    I(f"v_mfma_f32_16x16x32_bf16 {D}, {a(AM+(ft*6+ks)*4,4)}, {a((th*6+ks)*4,4)}, {'0' if ks == 0 else D}", needs=["wf"])
                    n += 1
                    if n % 3 == 0: d1[n // 3 - 1]()
        self.fst(2, "q mfma")
        self.nop(3)
        for ft in range(3):
            for th in range(2):
                b = VPD+(ft*2+th)*4; d = VE + (ft*2+th)*2
                I(f"v_cvt_pk_bf16_f32 {v(d)}, {v(b)}, {v(b+1)}")
                I(f"v_cvt_pk_bf16_f32 {v(d+1)}, {v(b+2)}, {v(b+3)}")
                self.ds(f"ds_write_b64 {v(VQW+ft)}, {v(d,2)} offset:{th*256}")
            d2[2*ft](); d2[2*ft+1]()
        self.wait_vm("t0_11")
        self.barrier()
        self.fst(2, "q barrier")
        for jj in range(12):
            self.ds(f"ds_read_b128 {a(AQP+4*jj,4)}, {v(VQR+(jj&3))} offset:{jj*1024}", f"q{jj}")
            self.ds(f"ds_read_b128 {a(AKF+4*jj,4)}, {v(VK0+(jj&1))} offset:{jj*1024}", f"k0_{jj}", needs=["own"] + [f"t0_{q}" for q in range(12)])
        self.stamp(11)
        self.rounds()
        self.stamp(12)
        self.fst(2, "rounds"); self.fst(3, "rounds")
        self.tail()
        self.rare()

    def kread(self, r, k):
        def f():
            if k % 3 == 0: self.wait_vm(f"t{r}_{k+2}")
            self.ds(f"ds_read_b128 {a(AKF+4*k,4)}, {v(VK0+(k&1))} offset:{(r%3)*12288 + k*1024}", f"k{r}_{k}", needs=[f"t{r}_{k}"])
        return f
    def wvread(self, k):
        def f():
            if k == 0: self.I(f"v_add_u32 v63, {S_RING2}, {v(VD)}")
            if k % 4 == 0: self.wait_vm(f"t6_{k+3}")
            self.ds(f"ds_read_b128 {a(AWV+4*k,4)}, v63 offset:{k*1024}", "wv6", needs=[f"t6_{k}"])
        return f
    def vread(self, r, m, e2):
        s_, ct = divmod(m, 6)
        def f():
            self.ds(f"ds_read_b64_tr_b16 {a(AVF+(ct*2+s_)*4+2*e2,2)}, {v(VV0+e2)} offset:{(r%3)*12288 + ct*2048 + s_*512}", f"v{r}_{m}")
        return f
    def smfma(self, r, jj):
        S = VSB[r & 1]
        def f():
            if r == 0:
                self.wait_lg(f"k0_{jj}")
            elif jj == 0: self.wait_lg(f"k{r}_11")
            self.I(f"v_mfma_f32_32x32x16_bf16 {v(S,16)}, {a(AKF+4*jj,4)}, {a(AQP+4*jj,4)}, {v(VNM,16) if jj == 0 else v(S,16)}")
        return f
    def pmfma(self, r, m, order=None):
        s_, ct = divmod(m, 6) if order is None else order
        def f():
            self.wait_lg(f"v{r}_{s_*6+ct}")
            C_ = "0" if (r == 0 and s_ == 0) else v(VO+16*ct, 16)
            self.I(f"v_mfma_f32_32x32x16_bf16 {v(VO+16*ct,16)}, {a(AVF+(ct*2+s_)*4,4)}, {v(VPB+4*s_,4)}, {C_}")
        return f
    def sm_items(self, r, lo, hi):
        I = self.I; S = VSB[r & 1]
        ex = []
        for k in range(lo, hi):
            def f(k=k):
                I(f"v_exp_f32 {v(VE+k)}, {v(S+k)}")
                p = k - 2
                if p == 1: I(f"v_add_f32 {v(VTS)}, {v(VE)}, {v(VE+1)}")
                elif p == 3: I(f"v_add_f32 {v(VTS+1)}, {v(VE+2)}, {v(VE+3)}")
                elif p >= 4: I(f"v_add_f32 {v(VTS+(p & 1))}, {v(VTS+(p & 1))}, {v(VE+p)}")
            ex.append(f)
        return ex
    def cv_items(self, lo, hi):
        return [(lambda k=k: self.I(f"v_cvt_pk_bf16_f32 {v(VPB+k)}, {v(VE+2*k)}, {v(VE+2*k+1)}")) for k in range(lo, hi)]
    def sm_half(self, r, h):
        return self.sm_items(r, 8*h, 8*h + 8), self.cv_items(4*h, 4*h + 4)
    def mask22(self, r):
        def f():
            I = self.I; S = VSB[r & 1]
            I(f"s_cmp_eq_u32 {S_R22}, {r}")
            I(f"s_cbranch_scc0 L_nm{r}", pat=f"nm{r}")
            for k in (13, 14, 15): I(f"v_mov_b32 {v(S+k)}, {NINF}")
            I(f"v_mov_b32 v62, {NINF}")
            I(f"v_cndmask_b32 {v(S+12)}, {v(S+12)}, v62, {S_MASKH}")
            self.L(f"L_nm{r}")
        return f
    def check_items(self, r):
        I = self.I
        it = [lambda: I(f"v_add_f32 {v(VTS)}, {v(VTS)}, {v(VE+14)}"),
              lambda: I(f"v_add_f32 {v(VTS+1)}, {v(VTS+1)}, {v(VE+15)}"),
              lambda: I(f"v_add_f32 {v(VTS)}, {v(VTS)}, {v(VTS+1)}"),
              lambda: I(f"v_cmp_nge_f32 vcc, {S_C0}, {v(VTS)}")]
        if r == 0:
            it.append(lambda: I(f"v_cmp_gt_f32 s[34:35], {S_C1}, {v(VTS)}"))
            it.append(lambda: I("s_or_b64 vcc, vcc, s[34:35]"))
        return it
    def check_branch(self, r):
        self.I(f"s_cbranch_vccnz L_rare_{r}", pat=f"rare{r}")
        self.L(f"L_back_{r}")
    def l_update(self): self.I(f"v_add_f32 {v(VL)}, {v(VL)}, {v(VTS)}")
    def check(self, r):
        for f in self.check_items(r): f()
        self.check_branch(r); self.l_update()

    def rounds(self):
        d = self.dbg
        n1 = d.get("n1", 10)
        na = d.get("na", 6)
        fg = d.get("fg", 1)
        self.n1 = n1
        def Q(name, items, cost, g0, g1=11, per=2, dep=None):
            return dict(name=name, items=[(cost, f) for f in items], g0=g0, g1=g1, per=per, dep=dep)
        def pin(pinned, gap, cost, f): pinned.setdefault(gap, []).append((cost, f))
        p = {}
        for k in range(12): pin(p, k, 4, self.kread(1, k))
        for m in range(12):
            for e in range(2): pin(p, m, 4, self.vread(0, m, e))
        self.phase2([self.smfma(0, jj) for jj in range(12)], p, [Q("dma", self.dma_items(2, range(6, 12), True), 8, 1, per=1)])
        for r in range(1, 6):
            p = {}; lo = 0 if r == 1 else n1
            if r + 1 < 6:
                for k in range(12): pin(p, k, 4, self.kread(r + 1, k))
            else:
                for k in range(12): pin(p, min(11, k + 1), 4, self.wvread(k))
            ex = self.sm_items(r - 1, lo, 16)
            m22 = self.mask22(r - 1)
            i12 = 12 - lo
            ex[i12] = (lambda f=ex[i12], m=m22: (m(), f()))
            cvlo = 0 if r == 1 else 4
            na = d.get("na1", 6) if r == 1 else d.get("na", 6)
            dm = self.dma_items(r + 2, range(na), True)
            dm[0] = (lambda f=dm[0], r=r: (self.wait_lg(f"v{r-1}_11"), f()))
            nex = len(ex)
            flex = [Q("ex", ex, 12, 3 if r == 1 else 0, d.get("ge1", 9) if r == 1 else d.get("ge", 7), per=3 if r == 1 else 2),
                    Q("dma", dm, 8, fg, 11, per=1),
                    Q("cv", self.cv_items(cvlo, 8), 4, 0, 11, per=2, dep=lambda i, pl, lo=lo, cvlo=cvlo: lo + pl["ex"] >= 2 * (cvlo + i) + 2),
                    Q("ck", self.check_items(r - 1), 4, 8, 11, per=2, dep=lambda i, pl, nex=nex: pl["ex"] >= nex)]
            self.phase2([self.smfma(r, jj) for jj in range(12)], p, flex)
            self.check_branch(r - 1)
            p = {}
            for m in range(12):
                for e in range(2): pin(p, m, 4, self.vread(r, m, e))
            pin(p, 0, 4, self.l_update)
            if r == 5: pin(p, 2, 8, self.mask_dummy)
            flex = [Q("ex", self.sm_items(r, 0, n1), 12, 3 if r == 5 else 2, 11, per=2),
                    Q("dma", self.dma_items(r + 2, range(na, 12), True), 8, 0, d.get("gb", 9), per=1),
                    Q("cv", self.cv_items(0, 4), 4, 6, 11, per=2, dep=lambda i, pl: pl["ex"] >= 2 * i + 2)]
            self.phase2([self.pmfma(r - 1, m) for m in range(12)], p, flex)
    def mask_dummy(self):
        I = self.I; S = VSB[1]
        I(f"s_cmp_eq_u32 {S_W}, 3")
        I("s_cbranch_scc0 L_ndum", pat="ndum")
        for k in range(16): I(f"v_mov_b32 {v(S+k)}, {NINF}")
        self.L("L_ndum")

    def tail(self):
        I = self.I
        self.mask22(5)()
        for f in self.sm_items(5, self.n1, 16): f()
        for f in self.cv_items(4, 8): f()
        self.check(5)
        self.fst(3, "sm5")
        I(f"v_mov_b32 v62, {v(VL)}")
        I(f"v_mov_b32 v63, {v(VL)}")
        order = [(s_, ct) for ct in range(6) for s_ in range(2)]
        pv = [self.pmfma(5, 0, o) for o in order]
        pv[0]()
        I(f"v_sub_f32 v88, 0, {v(VNM)}")
        I("v_permlane32_swap_b32 v62, v63")
        I("v_add_f32 v89, v62, v63")
        pv[1]()
        self.ds(f"ds_write_b64 {v(VML)}, v[88:89]")
        I(f"v_add_u32 v62, {S_RING2}, {v(VD)}")
        pv[2](); pv[3]()
        self.vm_all()
        rd = [f"ds_read_b128 {a(AWV+48+4*q,4)}, v62 offset:{12288+q*1024}" for q in range(6)]
        rd += [f"ds_read_b128 {v(VPD+4*ft,4)}, {v(VR1+(ft&1))} offset:{ft*1024}" for ft in range(3)]
        ri = 0
        for n in range(4, 12):
            pv[n]()
            for _ in range(2):
                if ri < len(rd): self.ds(rd[ri], "wv"); ri += 1
        assert ri == len(rd)
        self.fst(3, "pv5 issued")
        self.wait_lg()
        self.fst(3, "wv read")
        XI = 96
        res = []
        for ft in range(3):
            b = VPD + 4*ft
            res.append(f"v_permlane16_swap_b32 {v(b)}, {v(b+2)}")
            res.append(f"v_permlane16_swap_b32 {v(b+1)}, {v(b+3)}")
        for ft in range(3):
            for th in range(2):
                src = VPD + 4*ft + 2*th; d = XI + (ft*2+th)*4
                res += [f"v_lshlrev_b32 {v(d)}, 16, {v(src)}", f"v_and_b32 {v(d+1)}, 0xffff0000, {v(src)}",
                        f"v_lshlrev_b32 {v(d+2)}, 16, {v(src+1)}", f"v_and_b32 {v(d+3)}, 0xffff0000, {v(src+1)}"]
        for ft in range(3):
            for th in range(2):
                d = XI + (ft*2+th)*4
                for r in range(4): res.append(f"v_fma_f32 {v(d+r)}, {v(d+r)}, {v(VMU+2*th+1)}, {v(VMU+2*th)}")
        self.wait_vm("mu")
        for d in range(4):
            I(f"s_cmp_eq_u32 {S_W}, {d}")
            I(f"s_cbranch_scc1 L_own{d}", pat=f"own{d}")
            if d == 3: self.nop(4)
            for u in range(6):
                I(f"ds_write_b128 {v(VEX)}, {v(VO+24*d+4*u,4)} offset:{(d*6+u)*1024}")
            I(f"s_branch L_nxt{d}")
            self.L(f"L_own{d}")
            if d == 3: self.nop(4)
            for r in range(24): I(f"v_mov_b32 {v(64+r)}, {v(VO+24*d+r)}")
            self.L(f"L_nxt{d}")
            for t in res[d*14:(d+1)*14]: I(t)
        self.fst(3, "ex written")
        self.fst(3, "resid")
        I("s_waitcnt lgkmcnt(0)")
        I("s_barrier")
        self.fst(3, "ex barrier")
        self.lgq, self.lg_done = [], 0
        for k in range(1, 4): self.ds(f"ds_read_b64 {v(88+2*k,2)}, {v(VMLR+k-1)}", "ml")
        for k in range(1, 4):
            for u in range(6):
                self.ds(f"ds_read_b128 {v(VO+(k-1)*24+4*u,4)}, {v(VEXR+k-1)} offset:{u*1024}", f"o{k}")
        self.wait_lg("ml")
        I("v_max3_f32 v55, v88, v90, v92")
        I("v_max_f32 v55, v55, v94")
        for src in (88, 90, 92, 94): I(f"v_sub_f32 {v(src)}, {v(src)}, v55")
        for src in (88, 90, 92, 94): I(f"v_exp_f32 {v(src)}, {v(src)}")
        I("s_nop 0")
        I("v_mul_f32 v55, v88, v89")
        for src in (90, 92, 94): I(f"v_fmac_f32 v55, {v(src)}, {v(src+1)}")
        I("v_rcp_f32 v55, v55")
        I("s_nop 0")
        for src in (88, 90, 92, 94): I(f"v_mul_f32 {v(src)}, {v(src)}, v55")
        for src in (88, 90, 92, 94): I(f"v_mov_b32 {v(src+1)}, {v(src)}")
        for r in range(0, 24, 2): I(f"v_pk_mul_f32 {v(64+r,2)}, {v(64+r,2)}, v[88:89]")
        self.wait_lg("o1")
        for r in range(0, 24, 2): I(f"v_pk_fma_f32 {v(64+r,2)}, {v(VO+r,2)}, v[90:91], {v(64+r,2)}")
        self.wait_lg("o2")
        for r in range(0, 24, 2): I(f"v_pk_fma_f32 {v(64+r,2)}, {v(VO+24+r,2)}, v[92:93], {v(64+r,2)}")
        self.wait_lg("o3")
        for u in range(6):
            for h2 in range(2):
                r = 4*u + 2*h2
                I(f"v_pk_fma_f32 {v(64+r,2)}, {v(VO+48+r,2)}, v[94:95], {v(64+r,2)}")
            I(f"v_cvt_pk_bf16_f32 {v(120+2*(u&3))}, {v(64+4*u)}, {v(65+4*u)}")
            I(f"v_cvt_pk_bf16_f32 {v(121+2*(u&3))}, {v(66+4*u)}, {v(67+4*u)}")
            self.ds(f"ds_write_b64 {v(VOW+u)}, {v(120+2*(u&3),2)} offset:{u*512}")
        self.stamp(13)
        self.fst(3, "combined")
        self.barrier()
        self.fst(3, "o barrier")
        for ks in range(6):
            for th in range(2):
                self.ds(f"ds_read_b128 {a((th*6+ks)*4,4)}, {v(VHR2+(ks&1))} offset:{ks*2048+th*256}", f"f{ks}")
        for ks in range(6):
            self.wait_lg(f"f{ks}")
            for ft in range(3):
                for th in range(2):
                    D = v(XI+(ft*2+th)*4, 4)
                    I(f"v_mfma_f32_16x16x32_bf16 {D}, {a(AWV+(ft*6+ks)*4,4)}, {a((th*6+ks)*4,4)}, {D}")
        self.fst(3, "proj mfma")
        self.nop(3)
        if self.dbg.get("perturb"):
            self.nop(8)
            I(f"s_lshl_b32 s31, {S_J}, 5")
            I(f"s_add_u32 s31, s31, {S_X8}")
            I(f"s_lshl_b32 s31, s31, 2")
            I(f"s_add_u32 s31, s31, {S_W}")
            I("s_cmp_lg_u32 s31, 0")
            I("s_cbranch_scc1 L_nopert", pat="nopert")
            I("s_mov_b64 exec, 1")
            I(f"v_add_f32 {v(XI)}, {hx(f2u(self.dbg['perturb'] / 1000.0))}, {v(XI)}")
            I("s_mov_b64 exec, -1")
            self.L("L_nopert")
        for ft in range(3):
            for th in range(2):
                b = XI+(ft*2+th)*4; d = 64 + ft*4 + th*2
                I(f"v_cvt_pk_bf16_f32 {v(d)}, {v(b)}, {v(b+1)}")
                I(f"v_cvt_pk_bf16_f32 {v(d+1)}, {v(b+2)}, {v(b+3)}")
            if ft:
                d = 64 + (ft-1)*4
                I(f"v_permlane16_swap_b32 {v(d)}, {v(d+2)}")
                I(f"v_permlane16_swap_b32 {v(d+1)}, {v(d+3)}")
                I(f"buffer_store_dwordx4 {v(d,4)}, {v(VOUT)}, {srd(SOUT)}, 0 offen offset:{(ft-1)*32}")
        I("s_nop 0")
        I("v_permlane16_swap_b32 v72, v74")
        I("v_permlane16_swap_b32 v73, v75")
        I(f"buffer_store_dwordx4 v[72:75], {v(VOUT)}, {srd(SOUT)}, 0 offen offset:64")
        self.fst(3, "out issued")
        if self.dbg.get("stamps"):
            I("s_waitcnt vmcnt(0)")
            self.stamp(14)
            self.stamps_out()
        I("s_branch L_end")

    def rare(self):
        I = self.I
        for r in range(6):
            self.L(f"L_rare_{r}")
            I(f"s_mov_b32 {S_RND}, {r}")
            I(f"s_branch L_rare_p{r & 1}")
        for p in range(2):
            S, Sn = VSB[p], VSB[1 - p]
            self.L(f"L_rare_p{p}")
            self.nop(12)
            I(f"v_max3_f32 v55, {v(S)}, {v(S+1)}, {v(S+2)}")
            for r in range(3, 15, 2): I(f"v_max3_f32 v55, v55, {v(S+r)}, {v(S+r+1)}")
            I(f"v_max_f32 v55, v55, {v(S+15)}")
            I("v_mov_b32 v62, v55")
            I(f"v_mov_b32 v63, {v(VL)}")
            I(f"v_mov_b32 v46, {v(VL)}")
            self.nop(1)
            I("v_permlane32_swap_b32 v55, v62")
            I("v_permlane32_swap_b32 v63, v46")
            I("v_max_f32 v55, v55, v62")
            I("v_add_f32 v63, v63, v46")
            I("v_max_f32 v62, 0, v55")
            I("v_cmp_eq_f32 vcc, 0, v63")
            self.nop(2)
            I("v_cndmask_b32 v55, v62, v55, vcc")
            I("v_sub_f32 v62, 0, v55")
            I("v_exp_f32 v62, v62")
            I("s_nop 0")
            I("v_cndmask_b32 v62, v62, 1.0, vcc")
            I(f"s_cmp_eq_u32 {S_RND}, 0")
            I(f"s_cbranch_scc1 L_rare_noO{p}", pat=f"noO{p}")
            for r in range(96): I(f"v_mul_f32 {v(VO+r)}, {v(VO+r)}, v62")
            self.L(f"L_rare_noO{p}")
            I(f"v_mul_f32 {v(VL)}, {v(VL)}, v62")
            for r in range(16): I(f"v_sub_f32 {v(VNM+r)}, {v(VNM+r)}, v55")
            for r in range(16): I(f"v_sub_f32 {v(S+r)}, {v(S+r)}, v55")
            I(f"s_cmp_eq_u32 {S_RND}, 5")
            I(f"s_cbranch_scc1 L_rare_noN{p}", pat=f"noN{p}")
            for r in range(16): I(f"v_sub_f32 {v(Sn+r)}, {v(Sn+r)}, v55")
            self.L(f"L_rare_noN{p}")
            for r in range(16): I(f"v_exp_f32 {v(VE+r)}, {v(S+r)}")
            I("s_nop 0")
            I(f"v_add_f32 {v(VTS)}, {v(VE)}, {v(VE+1)}")
            for r in range(2, 16): I(f"v_add_f32 {v(VTS)}, {v(VTS)}, {v(VE+r)}")
            for k in range(8): I(f"v_cvt_pk_bf16_f32 {v(VPB+k)}, {v(VE+2*k)}, {v(VE+2*k+1)}")
            for r in range(p, 6, 2):
                I(f"s_cmp_eq_u32 {S_RND}, {r}")
                I(f"s_cbranch_scc1 L_back_{r}", pat=f"ret{r}")
            I("s_branch L_end")

    def build(self):
        self.entry(); self.s1(); self.handoff(); self.s2(); self.fusion()
        self.L("L_end"); self.I("s_endpgm"); self.L("L_codeend")
        return self.p

HEADER = """; TimeSformer block (temporal attention + spatial attention), one persistent launch.
; Workgroups with id>>3 < 9 fuse the spatial weights (Wq Wk^T, Wv Wo) and prefetch weights and code into L2.
; @launch grid=(256,1,1) block=(256,1,1) lds=%d
.amdgcn_target "amdgcn-amd-amdhsa--gfx950"
.text
.globl %s
.p2align 8
.type %s,@function
"""
FOOTER = """
.section .rodata,"a"
.p2align 6
.amdhsa_kernel %s
  .amdhsa_next_free_vgpr 512
  .amdhsa_next_free_sgpr 102
  .amdhsa_accum_offset 256
  .amdhsa_group_segment_fixed_size 0
  .amdhsa_kernarg_size 64
  .amdhsa_user_sgpr_count 2
  .amdhsa_user_sgpr_kernarg_segment_ptr 1
  .amdhsa_system_sgpr_workgroup_id_x 1
  .amdhsa_float_denorm_mode_32 3
.end_amdhsa_kernel
"""

def scenarios():
    base = {"L_fdone": [1], "L_hpoll": [0], "L_end": [0]}
    out = {}
    for w in range(4):
        for rare in (None, 0, 1, 2, 3, 4, 5):
            for r22 in (99, 0, 3, 5):
                if rare is not None and r22 not in (99, rare): continue
                c = dict(base)
                c.update({"w0": [1 if w == 0 else 0], "hwait": [0 if w == 0 else 1], "nosig": [0 if w == 0 else 1],
                          "nostat": [0 if w == 0 else 1], "ndum": [0 if w == 3 else 1]})
                for d in range(4): c[f"own{d}"] = [1 if d == w else 0]
                for r in range(6):
                    c[f"nm{r}"] = [0 if r == r22 else 1]
                    c[f"rare{r}"] = [1 if r == rare else 0]
                    c[f"ret{r}"] = [1 if r == rare else 0]
                for p in range(2):
                    c[f"noO{p}"] = [1 if rare == 0 else 0]; c[f"noN{p}"] = [1 if rare == 5 else 0]
                out[f"main_w{w}_rare{rare}_m{r22}"] = c
    out["fus_m"] = {"L_fusion": [1], "L_fus_vo": [0], "L_fus_nozero": [0], "L_end": [0, 0]}
    out["fus_vo"] = {"L_fusion": [1], "L_fus_vo": [1], "L_fus_nozero": [1], "L_end": [0, 1]}
    return out

def generate(path, dbg=None):
    g = Gen(dbg); p = g.build()
    errs = []
    for name, ch in scenarios().items():
        tr = p.trace(KNAME, ch)
        errs += check_hazards(tr, name) + check_waits(tr, name)
    uniq = list(dict.fromkeys(e.split("]", 1)[1] for e in errs))
    for e in uniq[:40]: print(e)
    print(f"{len(uniq)} checker findings; {len(p.ins)} lines")
    if getattr(g, "fnames", None): open(path + ".names", "w").write("|".join(["start"] + g.fnames))
    open(path, "w").write(HEADER % (LDS_BYTES, KNAME, KNAME) + p.text() + FOOTER % KNAME)
    return len(uniq)

def parse_opts(args):
    d = {}
    for x in args:
        if "=" in x:
            k, val = x.split("="); d[k] = int(val)
        else: d[x] = 1
    return d

if __name__ == "__main__":
    out = sys.argv[1] if len(sys.argv) > 1 else "standalone__video_timesformer__vision.s"
    generate(out, parse_opts(sys.argv[2:]))
```

```python
import struct, sys
from asmdsl import *

def f2u(x): return struct.unpack("<I", struct.pack("<f", x))[0]
def hx(x): return "0x%08x" % (x & 0xffffffff)

KNAME = "standalone__video_timesformer__vision_kernel"
T, N, C = 8, 729, 192
XFRAME = N * 384
TILEB, NT = 12288, 23
FRAMEB = NT * TILEB
WS_H2, WS_STAT, WS_WM, WS_WVO, WS_SYNC, WS_STAMP, WS_SIZE = 0, 0x240000, 0x480000, 0x4A0000, 0x4C0000, 0x4D0000, 0x500000
X_BYTES = T * N * 384
WQKV_BYTES, WO_BYTES = 192 * 1152, 192 * 384
OOB = 0x40000000
SCALE_L2E = (C ** -0.5) * 1.4426950408889634
SPIN_MAX = 1 << 20
HI_THR, LO_THR = 2.0 ** 30, 2.0 ** -30
NINF = "0xff800000"

SX, SWQ, SWO, SWS, SOUT, SDBG = 4, 8, 12, 16, 20, 24
def srd(b): return f"s[{b}:{b+3}]"
S_W, S_J, S_X8 = "s28", "s29", "s30"
S_1152, S_384, S_SOFF, S_RING = "s37", "s38", "s39", "s40"
S_MASKP, S_MASKH = "s[42:43]", "s[44:45]"
S_TOF = ["s46", "s47", "s48", "s49", "s50", "s51"]
S_R22 = "s52"
S_ST = ("s55", "s56", "s57")
S_FBASE, S_RING2 = "s59", "s60"
S_C0, S_C1, S_C2 = "s61", "s62", "s63"
S_WV0, S_H2O, S_STO, S_RND = "s64", "s65", "s66", "s67"
STAMP0 = 70

R1 = 9
L_H, L_X, L_O, L_SX, L_ST = 110592, 122880, 135168, 147456, 155648
L_Q, L_ML = 147456, 159744
LDS_BYTES = 160768

def v(n, k=1): return f"v{n}" if k == 1 else f"v[{n}:{n+k-1}]"
def a(n, k=1): return f"a{n}" if k == 1 else f"a[{n}:{n+k-1}]"

VXO, VA, VB, VTR, VHR, VXR, VHW, VST = 2, 3, 6, 9, 10, 12, 15, 16
VD, VK0, VK1, VV0, VV1, VSTA, VSTW, VSTR = 17, 20, 21, 22, 23, 24, 25, 26
VHR2, VQW, VOUT, VOWN, VQR, VOW = 28, 30, 33, 34, 35, 39
VML, VEX, VEXR, VMLR = 45, 47, 48, 51
VL, VTS = 54, 56
VTS2 = 57
VMU = 58
VR1 = 26
XR, F, AQ, AK, AV, AO, TP, PT = 64, 76, 100, 124, 148, 172, 196, 240
AH, AW, AOF = 0, 48, 96
VSB, VE, VNM, VO, VPB, VPD = (64, 80), 96, 112, 128, 224, 232
AQP, AKF, AVF, AWV, AM = 0, 48, 96, 144, 48

STF = ["sc1", "sc0 sc1", "sc1 nt"]
LDF = ["sc1", "", "sc0 sc1"]
OUTF = ["", "nt", "sc1", "sc0 sc1", "sc1 nt"]

class Gen:
    def __init__(self, dbg=None):
        self.p = Prog(); self.dbg = dbg or {}
        self.vmq, self.vm_done, self.lgq, self.lg_done = [], 0, [], 0
        self.clock = 0.0; self.pace = None
    def cost(self, t):
        mn = t.split()[0]
        if mn == "s_nop": return 4 * (int(t.split()[1]) + 1)
        if mn in TRANS: return 8.3
        if mn.startswith("v_mfma"): return 16 if "16x16" in mn else 32
        return 4.3
    def I(self, t, **k):
        self.p.I(t, **k)
        self.clock += self.cost(t.strip())
        if self.pace is not None: self.pace()
    def L(self, n): self.p.L(n)
    def nop(self, n):
        while n > 0:
            k = min(n, 16); self.I(f"s_nop {k-1}"); n -= k
    def vm(self, text, tag):
        save, self.pace = self.pace, None
        self.I(text, tag=tag); self.vmq.append(tag); self.pace = save
    def ds(self, text, tag="", needs=()):
        self.lgq.append(tag); self.I(text, tag=tag or None, needs=needs)
    def wait_vm(self, tag):
        if tag in getattr(self, "skipped", ()): return
        idx = max(i for i, t in enumerate(self.vmq) if t == tag)
        if idx < self.vm_done: return
        n = len(self.vmq) - 1 - idx
        self.vm_done = idx + 1
        self.I(f"s_waitcnt vmcnt({n})")
    def wait_lg(self, tag=None):
        idx = len(self.lgq) - 1 if tag is None else max(i for i, t in enumerate(self.lgq) if t == tag)
        if idx < self.lg_done: return
        n = min(len(self.lgq) - 1 - idx, 15)
        self.lg_done = len(self.lgq) - n
        self.I(f"s_waitcnt lgkmcnt({n})")
    def vm_all(self):
        self.I("s_waitcnt vmcnt(0)"); self.vm_done = len(self.vmq)
    def barrier(self):
        self.wait_lg(); self.I("s_barrier")

    def stamp(self, k):
        if self.dbg.get("stamps") and k < 15 and (not self.dbg.get("fine") or k in (0, 14)):
            self.p.I(f"s_memrealtime s[{STAMP0+2*k}:{STAMP0+2*k+1}]")
    def fst(self, mode, name):
        if self.dbg.get("stamps") and self.dbg.get("fine") == mode:
            self.nf = getattr(self, "nf", 0) + 1
            assert self.nf < 14
            self.fnames = getattr(self, "fnames", []) + [name]
            self.p.I(f"s_memrealtime s[{STAMP0+2*self.nf}:{STAMP0+2*self.nf+1}]")
    def stamps_out(self):
        I = self.I
        I("s_memtime s[34:35]")
        I("s_waitcnt lgkmcnt(0)")
        I("s_sub_u32 s36, s34, s100")
        I("s_lshl_b32 s31, s2, 2")
        I(f"s_add_u32 s31, s31, {S_W}")
        I("s_lshl_b32 s31, s31, 7")
        I(f"s_add_u32 s31, s31, {WS_STAMP}")
        I("v_mov_b32 v2, s31")
        I("s_mov_b64 exec, 1")
        for k in range(15):
            I(f"v_mov_b32 v3, s{STAMP0+2*k}")
            I(f"buffer_store_dword v3, v2, {srd(SWS)}, 0 offen offset:{4*k}")
        I("v_mov_b32 v3, s36")
        I(f"buffer_store_dword v3, v2, {srd(SWS)}, 0 offen offset:64")
        I("s_mov_b64 exec, -1")

    def srd_load(self, base, karg_off): self.I(f"s_load_dwordx2 s[{base}:{base+1}], s[0:1], {karg_off}")
    def srd_const(self, base, nbytes):
        self.I(f"s_mov_b32 s{base+2}, {hx(nbytes)}")
        self.I(f"s_mov_b32 s{base+3}, 0x20000")
    def mk_srd(self, base, karg_off, nbytes):
        self.srd_load(base, karg_off); self.srd_const(base, nbytes)

    def xg_reduce_add(self, regs_, tmps):
        I = self.I
        for swap in ("v_permlane16_swap_b32", "v_permlane32_swap_b32"):
            for r, t in zip(regs_, tmps): I(f"v_mov_b32 {v(t)}, {v(r)}")
            self.nop(max(0, 2 - (len(regs_) - 1)))
            for r, t in zip(regs_, tmps): I(f"{swap} {v(r)}, {v(t)}")
            for r, t in zip(regs_, tmps): I(f"v_add_f32 {v(r)}, {v(r)}, {v(t)}")

    def phase(self, mfmas, queues):
        n = len(mfmas); slots = [[] for _ in range(n)]
        for g0, g1, items in queues:
            for i, it in enumerate(items):
                slots[min(n - 1, g0 + i * (g1 - g0 + 1) // max(1, len(items)))].append(it)
        for g in range(n):
            mfmas[g]()
            for it in slots[g]: it()

    def phase2(self, mfmas, pinned, flex):
        n = len(mfmas)
        total = sum(c for l in pinned.values() for c, _ in l) + sum(c for q in flex for c, _ in q["items"])
        level = max(self.dbg.get("lvl", 16), total / n)
        placed = {q["name"]: 0 for q in flex}
        done_before = dict(placed)
        for g in range(n):
            mfmas[g]()
            cost = 0
            for c, fn in pinned.get(g, []):
                fn(); cost += c
            cnt = {q["name"]: 0 for q in flex}
            while True:
                best = None
                for q in flex:
                    i = placed[q["name"]]; m = len(q["items"])
                    if i >= m or g < q["g0"]: continue
                    g1 = q.get("g1", n - 1)
                    lag = m * min(1.0, (g - q["g0"] + 1) / (g1 - q["g0"] + 1)) - i
                    last = g == n - 1
                    if q.get("dep") and not q["dep"](i, placed if last else done_before): continue
                    if not last:
                        if cnt[q["name"]] >= q.get("per", 2): continue
                        c = q["items"][i][0]
                        if lag < 1.0 and (lag <= 0.0 or cost + c > level + 3): continue
                    if best is None or lag > best[0]: best = (lag, q)
                if best is None: break
                q = best[1]; i = placed[q["name"]]
                q["items"][i][1](); cost += q["items"][i][0]
                placed[q["name"]] += 1; cnt[q["name"]] += 1
            done_before = dict(placed)
        for q in flex: assert placed[q["name"]] == len(q["items"]), (q["name"], placed)

    def entry(self):
        I = self.I
        self.L(KNAME)
        self.stamp(0)
        if self.dbg.get("stamps"): I("s_memtime s[100:101]")
        self.srd_load(SX, 0); self.srd_load(SWQ, 8); self.srd_load(SWO, 16)
        I("s_cmp_ge_u32 s2, 256")
        I("s_cbranch_scc1 L_end")
        if self.dbg.get("epf", 2) == 1:
            I("s_getpc_b64 s[32:33]")
            self.L("L_pc")
            I("v_lshlrev_b32 v2, 7, v0")
            I("v_min_u32 v3, L_codeend-L_pc-4, v2")
            self.vm("global_load_dword v255, v3, s[32:33]", "cpf")
        I("s_lshr_b32 s3, s2, 3")
        I(f"s_and_b32 {S_X8}, s2, 7")
        I("s_cmp_lt_u32 s3, 9")
        I("s_cbranch_scc1 L_fusion")

    def fusion(self):
        I = self.I
        LA, LB = 0, 8192
        self.L("L_fusion")
        if self.dbg.get("epf", 2) == 2:
            I("s_getpc_b64 s[32:33]")
            self.L("L_pc")
            I("s_sub_u32 s32, s32, L_pc-" + KNAME)
            I("s_subb_u32 s33, s33, 0")
            I("s_lshl_b32 s31, s3, 5")
            I("v_and_b32 v2, 31, v0")
            I("v_add_u32 v2, s31, v2")
            I("v_lshlrev_b32 v2, 7, v2")
            I("v_min_u32 v3, L_codeend-" + KNAME + "-4, v2")
            I("global_load_dword v255, v3, s[32:33]")
        I("s_waitcnt lgkmcnt(0)")
        self.mk_srd(SX, 8, WQKV_BYTES)
        self.mk_srd(SOUT, 16, WO_BYTES)
        self.mk_srd(SWQ, 24, WQKV_BYTES)
        self.mk_srd(SWO, 32, WO_BYTES)
        self.mk_srd(SDBG, 48, 256)
        self.mk_srd(SWS, 56, WS_SIZE)
        I("v_and_b32 v1, 63, v0")
        I("v_lshrrev_b32 v5, 6, v0")
        I("v_lshlrev_b32 v2, 7, v0")
        I("s_lshl_b32 s31, s3, 15")
        I(f"v_readfirstlane_b32 {S_W}, v5")
        I("v_add_u32 v2, s31, v2")
        I(f"v_subrev_u32 v3, {WQKV_BYTES}, v2")
        I("s_lshl_b32 s34, s3, 3")
        I(f"s_add_u32 s34, s34, {S_X8}")
        I("s_cmp_lt_u32 s34, 36")
        I("s_cselect_b32 s36, 1, 0")
        I("s_cselect_b32 s31, 0, 36")
        I("s_sub_u32 s35, s34, s31")
        I("s_mul_i32 s37, s35, 43691")
        I("s_lshr_b32 s37, s37, 17")
        I("s_mul_i32 s38, s37, 3")
        I("s_sub_u32 s38, s35, s38")
        def rowmap(dst, qreg, stride):
            I(f"v_mul_u32_u24 v10, 2731, {qreg}")
            I("v_lshrrev_b32 v10, 16, v10")
            I("v_mul_u32_u24 v11, 24, v10")
            I(f"v_sub_u32 v11, {qreg}, v11")
            I("v_xor_b32 v12, v11, v10")
            I("v_and_b32 v12, 7, v12")
            I("v_and_b32 v11, 24, v11")
            I("v_or_b32 v11, v11, v12")
            I("v_lshlrev_b32 v11, 4, v11")
            I(f"v_mad_u32_u24 {dst}, v10, {stride}, v11")
        I(f"s_mov_b32 s49, 1152")
        I(f"v_lshl_add_u32 v9, {S_W}, 6, v1")
        rowmap("v16", "v9", "s49")
        I("v_add_u32 v9, 256, v9")
        rowmap("v17", "v9", "s49")
        I("s_mul_i32 s39, s37, 18432")
        I("s_mul_i32 s40, s36, 768")
        I("s_add_u32 s39, s39, s40")
        I("s_cmp_eq_u32 s36, 1")
        I("s_cbranch_scc1 L_fus_vo_addr")
        for i in range(6):
            I(f"v_add_u32 v9, {64*i}, v1")
            rowmap(f"v{18+i}", "v9", "s49")
        I(f"s_lshl_b32 s40, s38, 2")
        I(f"s_add_u32 s40, s40, {S_W}")
        I("s_mul_i32 s41, s40, 18432")
        I("s_add_u32 s41, s41, 384")
        I("s_branch L_fus_issue")
        self.L("L_fus_vo_addr")
        I("v_lshrrev_b32 v10, 3, v1")
        I("v_and_b32 v11, 7, v1")
        for i in range(6):
            I(f"s_mul_i32 s31, {S_W}, 48")
            I(f"s_add_u32 s31, s31, {8*i}")
            I("v_add_u32 v12, s31, v10")
            I("v_and_b32 v13, 31, v12")
            I("v_and_b32 v14, 12, v13")
            I("v_lshrrev_b32 v15, 4, v13")
            I("v_add_u32 v14, v14, v12")
            I("v_mad_i32_i24 v14, v15, -12, v14")
            I("v_mul_u32_u24 v14, 384, v14")
            I("v_bfe_u32 v15, v13, 1, 2")
            I("v_lshlrev_b32 v15, 1, v15")
            I("v_xor_b32 v15, v15, v11")
            I(f"v_lshl_add_u32 v{18+i}, v15, 4, v14")
        I(f"s_lshl_b32 s40, s38, 2")
        I(f"s_add_u32 s40, s40, {S_W}")
        I("s_lshl_b32 s41, s38, 7")
        self.L("L_fus_issue")
        I("s_waitcnt lgkmcnt(0)")
        I(f"buffer_load_dword v40, v2, {srd(SX)}, 0 offen")
        I(f"buffer_load_dword v41, v3, {srd(SOUT)}, 0 offen")
        I(f"s_lshl_b32 s31, {S_W}, 10")
        I(f"s_add_u32 m0, s31, {LA}")
        I("s_nop 0")
        I(f"buffer_load_dwordx4 v16, {srd(SWQ)}, s39 offen lds", tag="fa")
        I(f"s_cmp_ge_u32 {S_W}, 2")
        I("s_cbranch_scc1 L_fus_a1", pat="fa1")
        I(f"s_add_u32 m0, s31, {LA + 4096}")
        I("s_nop 0")
        I(f"buffer_load_dwordx4 v17, {srd(SWQ)}, s39 offen lds", tag="fa")
        self.L("L_fus_a1")
        I(f"s_mul_i32 s31, {S_W}, 6144")
        I("s_cmp_eq_u32 s36, 1")
        I("s_cbranch_scc1 L_fus_bvo", pat="fbvo")
        for i in range(6):
            I(f"s_add_u32 m0, s31, {LB + 1024*i}")
            I("s_nop 0")
            I(f"buffer_load_dwordx4 v{18+i}, {srd(SWQ)}, s41 offen lds", tag="fb")
        I("s_branch L_fus_wait")
        self.L("L_fus_bvo")
        for i in range(6):
            I(f"s_add_u32 m0, s31, {LB + 1024*i}")
            I("s_nop 0")
            I(f"buffer_load_dwordx4 v{18+i}, {srd(SWO)}, s41 offen lds", tag="fb")
        self.L("L_fus_wait")
        I("v_and_b32 v6, 15, v1")
        I("v_lshrrev_b32 v7, 4, v1")
        I("v_mul_u32_u24 v8, 384, v6")
        I("v_xor_b32 v9, v7, v6")
        I("v_and_b32 v9, 7, v9")
        I("v_lshl_add_u32 v26, v9, 4, v8")
        I("v_xor_b32 v9, 4, v9")
        I("v_lshl_add_u32 v27, v9, 4, v8")
        I("s_mul_i32 s46, s40, 6")
        I("s_lshr_b32 s47, s37, 1")
        I("s_add_u32 s46, s46, s47")
        I("s_lshl_b32 s46, s46, 10")
        I("s_and_b32 s47, s37, 1")
        I("s_lshl_b32 s47, s47, 1")
        I("v_lshrrev_b32 v11, 1, v7")
        I("v_add_u32 v11, s47, v11")
        I("v_and_b32 v14, 1, v7")
        I("s_waitcnt vmcnt(0)")
        I("s_barrier")
        for ks in range(6):
            I(f"ds_read_b128 {v(44+4*ks,4)}, {v(26+(ks&1))} offset:{LA + (ks>>1)*128}", needs=["fa"])
        I("s_cmp_eq_u32 s36, 1")
        I("s_cbranch_scc1 L_fus_vo", pat="fvo")
        I(f"v_add_u32 v26, s31, v26")
        I(f"v_add_u32 v27, s31, v27")
        for ks in range(6):
            I(f"ds_read_b128 {v(68+4*ks,4)}, {v(26+(ks&1))} offset:{LB + (ks>>1)*128}", needs=["fb"])
        I("v_lshlrev_b32 v12, 1, v11")
        I("v_mov_b32 v13, 0x78")
        I("v_lshrrev_b32 v12, v12, v13")
        I("v_and_b32 v11, 3, v12")
        I(f"s_mov_b32 s40, {hx(f2u(SCALE_L2E))}")
        I(f"s_add_u32 s46, s46, {WS_WM}")
        I("s_branch L_fus_mm")
        self.L("L_fus_vo")
        I("v_lshrrev_b32 v12, 2, v1")
        I("v_bfe_u32 v13, v12, 1, 2")
        I(f"v_xor_b32 v13, {S_W}, v13")
        I("v_lshlrev_b32 v13, 5, v13")
        I("v_lshl_add_u32 v13, v12, 7, v13")
        I("v_and_b32 v12, 3, v1")
        I("v_lshl_add_u32 v13, v12, 3, v13")
        for ks in range(6):
            I(f"ds_read_b64_tr_b16 {v(68+4*ks,2)}, v13 offset:{LB + ks*4096}", needs=["fb"])
            I(f"ds_read_b64_tr_b16 {v(70+4*ks,2)}, v13 offset:{LB + ks*4096 + 2048}", needs=["fb"])
        I(f"s_mov_b32 s40, {hx(f2u(1.0))}")
        I(f"s_add_u32 s46, s46, {WS_WVO}")
        self.L("L_fus_mm")
        I("v_lshl_add_u32 v11, v11, 4, v6")
        I("v_lshlrev_b32 v11, 4, v11")
        I("v_lshl_add_u32 v11, v14, 3, v11")
        I("s_waitcnt lgkmcnt(0)")
        for ks in range(6):
            I(f"v_mfma_f32_16x16x32_bf16 v[96:99], {v(44+4*ks,4)}, {v(68+4*ks,4)}, {'0' if ks == 0 else 'v[96:99]'}")
        self.nop(8)
        for r in range(4): I(f"v_mul_f32 {v(96+r)}, s40, {v(96+r)}")
        I("v_cvt_pk_bf16_f32 v100, v96, v97")
        I("v_cvt_pk_bf16_f32 v101, v98, v99")
        I(f"buffer_store_dwordx2 v[100:101], v11, {srd(SWS)}, s46 offen sc1")
        I("s_cmp_ge_u32 s34, 8")
        I("s_cbranch_scc1 L_fus_nozero")
        for r in range(104, 108): I(f"v_mov_b32 v{r}, 0")
        I("v_lshlrev_b32 v12, 4, v0")
        I("s_lshl_b32 s39, s34, 12")
        I(f"s_add_u32 s39, s39, {WS_SYNC}")
        I(f"buffer_store_dwordx4 v[104:107], v12, {srd(SWS)}, s39 offen sc1")
        self.L("L_fus_nozero")
        if self.dbg.get("stamps"): self.p.I("s_memrealtime s[72:73]")
        I("s_waitcnt vmcnt(0)")
        I("s_barrier")
        if self.dbg.get("stamps"):
            self.p.I("s_memrealtime s[74:75]"); self.p.I("s_memrealtime s[76:77]"); self.p.I("s_memrealtime s[98:99]")
            self.stamps_out()
        I(f"s_cmp_lg_u32 {S_W}, 0")
        I("s_cbranch_scc1 L_end")
        I("v_mov_b32 v12, 0")
        I("v_mov_b32 v13, 1")
        I("s_mov_b64 exec, 1")
        I(f"buffer_atomic_add v13, v12, {srd(SDBG)}, 0 offen sc1")
        I("s_branch L_end")

    def s1_soff(self, s):
        m, ks = divmod(s, 6)
        return ks * 32 * 1152 + m * 384 if m < 3 else ks * 32 * 384
    def s1_dma_one(self):
        d = self.dnext; s, ii = divmod(d, 3); m = s // 6
        save, self.pace = self.pace, None
        if ii == 0:
            self.I(f"s_add_u32 m0, {S_RING}, {(s % R1) * 3072}")
            self.I(f"s_mov_b32 {S_SOFF}, {self.s1_soff(s)}")
        base = VA if m < 3 else VB
        if self.dbg.get("x_nodma") and s >= 3:
            self.vmq.append(f"w{s}_{ii}"); self.vm_done = len(self.vmq) if False else self.vm_done
            self.vmq.pop(); self.skipped = getattr(self, "skipped", set()) | {f"w{s}_{ii}"}
        else:
            self.vm(f"buffer_load_dwordx4 {v(base+ii)}, {srd(SWQ) if m < 3 else srd(SWO)}, {S_SOFF} offen offset:{ii*1024} lds", f"w{s}_{ii}")
        self.dnext += 1; self.last_dma = self.clock; self.pace = save
    def s1_allowed(self): return self.dnext < 72 and self.dnext // 3 - R1 <= self.consumed
    def s1_pace(self):
        last = self.p.ins[-1].mn
        if last.startswith("s_cmp") or last.startswith("s_cselect"): return
        if self.s1_allowed() and self.clock - self.last_dma >= self.period: self.s1_dma_one()
    def s1_ensure(self, step):
        while self.dnext < 72 and self.dnext // 3 <= step:
            assert self.s1_allowed(), (self.dnext, self.consumed)
            self.s1_dma_one()

    def setup_s1a(self):
        I = self.I
        t = [100 + i for i in range(7)]
        I(f"v_lshrrev_b32 {v(t[0])}, 2, v1")
        I(f"v_and_b32 {v(t[1])}, 3, v1")
        I(f"v_mul_u32_u24 {v(t[0])}, 96, {v(t[0])}")
        I(f"v_lshl_add_u32 {v(t[0])}, {v(t[1])}, 3, {v(t[0])}")
        I(f"v_add_u32 {v(VTR)}, {S_RING}, {v(t[0])}")
        I(f"v_lshrrev_b32 {v(t[0])}, 3, v1")
        I(f"v_and_b32 {v(t[1])}, 7, v1")
        I(f"v_lshl_add_u32 {v(t[0])}, {S_W}, 3, {v(t[0])}")
        I(f"v_xor_b32 {v(t[0])}, {v(t[0])}, {v(t[1])}")
        I(f"v_lshlrev_b32 {v(t[0])}, 4, {v(t[0])}")
        I(f"v_lshl_add_u32 {v(t[0])}, {v(t[1])}, 9, {v(t[0])}")
        I(f"v_add_u32 {v(VHW)}, {L_H}, {v(t[0])}")
        tk, g = t[5], t[6]
        I(f"v_and_b32 {v(tk)}, 15, v1")
        I(f"v_lshrrev_b32 {v(g)}, 4, v1")
        I(f"v_xor_b32 {v(t[0])}, {v(tk)}, {v(g)}")
        I(f"v_lshlrev_b32 {v(t[2])}, 9, {v(g)}")
        I(f"v_xor_b32 {v(t[1])}, 4, {v(t[0])}")
        I(f"v_add_u32 {v(t[2])}, {L_H}, {v(t[2])}")
        I(f"v_lshl_add_u32 {v(VHR)}, {v(t[0])}, 4, {v(t[2])}")
        I(f"v_lshl_add_u32 {v(VHR+1)}, {v(t[1])}, 4, {v(t[2])}")
    def setup_s1b(self):
        I = self.I
        t = [TP + i for i in range(7)]
        tk, g = t[5], t[6]
        I(f"v_and_b32 {v(tk)}, 15, v1")
        I(f"v_lshrrev_b32 {v(g)}, 4, v1")
        I(f"s_mul_i32 s31, {S_W}, 6")
        I(f"v_lshrrev_b32 {v(t[0])}, 1, {v(g)}")
        I(f"v_add_u32 {v(t[1])}, s31, {v(t[0])}")
        I(f"v_and_b32 {v(t[2])}, 1, {v(g)}")
        I(f"v_lshlrev_b32 {v(t[3])}, 3, {v(t[2])}")
        I(f"v_add_u32 {v(t[3])}, {L_X}, {v(t[3])}")
        for ft in range(3):
            I(f"v_add_u32 {v(t[4])}, {2*ft}, {v(t[1])}")
            I(f"v_and_b32 {v(VXR+ft)}, 7, {v(t[4])}")
            I(f"v_xor_b32 {v(VXR+ft)}, {v(VXR+ft)}, {v(tk)}")
            I(f"v_lshlrev_b32 {v(VXR+ft)}, 4, {v(VXR+ft)}")
            I(f"v_lshl_add_u32 {v(VXR+ft)}, {v(t[4])}, 9, {v(VXR+ft)}")
            I(f"v_add_u32 {v(VXR+ft)}, {v(VXR+ft)}, {v(t[3])}")
        I(f"v_lshrrev_b32 {v(t[1])}, 3, {v(tk)}")
        I(f"v_cmp_eq_u32 {S_MASKP}, {v(t[0])}, {v(t[1])}")
    def setup_s1c(self):
        I = self.I
        t = [TP + 32 + i for i in range(7)]
        tk, g = t[5], t[6]
        I(f"v_and_b32 {v(tk)}, 15, v1")
        I(f"v_lshrrev_b32 {v(g)}, 4, v1")
        I(f"v_lshrrev_b32 {v(t[0])}, 1, {v(g)}")
        I(f"v_and_b32 {v(t[2])}, 1, {v(g)}")
        I(f"v_lshl_add_u32 {v(t[3])}, {v(t[2])}, 4, {v(tk)}")
        I(f"v_and_b32 {v(t[4])}, 7, {v(t[3])}")
        I(f"v_lshrrev_b32 {v(t[3])}, 3, {v(t[3])}")
        I(f"v_mul_u32_u24 {v(t[1])}, {FRAMEB}, {v(t[4])}")
        I(f"s_bfe_u32 s31, {S_X8}, 0x10001")
        I(f"v_lshl_add_u32 {v(t[1])}, {v(t[3])}, 4, {v(t[1])}")
        I(f"v_xor_b32 {v(VST)}, s31, {v(t[0])}")
        I(f"v_lshl_add_u32 {v(VST)}, {v(VST)}, 6, {v(t[1])}")
        I(f"v_mul_u32_u24 {v(t[4])}, 736, {v(t[4])}")
        I(f"s_lshl_b32 s31, {S_J}, 5")
        I(f"s_lshl_b32 s34, {S_X8}, 2")
        I(f"v_add_u32 {v(t[4])}, {v(t[4])}, {v(t[3])}")
        I("s_add_u32 s31, s31, s34")
        I(f"v_add_u32 {v(t[4])}, s31, {v(t[4])}")
        I(f"v_cmp_lt_u32 {S_MASKH}, 31, v1")
        I(f"v_lshlrev_b32 {v(t[4])}, 3, {v(t[4])}")
        I(f"v_mov_b32 {v(t[1])}, {hx(OOB)}")
        I(f"v_add_u32 {v(t[4])}, {WS_STAT}, {v(t[4])}")
        I(f"s_lshl_b32 s31, {S_W}, 8")
        I(f"v_cndmask_b32 {v(VSTA)}, {v(t[4])}, {v(t[1])}, {S_MASKH}")
        I(f"v_lshlrev_b32 {v(t[4])}, 3, {v(tk)}")
        I(f"s_add_u32 s31, s31, {L_ST}")
        I(f"v_add_u32 {v(VSTR)}, {L_ST}, {v(t[4])}")
        I(f"v_add_u32 {v(VSTW)}, s31, {v(t[4])}")
    def setup_s1d(self):
        I = self.I
        I(f"s_mul_i32 s35, {S_J}, {TILEB}")
        I(f"s_mul_i32 s31, {S_W}, 3")
        for ft in range(3):
            if ft: I("s_add_u32 s31, s31, 1")
            I("s_and_b32 s34, s31, 1")
            I(f"s_xor_b32 s34, s34, {S_X8}")
            I("s_lshl_b32 s34, s34, 7")
            I(f"s_lshl_b32 {S_ST[ft]}, s31, 10")
            I(f"s_add_u32 {S_ST[ft]}, {S_ST[ft]}, s34")
            I(f"s_add_u32 {S_ST[ft]}, {S_ST[ft]}, s35")

    def s1(self):
        I = self.I
        I("v_lshrrev_b32 v100, 6, v0")
        I("v_and_b32 v1, 63, v0")
        I(f"s_sub_u32 {S_J}, s3, 9")
        I(f"v_readfirstlane_b32 {S_W}, v100")
        I(f"s_lshl_b32 s31, {S_J}, 5")
        I(f"s_lshl_b32 s34, {S_X8}, 2")
        I("s_add_u32 s31, s31, s34")
        I("v_lshrrev_b32 v100, 3, v1")
        I("v_and_b32 v101, 7, v1")
        I(f"s_add_u32 s31, s31, {S_W}")
        I("s_mul_i32 s34, s31, 384")
        I(f"s_cmp_ge_u32 s31, {N}")
        I(f"s_cselect_b32 s34, {hx(OOB)}, s34")
        I(f"v_mul_u32_u24 v102, {XFRAME}, v100")
        I("v_lshl_add_u32 v102, v101, 4, v102")
        I(f"v_add_u32 {v(VXO)}, s34, v102")
        self.srd_const(SX, X_BYTES)
        self.fst(1, "pre-karg")
        I("s_waitcnt lgkmcnt(0)")
        self.fst(1, "kargs")
        for ii in range(3):
            self.vm(f"buffer_load_dwordx4 {v(XR+4*ii,4)}, {v(VXO)}, {srd(SX)}, 0 offen offset:{128*ii}", f"x{ii}")
        self.fst(1, "x issued")
        self.srd_load(SWS, 56); self.srd_load(SDBG, 48); self.srd_load(SOUT, 40)
        self.srd_const(SWQ, WQKV_BYTES); self.srd_const(SWO, WO_BYTES)
        I(f"s_mov_b32 {S_1152}, 1152")
        I(f"s_mov_b32 {S_384}, 384")
        I(f"s_mul_i32 s35, {S_W}, 96")
        I(f"s_mul_i32 {S_RING}, {S_W}, {R1*3072}")
        I(f"v_lshlrev_b32 {v(VD)}, 4, v1")
        I("s_movk_i32 s36, -96")
        I(f"v_add_u32 v104, s35, {v(VD)}")
        for ii in range(3):
            if ii:
                I(f"v_add_u32 v100, {64*ii}, v1")
                I("v_mul_u32_u24 v101, 171, v100")
            else:
                I("v_mul_u32_u24 v101, 171, v1")
            I("v_lshrrev_b32 v101, 10, v101")
            I("v_and_b32 v102, 12, v101")
            I("v_lshrrev_b32 v103, 4, v101")
            I("v_add_u32 v102, v102, v101")
            I("v_mad_i32_i24 v100, v101, s36, v104")
            I("v_mad_i32_i24 v102, v103, -12, v102")
            I(f"v_mad_u32_u24 {v(VA+ii)}, v102, {S_1152}, v100")
            I(f"v_mad_u32_u24 {v(VB+ii)}, v102, {S_384}, v100")
        self.fst(1, "dma addr")
        self.dnext, self.consumed, self.last_dma = 0, -1, self.clock
        self.s1_ensure(self.dbg.get("pre", 2) - 1)
        self.fst(1, "pre dma")
        self.period = self.dbg.get("p0", 64)
        self.setup_s1a()
        self.srd_const(SWS, WS_SIZE); self.srd_const(SDBG, 256); self.srd_const(SOUT, X_BYTES)
        self.s1_ensure(self.dbg.get("pre2", 3) - 1)
        if self.dbg.get("early", 1):
            self.setup_s1b(); self.setup_s1d()
        self.fst(1, "setup")
        I("s_waitcnt lgkmcnt(0)")
        self.stamp(1)
        self.wait_vm("x2")
        self.stamp(2)
        self.fst(1, "x arrived")
        self.last_dma = self.clock
        self.pace = self.s1_pace
        X = XR
        for k in range(12):
            I(f"v_lshlrev_b32 {v(F+2*k)}, 16, {v(X+k)}")
            I(f"v_and_b32 {v(F+2*k+1)}, 0xffff0000, {v(X+k)}")
        I(f"v_pk_add_f32 v[100:101], {v(F,2)}, {v(F+2,2)}")
        I(f"v_pk_mul_f32 v[102:103], {v(F,2)}, {v(F,2)}")
        I(f"v_pk_fma_f32 v[102:103], {v(F+2,2)}, {v(F+2,2)}, v[102:103]")
        for k in range(2, 12):
            I(f"v_pk_add_f32 v[100:101], v[100:101], {v(F+2*k,2)}")
            I(f"v_pk_fma_f32 v[102:103], {v(F+2*k,2)}, {v(F+2*k,2)}, v[102:103]")
        I("v_add_f32 v100, v100, v101")
        I("v_add_f32 v102, v102, v103")
        I(f"s_mov_b32 {S_C0}, {hx(f2u(1.0/192))}")
        for mod in ("quad_perm:[1,0,3,2]", "quad_perm:[2,3,0,1]", "row_half_mirror"):
            I("s_nop 0")
            I(f"v_add_f32_dpp v100, v100, v100 {mod} row_mask:0xf bank_mask:0xf")
            I(f"v_add_f32_dpp v102, v102, v102 {mod} row_mask:0xf bank_mask:0xf")
        I(f"s_mov_b32 {S_C1}, {hx(f2u(1e-5))}")
        I(f"v_mul_f32 v100, {S_C0}, v100")
        I(f"v_mov_b32 v101, {S_C1}")
        I(f"v_fmac_f32 v101, {S_C0}, v102")
        I("v_fma_f32 v101, -v100, v100, v101")
        I(f"v_max_f32 v101, {S_C1}, v101")
        I("v_rsq_f32 v102, v101")
        I("s_nop 0")
        I("v_mul_f32 v100, v100, v102")
        I("v_mov_b32 v103, v102")
        I("v_mov_b32 v101, v100")
        for k in range(12):
            I(f"v_pk_fma_f32 {v(F+2*k,2)}, {v(F+2*k,2)}, v[102:103], v[100:101] neg_lo:[0,0,1] neg_hi:[0,0,1]")
        for k in range(12):
            I(f"v_cvt_pk_bf16_f32 {v(F+k)}, {v(F+2*k)}, {v(F+2*k+1)}")
            if k % 4 == 3:
                ii = k // 4
                self.ds(f"ds_write_b128 {v(VHW)}, {v(F+4*ii,4)} offset:{ii*4096}")
                self.ds(f"ds_write_b128 {v(VHW)}, {v(X+4*ii,4)} offset:{ii*4096 + (L_X-L_H)}")
        self.fst(1, "LN math")
        self.barrier()
        self.fst(1, "LN barrier")
        for ks in range(6):
            for th in range(2):
                self.ds(f"ds_read_b128 {a(AH+(th*6+ks)*4,4)}, {v(VHR+(ks&1))} offset:{ks*2048+th*256}", f"h{ks}")
        self.stamp(3)
        if not self.dbg.get("early", 1): self.setup_s1b()
        self.period = self.dbg.get("p1", 70)

        def trread(s, ft, e2):
            buf = AW + (s % 4) * 12
            self.ds(f"ds_read_b64_tr_b16 {a(buf+ft*4+e2*2,2)}, {v(VTR)} offset:{(s%R1)*3072 + e2*1536 + ft*32}",
                    f"W{s}_{ft}", needs=[f"w{s}_{ii}" for ii in range(3)])
        def mfma(s, ft, th):
            m, ks = divmod(s, 6)
            W = a(AW + (s % 4) * 12 + ft*4, 4)
            if m < 2:
                D = v((AQ if m == 0 else AK) + (ft*2+th)*4, 4)
                I(f"v_mfma_f32_16x16x32_bf16 {D}, {W}, {a(AH+(th*6+ks)*4,4)}, {'0' if ks == 0 else D}")
            elif m == 2:
                D = v(AV + (ft*2+th)*4, 4)
                I(f"v_mfma_f32_16x16x32_bf16 {D}, {a(AH+(th*6+ks)*4,4)}, {W}, {'0' if ks == 0 else D}")
            else:
                D = v(AO + (ft*2+th)*4, 4)
                I(f"v_mfma_f32_16x16x32_bf16 {D}, {W}, {a(AOF+(th*6+ks)*4,4)}, {D}")
        def step(s):
            m, ks = divmod(s, 6)
            if s + 2 < 24:
                self.s1_ensure(min(s + 2 + self.dbg.get("lead", 2), self.consumed + R1))
                self.wait_vm(f"w{s+2}_2")
            if m < 3 and s < 6: self.wait_lg(f"h{ks}")
            if m == 3: self.wait_lg(f"of{ks}")
            self.wait_lg(f"W{s}_2")
            self.consumed = s
            if self.dbg.get("place", 1):
                save, self.pace = self.pace, None
                for ft in range(3):
                    mfma(s, ft, 0)
                    if s + 2 < 24: trread(s + 2, ft, 0); trread(s + 2, ft, 1)
                    mfma(s, ft, 1)
                    if self.s1_allowed() and ft < self.dbg.get("dps", 3): self.s1_dma_one()
                self.pace = save
                return
            for ft in range(3):
                for th in range(2):
                    mfma(s, ft, th)
                    if s + 2 < 24: trread(s + 2, ft, th)

        def xinit():
            for ft in range(3):
                for th in range(2):
                    self.ds(f"ds_read_b64 {v(TP+32+(ft*2+th)*2,2)}, {v(VXR+ft)} offset:{th*256}", "xi")
        def xinit_unpack():
            self.wait_lg("xi")
            for ft in range(3):
                for th in range(2):
                    src = TP+32 + (ft*2+th)*2; d = AO + (ft*2+th)*4
                    I(f"v_lshlrev_b32 {v(d)}, 16, {v(src)}")
                    I(f"v_and_b32 {v(d+1)}, 0xffff0000, {v(src)}")
                    I(f"v_lshlrev_b32 {v(d+2)}, 16, {v(src+1)}")
                    I(f"v_and_b32 {v(d+3)}, 0xffff0000, {v(src+1)}")
        def s_partial():
            self.nop(3)
            for base, dst in ((AQ, TP), (AK, TP+12)):
                for ft in range(3):
                    for th in range(2):
                        src = base + (ft*2+th)*4; d = dst + th*6 + ft*2
                        I(f"v_cvt_pk_bf16_f32 {v(d)}, {v(src)}, {v(src+1)}")
                        I(f"v_cvt_pk_bf16_f32 {v(d+1)}, {v(src+2)}, {v(src+3)}")
            I(f"s_lshl_b32 s31, {S_W}, 11")
            I(f"s_add_u32 s31, s31, {L_SX}")
            for th in range(2):
                I(f"v_mfma_f32_16x16x32_bf16 {v(TP+24+4*th,4)}, {v(TP+12+th*6,4)}, {v(TP+th*6,4)}, 0")
            I(f"v_add_u32 v57, s31, {v(VD)}")
            I(f"v_add_u32 v62, {L_SX}, {v(VD)}")
            for th in range(2):
                I(f"v_mfma_f32_16x16x16_bf16 {v(TP+24+4*th,4)}, {v(TP+12+th*6+4,2)}, {v(TP+th*6+4,2)}, {v(TP+24+4*th,4)}")
            self.nop(7)
            for th in range(2):
                self.ds(f"ds_write_b128 v57, {v(TP+24+4*th,4)} offset:{th*1024}", "sp")
        def softmax_read():
            for w in range(4):
                for th in range(2):
                    self.ds(f"ds_read_b128 {v(TP+(w*2+th)*4,4)}, v62 offset:{w*2048+th*1024}", "sr")
        def softmax_t():
            b0 = TP
            self.wait_lg("sr")
            I(f"s_mov_b32 {S_C2}, {hx(f2u(SCALE_L2E))}")
            for th in range(2):
                for h in range(2):
                    b = b0 + th*4 + 2*h
                    I(f"v_pk_add_f32 {v(b,2)}, {v(b,2)}, {v(b+8,2)}")
                    I(f"v_pk_add_f32 {v(b+16,2)}, {v(b+16,2)}, {v(b+24,2)}")
            for th in range(2):
                for h in range(2):
                    b = b0 + th*4 + 2*h
                    I(f"v_pk_add_f32 {v(b,2)}, {v(b,2)}, {v(b+16,2)}")
            m, t = b0 + 8, b0 + 10
            for th in range(2): I(f"v_max3_f32 {v(m+th)}, {v(b0+th*4)}, {v(b0+th*4+1)}, {v(b0+th*4+2)}")
            for th in range(2): I(f"v_max_f32 {v(m+th)}, {v(m+th)}, {v(b0+th*4+3)}")
            for th in range(2): I(f"v_mov_b32 {v(t+th)}, {v(m+th)}")
            self.nop(1)
            for th in range(2): I(f"v_permlane16_swap_b32 {v(m+th)}, {v(t+th)}")
            for th in range(2): I(f"v_max_f32 {v(m+th)}, {v(m+th)}, {v(t+th)}")
            for th in range(2): I(f"v_mul_f32 {v(m+th)}, {S_C2}, {v(m+th)}")
            for th in range(2):
                for r in range(4): I(f"v_fma_f32 {v(b0+th*4+r)}, {v(b0+th*4+r)}, {S_C2}, -{v(m+th)}")
            for th in range(2):
                for r in range(4): I(f"v_exp_f32 {v(b0+th*4+r)}, {v(b0+th*4+r)}")
            I("s_nop 0")
            for th in range(2):
                I(f"v_add_f32 {v(m+th)}, {v(b0+th*4)}, {v(b0+th*4+1)}")
                I(f"v_add_f32 {v(t+th)}, {v(b0+th*4+2)}, {v(b0+th*4+3)}")
            for th in range(2): I(f"v_add_f32 {v(m+th)}, {v(m+th)}, {v(t+th)}")
            for th in range(2): I(f"v_mov_b32 {v(t+th)}, {v(m+th)}")
            self.nop(1)
            for th in range(2): I(f"v_permlane16_swap_b32 {v(m+th)}, {v(t+th)}")
            for th in range(2): I(f"v_add_f32 {v(m+th)}, {v(m+th)}, {v(t+th)}")
            for th in range(2): I(f"v_rcp_f32 {v(m+th)}, {v(m+th)}")
            I("s_nop 0")
            for th in range(2):
                for r in range(4): I(f"v_mul_f32 {v(b0+th*4+r)}, {v(b0+th*4+r)}, {v(m+th)}")
            for th in range(2):
                I(f"v_cvt_pk_bf16_f32 {v(PT+2*th)}, {v(b0+th*4)}, {v(b0+th*4+1)}")
                I(f"v_cvt_pk_bf16_f32 {v(PT+1+2*th)}, {v(b0+th*4+2)}, {v(b0+th*4+3)}")
            for r in range(4): I(f"v_cndmask_b32 {v(PT+r)}, 0, {v(PT+r)}, {S_MASKP}")
        def pv_t():
            self.nop(3)
            for ft in range(3):
                for th in range(2):
                    src = AV + (ft*2+th)*4; d = TP + (ft*2+th)*2
                    I(f"v_cvt_pk_bf16_f32 {v(d)}, {v(src)}, {v(src+1)}")
                    I(f"v_cvt_pk_bf16_f32 {v(d+1)}, {v(src+2)}, {v(src+3)}")
            I("s_nop 0")
            for ft in range(3):
                for th in range(2):
                    I(f"v_mfma_f32_16x16x16_bf16 {v(AV+(ft*2+th)*4,4)}, {v(TP+(ft*2+th)*2,2)}, {v(PT+2*th,2)}, 0")
            self.nop(3)
            for ft in range(3):
                for th in range(2):
                    src = AV + (ft*2+th)*4; d = TP+12 + (ft*2+th)*2
                    I(f"v_cvt_pk_bf16_f32 {v(d)}, {v(src)}, {v(src+1)}")
                    I(f"v_cvt_pk_bf16_f32 {v(d+1)}, {v(src+2)}, {v(src+3)}")
                    self.ds(f"ds_write_b64 {v(VXR+ft)}, {v(d,2)} offset:{(L_O-L_X)+th*256}", "ow")
            self.barrier()
            for ks in range(6):
                for th in range(2):
                    self.ds(f"ds_read_b128 {a(AOF+(th*6+ks)*4,4)}, {v(VHR+(ks&1))} offset:{(L_O-L_H)+ks*2048+th*256}", f"of{ks}")
            if not self.dbg.get("early", 1): self.setup_s1d()

        self.wait_vm("w0_2")
        self.fst(1, "w0 landed")
        for ft in range(3):
            for e2 in range(2): trread(0, ft, e2)
        self.wait_vm("w1_2")
        for ft in range(3):
            for e2 in range(2): trread(1, ft, e2)
        for s in range(24):
            if s == 8: xinit()
            step(s)
            if s == 8: xinit_unpack()
            if s == 11:
                self.stamp(5)
                self.fst(4, "step11")
                s_partial()
                self.fst(4, "s_partial")
            if s == 12:
                self.fst(4, "step12")
                self.wait_lg("sp"); I("s_barrier")
                self.fst(4, "sp barrier")
                softmax_read()
                self.setup_s1c()
                self.fst(4, "s1c")
            if s == 13:
                self.fst(4, "step13")
                softmax_t()
                self.fst(4, "softmax")
            if s == 17:
                self.stamp(6)
                self.fst(4, "step17")
                pv_t()
                self.fst(4, "pv+gather")
            if s in (18, 21, 23): self.fst(4, f"step{s}")
            if s == 5: self.stamp(4)
            if s in (0, 2): self.fst(1, f"step{s}")
            if self.dnext == 72 and "fus" not in self.vmq:
                I("v_mov_b32 v62, 0") if s > 13 else None
                assert s > 13
                self.vm(f"buffer_load_dword v63, v62, {srd(SDBG)}, 0 offen sc1", "fus")
            if s == 22: self.fusion_check()
        self.pace = None
        self.stamp(7)
        self.ln2_store()
        self.stamp(8)

    def fusion_check(self):
        I = self.I
        self.wait_vm("fus")
        I(f"s_mov_b32 s31, {SPIN_MAX}")
        self.L("L_fpoll")
        I("v_cmp_le_u32 vcc, 72, v63")
        I("s_cbranch_vccnz L_fdone")
        I(f"buffer_load_dword v63, v62, {srd(SDBG)}, 0 offen sc1")
        I("s_sub_u32 s31, s31, 1")
        I("s_waitcnt vmcnt(0)")
        I("s_cmp_lg_u32 s31, 0")
        I("s_cbranch_scc1 L_fpoll", pat="fspin")
        self.L("L_fdone")
        I(f"s_mul_i32 s31, {S_J}, 52")
        I(f"s_mul_i32 s34, {S_W}, 13")
        I("s_add_u32 s31, s31, s34")
        I("v_min_u32 v62, 12, v1")
        I("v_add_u32 v62, s31, v62")
        I("v_add_u32 v63, 448, v62")
        I("v_cmp_gt_u32 vcc, 576, v62")
        I(f"s_mov_b32 s31, {WS_WM}")
        I("s_nop 0")
        I("v_cndmask_b32 v62, v63, v62, vcc")
        I("v_lshlrev_b32 v62, 7, v62")
        self.vm(f"buffer_load_dword v63, v62, {srd(SWS)}, s31 offen sc1", "pf")

    def ln2_store(self):
        I = self.I
        s1, s2 = TP, TP + 4
        self.nop(3)
        for th in range(2):
            I(f"v_pk_add_f32 {v(s1+2*th,2)}, {v(AO+th*4,2)}, {v(AO+th*4+2,2)}")
            I(f"v_pk_mul_f32 {v(s2+2*th,2)}, {v(AO+th*4,2)}, {v(AO+th*4,2)}")
        for ft in range(3):
            for th in range(2):
                b = AO + (ft*2+th)*4
                if ft:
                    I(f"v_pk_add_f32 {v(s1+2*th,2)}, {v(s1+2*th,2)}, {v(b,2)}")
                    I(f"v_pk_fma_f32 {v(s2+2*th,2)}, {v(b,2)}, {v(b,2)}, {v(s2+2*th,2)}")
                    I(f"v_pk_add_f32 {v(s1+2*th,2)}, {v(s1+2*th,2)}, {v(b+2,2)}")
                I(f"v_pk_fma_f32 {v(s2+2*th,2)}, {v(b+2,2)}, {v(b+2,2)}, {v(s2+2*th,2)}")
        P = TP + 8
        for th in range(2):
            I(f"v_add_f32 {v(P+2*th)}, {v(s1+2*th)}, {v(s1+2*th+1)}")
            I(f"v_add_f32 {v(P+2*th+1)}, {v(s2+2*th)}, {v(s2+2*th+1)}")
        self.xg_reduce_add([P, P+1, P+2, P+3], [TP, TP+1, TP+2, TP+3])
        for th in range(2): self.ds(f"ds_write_b64 {v(VSTW)}, {v(P+2*th,2)} offset:{th*128}")
        I(f"s_mov_b32 {S_C0}, {hx(f2u(1.0/192))}")
        I(f"s_mov_b32 {S_C1}, {hx(f2u(1e-5))}")
        self.barrier()
        RB = XR
        for th in range(2):
            for w in range(4):
                self.ds(f"ds_read_b64 {v(RB+(th*4+w)*2,2)}, {v(VSTR)} offset:{w*256+th*128}", f"st{th}")
        for th in range(2):
            b = RB + th*8
            self.wait_lg(f"st{th}")
            I(f"v_pk_add_f32 {v(b,2)}, {v(b,2)}, {v(b+2,2)}")
            I(f"v_pk_add_f32 {v(b+4,2)}, {v(b+4,2)}, {v(b+6,2)}")
        for th in range(2): I(f"v_pk_add_f32 {v(RB+th*8,2)}, {v(RB+th*8,2)}, {v(RB+th*8+4,2)}")
        for th in range(2):
            b = RB + th*8
            I(f"v_mul_f32 {v(b)}, {S_C0}, {v(b)}")
            I(f"v_mov_b32 {v(b+2)}, {S_C1}")
        for th in range(2): I(f"v_fmac_f32 {v(RB+th*8+2)}, {S_C0}, {v(RB+th*8+1)}")
        for th in range(2): I(f"v_fma_f32 {v(RB+th*8+2)}, -{v(RB+th*8)}, {v(RB+th*8)}, {v(RB+th*8+2)}")
        for th in range(2): I(f"v_max_f32 {v(RB+th*8+6)}, {S_C1}, {v(RB+th*8+2)}")
        for th in range(2): I(f"v_rsq_f32 {v(RB+th*8+2)}, {v(RB+th*8+6)}")
        I("s_nop 0")
        for th in range(2):
            b = RB + th*8
            I(f"v_mul_f32 {v(b+4)}, {v(b)}, {v(b+2)}")
            I(f"v_mov_b32 {v(b+3)}, {v(b+2)}")
            I(f"v_mov_b32 {v(b+5)}, {v(b+4)}")
        HB = TP + 28
        for ft in range(3):
            for th in range(2):
                b = AO + (ft*2+th)*4; rb = RB + th*8
                I(f"v_pk_fma_f32 {v(b,2)}, {v(b,2)}, {v(rb+2,2)}, {v(rb+4,2)} neg_lo:[0,0,1] neg_hi:[0,0,1]")
                I(f"v_pk_fma_f32 {v(b+2,2)}, {v(b+2,2)}, {v(rb+2,2)}, {v(rb+4,2)} neg_lo:[0,0,1] neg_hi:[0,0,1]")
            for th in range(2):
                b = AO + (ft*2+th)*4; d = HB + ft*4 + th*2
                I(f"v_cvt_pk_bf16_f32 {v(d)}, {v(b)}, {v(b+1)}")
                I(f"v_cvt_pk_bf16_f32 {v(d+1)}, {v(b+2)}, {v(b+3)}")
            if ft:
                d = HB + (ft-1)*4
                I(f"v_permlane16_swap_b32 {v(d)}, {v(d+2)}")
                I(f"v_permlane16_swap_b32 {v(d+1)}, {v(d+3)}")
                self.vm(f"buffer_store_dwordx4 {v(d,4)}, {v(VST)}, {srd(SWS)}, {S_ST[ft-1]} offen {STF[self.dbg.get('stf', 0)]}", "st")
        I(f"v_mul_f32 {v(RB+1)}, {v(RB+6)}, {v(RB+2)}")
        I(f"v_mul_f32 {v(RB+9)}, {v(RB+14)}, {v(RB+10)}")
        I(f"v_permlane16_swap_b32 {v(HB+8)}, {v(HB+10)}")
        I(f"v_permlane16_swap_b32 {v(HB+9)}, {v(HB+11)}")
        self.vm(f"buffer_store_dwordx4 {v(HB+8,4)}, {v(VST)}, {srd(SWS)}, {S_ST[2]} offen {STF[self.dbg.get('stf', 0)]}", "st")
        I("v_and_b32 v62, 16, v1")
        I("v_cmp_eq_u32 vcc, 0, v62")
        I(f"s_cmp_lg_u32 {S_W}, 0")
        I("s_cbranch_scc1 L_nostat", pat="nostat")
        I(f"v_cndmask_b32 {v(TP)}, {v(RB+8)}, {v(RB)}, vcc")
        I(f"v_cndmask_b32 {v(TP+1)}, {v(RB+9)}, {v(RB+1)}, vcc")
        I(f"buffer_store_dwordx2 {v(TP,2)}, {v(VSTA)}, {srd(SWS)}, 0 offen sc1")
        self.L("L_nostat")

    def setup_s2(self):
        I = self.I; out = []
        def A(t): out.append(lambda t=t: I(t))
        t = [100 + i for i in range(7)]
        tk, g = t[5], t[6]
        A(f"v_and_b32 {v(tk)}, 15, v1"); A(f"v_lshrrev_b32 {v(g)}, 4, v1")
        A(f"s_mul_i32 {S_RING2}, {S_W}, 36864")
        A(f"s_mul_i32 {S_FBASE}, {S_X8}, {FRAMEB}")
        for k in range(2): A(f"v_add_u32 {v(VHR2+k)}, {L_Q - L_H}, {v(VHR+k)}")
        for k in range(3): A(f"v_add_u32 {v(VQW+k)}, {L_Q - L_X}, {v(VXR+k)}")
        A(f"v_lshrrev_b32 {v(t[0])}, 1, {v(g)}")
        A(f"v_and_b32 {v(t[2])}, 1, {v(g)}")
        A(f"v_lshrrev_b32 {v(t[1])}, 3, {v(tk)}")
        A(f"v_xor_b32 {v(t[4])}, {v(t[2])}, {v(t[0])}")
        A(f"v_xor_b32 {v(t[4])}, {v(t[4])}, {v(t[1])}")
        A(f"v_lshlrev_b32 {v(t[4])}, 6, {v(t[4])}")
        A(f"v_lshrrev_b32 {v(VOWN)}, 2, {v(tk)}")
        A(f"v_xor_b32 {v(VOWN)}, {v(VOWN)}, {v(t[2])}")
        A(f"v_lshl_add_u32 {v(t[4])}, {v(VOWN)}, 7, {v(t[4])}")
        A(f"v_lshl_add_u32 {v(t[4])}, {v(t[2])}, 10, {v(t[4])}")
        A(f"v_and_b32 {v(VOWN)}, 3, {v(tk)}")
        A(f"v_lshl_add_u32 {v(VOWN)}, {v(VOWN)}, 4, {v(t[4])}")
        A(f"v_lshl_add_u32 {v(t[3])}, {v(t[2])}, 4, {v(tk)}")
        A(f"s_lshl_b32 s35, {S_J}, 5")
        A(f"v_add_u32 {v(t[4])}, s35, {v(t[3])}")
        A(f"v_cmp_gt_u32 vcc, {N}, {v(t[4])}")
        A(f"s_mul_i32 s34, {S_X8}, {N}")
        A(f"v_add_u32 {v(t[4])}, s34, {v(t[4])}")
        A(f"v_mul_u32_u24 {v(t[4])}, 384, {v(t[4])}")
        A(f"s_mul_i32 s35, {S_W}, 96")
        A(f"v_lshl_add_u32 {v(t[4])}, {v(t[0])}, 4, {v(t[4])}")
        A(f"v_add_u32 {v(t[4])}, s35, {v(t[4])}")
        A(f"v_mov_b32 {v(VOUT)}, {hx(OOB)}")
        A(f"v_cndmask_b32 {v(VOUT)}, {v(VOUT)}, {v(t[4])}, vcc")
        A(f"v_bfe_u32 {v(t[4])}, {v(t[3])}, 3, 1")
        A(f"v_xor_b32 {v(t[4])}, {v(t[4])}, {v(t[0])}")
        A(f"v_lshlrev_b32 {v(t[4])}, 6, {v(t[4])}")
        A(f"v_and_b32 {v(t[1])}, 3, {v(t[3])}")
        A(f"v_lshl_add_u32 {v(t[4])}, {v(t[1])}, 4, {v(t[4])}")
        A(f"v_lshrrev_b32 {v(t[1])}, 2, {v(t[3])}")
        A(f"s_and_b32 s35, {S_W}, 1")
        A(f"v_xor_b32 {v(t[1])}, s35, {v(t[1])}")
        A(f"v_lshl_add_u32 {v(VR1)}, {v(t[1])}, 7, {v(t[4])}")
        A(f"v_xor_b32 {v(t[1])}, 1, {v(t[1])}")
        A(f"v_lshl_add_u32 {v(VR1+1)}, {v(t[1])}, 7, {v(t[4])}")
        A(f"s_add_u32 s34, {S_RING2}, {12288 + 8192}")
        A(f"v_add_u32 {v(VR1)}, s34, {v(VR1)}")
        A(f"v_add_u32 {v(VR1+1)}, s34, {v(VR1+1)}")
        A(f"s_mul_i32 s34, {S_X8}, 736")
        A(f"s_lshl_b32 s35, {S_J}, 5")
        A(f"s_add_u32 s34, s34, s35")
        A(f"s_lshl_b32 s34, s34, 3")
        A(f"s_add_u32 {S_STO}, s34, {WS_STAT}")
        A(f"v_lshlrev_b32 {v(VSTA)}, 3, {v(tk)}")
        A(f"v_xor_b32 {v(t[4])}, {v(t[0])}, {v(t[2])}")
        A(f"v_lshlrev_b32 {v(t[4])}, 7, {v(t[4])}")
        A(f"v_lshl_add_u32 {v(t[4])}, {v(t[2])}, 10, {v(t[4])}")
        A(f"v_bfe_u32 {v(t[1])}, v1, 2, 2")
        A(f"v_lshl_add_u32 {v(t[4])}, {v(t[1])}, 4, {v(t[4])}")
        A(f"v_and_b32 {v(t[1])}, 1, v1")
        A(f"v_lshl_add_u32 {v(t[4])}, {v(t[1])}, 3, {v(t[4])}")
        A(f"v_add_u32 {v(t[4])}, {S_RING2}, {v(t[4])}")
        A(f"v_bfe_u32 {v(t[1])}, v1, 1, 1")
        A(f"v_lshl_add_u32 {v(VV0)}, {v(t[1])}, 6, {v(t[4])}")
        A(f"v_xor_b32 {v(t[1])}, 1, {v(t[1])}")
        A(f"v_lshl_add_u32 {v(t[4])}, {v(t[1])}, 6, {v(t[4])}")
        A(f"v_add_u32 {v(VV1)}, 256, {v(t[4])}")
        A(f"v_and_b32 {v(t[0])}, 31, v1")
        A(f"v_lshrrev_b32 {v(t[1])}, 5, v1")
        A(f"v_lshrrev_b32 {v(t[2])}, 2, {v(t[0])}")
        A(f"v_bfe_u32 {v(t[3])}, {v(t[0])}, 3, 1")
        A(f"v_xor_b32 {v(t[3])}, {v(t[3])}, {v(t[1])}")
        A(f"v_lshlrev_b32 {v(t[3])}, 6, {v(t[3])}")
        A(f"v_and_b32 {v(t[4])}, 3, {v(t[0])}")
        A(f"v_lshl_add_u32 {v(t[3])}, {v(t[4])}, 4, {v(t[3])}")
        A(f"v_add_u32 {v(t[3])}, {S_RING2}, {v(t[3])}")
        A(f"v_lshl_add_u32 {v(VK0)}, {v(t[2])}, 7, {v(t[3])}")
        A(f"v_xor_b32 {v(t[2])}, 1, {v(t[2])}")
        A(f"v_lshl_add_u32 {v(VK1)}, {v(t[2])}, 7, {v(t[3])}")
        A(f"v_lshlrev_b32 {v(t[2])}, 9, {v(t[1])}")
        A(f"v_add_u32 {v(t[2])}, {L_Q}, {v(t[2])}")
        for k in range(4):
            A(f"v_add_u32 {v(t[3])}, {2*k}, {v(t[1])}")
            A(f"v_xor_b32 {v(t[3])}, {v(t[3])}, {v(t[0])}")
            A(f"v_lshl_add_u32 {v(VQR+k)}, {v(t[3])}, 4, {v(t[2])}")
        A(f"v_lshlrev_b32 {v(t[2])}, 3, {v(t[1])}")
        A(f"s_mul_i32 s34, {S_W}, 3072")
        A(f"s_add_u32 s34, s34, {L_Q}")
        A(f"v_add_u32 {v(t[2])}, s34, {v(t[2])}")
        A(f"s_mul_i32 s36, {S_W}, 6")
        for u in range(6):
            A(f"s_add_u32 s35, s36, {u}")
            A("s_and_b32 s35, s35, 7")
            A(f"v_xor_b32 {v(t[3])}, s35, {v(t[0])}")
            A(f"v_lshl_add_u32 {v(VOW+u)}, {v(t[3])}, 4, {v(t[2])}")
        A(f"v_lshlrev_b32 {v(t[0])}, 3, {v(t[0])}")
        A(f"s_lshl_b32 s34, {S_W}, 8")
        A(f"s_add_u32 s34, s34, {L_ML}")
        A(f"v_add_u32 {v(VML)}, s34, {v(t[0])}")
        A(f"v_add_u32 {v(VEX)}, {S_RING2}, {v(VD)}")
        for k in range(1, 4):
            A(f"s_add_u32 s36, {S_W}, {k}")
            A("s_and_b32 s36, s36, 3")
            A("s_lshl_b32 s34, s36, 8")
            A(f"s_add_u32 s34, s34, {L_ML}")
            A(f"v_add_u32 {v(VMLR+k-1)}, s34, {v(t[0])}")
            A("s_mul_i32 s34, s36, 36864")
            A(f"s_mul_i32 s35, {S_W}, 6144")
            A("s_add_u32 s34, s34, s35")
            A(f"v_add_u32 {v(VEXR+k-1)}, s34, {v(VD)}")
        A(f"v_add_u32 {v(VD+1)}, 4096, {v(VD)}")
        A(f"v_add_u32 {v(VD+2)}, 8192, {v(VD)}")
        A(f"s_add_u32 s36, {S_J}, {S_W}")
        A(f"s_mov_b32 {S_R22}, 99")
        for k in range(6):
            if k: A("s_add_u32 s36, s36, 4")
            grp = ["s_cmp_ge_u32 s36, 23", "s_cselect_b32 s34, 23, 0", "s_sub_u32 s36, s36, s34",
                   "s_cmp_eq_u32 s36, 22", f"s_cselect_b32 {S_R22}, {k}, {S_R22}",
                   f"s_mul_i32 {S_TOF[k]}, s36, {TILEB}", f"s_add_u32 {S_TOF[k]}, {S_TOF[k]}, {S_FBASE}"]
            out.append(lambda grp=grp: [I(x) for x in grp])
        A(f"s_mul_i32 {S_WV0}, {S_W}, 18432")
        A(f"s_add_u32 {S_WV0}, {S_WV0}, {WS_WVO}")
        A(f"s_mul_i32 {S_H2O}, {S_J}, {TILEB}")
        A(f"s_add_u32 {S_H2O}, {S_H2O}, {S_FBASE}")
        A(f"s_mul_i32 s34, {S_W}, 3072")
        A(f"s_add_u32 {S_H2O}, {S_H2O}, s34")
        for r in range(16): A(f"v_mov_b32 {v(VNM+r)}, 0")
        A(f"v_mov_b32 {v(VL)}, 0")
        A(f"s_mov_b32 {S_C0}, {hx(f2u(HI_THR))}")
        A(f"s_mov_b32 {S_C1}, {hx(f2u(LO_THR))}")
        return out

    def handoff(self):
        I = self.I
        self.fst(2, "st issued")
        items = self.setup_s2()
        na = int(len(items) * self.dbg.get("fa", 70) / 100)
        for f in items[:na]: f()
        self.fst(2, "setupA")
        self.vm_all()
        self.stamp(9)
        self.fst(2, "drained")
        I("s_barrier")
        I(f"s_cmp_lg_u32 {S_W}, 0")
        I("s_cbranch_scc1 L_nosig", pat="nosig")
        I("v_lshlrev_b32 v62, 12, v1")
        I(f"s_lshl_b32 s31, {S_J}, 7")
        I(f"s_add_u32 s31, s31, {WS_SYNC}")
        I("v_mov_b32 v63, 1")
        I("v_add_u32 v62, s31, v62")
        I("s_mov_b64 exec, 0xff")
        I(f"buffer_atomic_add v63, v62, {srd(SWS)}, 0 offen sc1")
        I("s_mov_b64 exec, -1")
        self.L("L_nosig")
        I(f"s_mul_i32 s31, {S_W}, 18432")
        I(f"s_add_u32 s31, s31, {WS_WM}")
        it = na; per = -(-(len(items) - na) // 18)
        for q in range(18):
            if q % 4 == 0 and q: I(f"s_add_u32 s31, s31, 4096")
            self.vm(f"buffer_load_dwordx4 {a(AM+4*q,4)}, {v(VD)}, {srd(SWS)}, s31 offen offset:{(q%4)*1024} sc1", "wf")
            for _ in range(per):
                if it < len(items): items[it](); it += 1
        while it < len(items): items[it](); it += 1
        self.fst(2, "setupB")
        I(f"s_cmp_lg_u32 {S_W}, 0")
        I("s_cbranch_scc1 L_hwait", pat="hwait")
        I("v_min_u32 v62, 22, v1")
        I("v_lshlrev_b32 v62, 7, v62")
        I(f"s_lshl_b32 s31, {S_X8}, 12")
        I(f"s_add_u32 s31, s31, {WS_SYNC}")
        I(f"s_mov_b32 s34, {SPIN_MAX}")
        self.L("L_hpoll")
        I(f"buffer_load_dword v63, v62, {srd(SWS)}, s31 offen sc1")
        I("s_sub_u32 s34, s34, 1")
        I("s_cmp_eq_u32 s34, 0")
        I("s_cbranch_scc1 L_hwait", pat="hspin")
        I("s_waitcnt vmcnt(0)")
        I("v_cmp_gt_u32 vcc, 8, v63")
        I("s_cbranch_vccnz L_hpoll")
        self.L("L_hwait")
        I("s_barrier")
        self.stamp(10)
        self.fst(2, "go")

    def tile_src(self, r, grp):
        if r < 6: return S_TOF[r], []
        if r == 6: return S_WV0, []
        if grp < 2: return "s36", [f"s_add_u32 s36, {S_WV0}, 12288"]
        return S_H2O, []
    def m0_for(self, r, grp):
        so, pre = self.tile_src(r, grp)
        self.I(f"s_add_u32 m0, {S_RING2}, {(r % 3) * 12288 + grp * 4096}")
        for x in pre: self.I(x)
    def dma_items(self, r, parts, chain=False):
        out = []
        for part in parts:
            def f(part=part):
                grp = part // 4
                so, pre = self.tile_src(r, grp)
                if part % 4 == 0 and not chain:
                    self.m0_for(r, grp)
                    if not pre: self.I("s_nop 0")
                lane = VD if (r == 7 and grp == 2) else VD + grp
                self.vm(f"buffer_load_dwordx4 {v(lane)}, {srd(SWS)}, {so} offen offset:{(part%4)*1024} {LDF[self.dbg.get('ldf', 0)]} lds", f"t{r}_{part}")
                if chain and part % 4 == 3:
                    if part < 11: self.m0_for(r, grp + 1)
                    elif r < 7: self.m0_for(r + 1, 0)
            out.append(f)
        return out

    def s2(self):
        I = self.I
        I(f"s_sub_u32 s35, {S_H2O}, 0")
        I(f"s_mul_i32 s36, {S_W}, 3072")
        I("s_mov_b32 m0, s36")
        I("s_nop 0")
        for q in range(3):
            self.vm(f"buffer_load_dwordx4 {v(VD)}, {srd(SWS)}, s35 offen offset:{q*1024} sc1 lds", "own")
        I(f"s_cmp_eq_u32 {S_W}, 0")
        I("s_cbranch_scc1 L_s2_w0", pat="w0")
        for f in self.dma_items(0, range(12)): f()
        I("s_waitcnt vmcnt(12)")
        I("s_branch L_s2_j")
        self.L("L_s2_w0")
        I("s_waitcnt vmcnt(0)")
        self.L("L_s2_j")
        self.fst(2, "own landed")
        I("s_barrier")
        own_idx = max(i for i, t in enumerate(self.vmq) if t == "own")
        self.vm_done = own_idx + 1
        for ks in range(6):
            for th in range(2):
                self.ds(f"ds_read_b128 {a((th*6+ks)*4,4)}, {v(VOWN)} offset:{ks*2048+th*512}", f"ob{ks}", needs=["own"])
        for th in range(2):
            self.vm(f"buffer_load_dwordx2 {v(VMU+2*th,2)}, {v(VSTA)}, {srd(SWS)}, {S_STO} offen offset:{128*th} sc1", "mu")
        d1 = self.dma_items(1, range(12)); d2 = self.dma_items(2, range(6))
        n = 0
        for ks in range(6):
            self.wait_lg(f"ob{ks}")
            for ft in range(3):
                for th in range(2):
                    D = v(VPD+(ft*2+th)*4, 4)
                    I(f"v_mfma_f32_16x16x32_bf16 {D}, {a(AM+(ft*6+ks)*4,4)}, {a((th*6+ks)*4,4)}, {'0' if ks == 0 else D}", needs=["wf"])
                    n += 1
                    if n % 3 == 0: d1[n // 3 - 1]()
        self.fst(2, "q mfma")
        self.nop(3)
        for ft in range(3):
            for th in range(2):
                b = VPD+(ft*2+th)*4; d = VE + (ft*2+th)*2
                I(f"v_cvt_pk_bf16_f32 {v(d)}, {v(b)}, {v(b+1)}")
                I(f"v_cvt_pk_bf16_f32 {v(d+1)}, {v(b+2)}, {v(b+3)}")
                self.ds(f"ds_write_b64 {v(VQW+ft)}, {v(d,2)} offset:{th*256}")
            d2[2*ft](); d2[2*ft+1]()
        self.wait_vm("t0_11")
        self.barrier()
        self.fst(2, "q barrier")
        for jj in range(12):
            self.ds(f"ds_read_b128 {a(AQP+4*jj,4)}, {v(VQR+(jj&3))} offset:{jj*1024}", f"q{jj}")
            self.ds(f"ds_read_b128 {a(AKF+4*jj,4)}, {v(VK0+(jj&1))} offset:{jj*1024}", f"k0_{jj}", needs=["own"] + [f"t0_{q}" for q in range(12)])
        self.stamp(11)
        self.rounds()
        self.stamp(12)
        self.fst(2, "rounds"); self.fst(3, "rounds")
        self.tail()
        self.rare()

    def kread(self, r, k):
        def f():
            if k % 3 == 0: self.wait_vm(f"t{r}_{k+2}")
            self.ds(f"ds_read_b128 {a(AKF+4*k,4)}, {v(VK0+(k&1))} offset:{(r%3)*12288 + k*1024}", f"k{r}_{k}", needs=[f"t{r}_{k}"])
        return f
    def wvread(self, k):
        def f():
            if k == 0: self.I(f"v_add_u32 v63, {S_RING2}, {v(VD)}")
            if k % 4 == 0: self.wait_vm(f"t6_{k+3}")
            self.ds(f"ds_read_b128 {a(AWV+4*k,4)}, v63 offset:{k*1024}", "wv6", needs=[f"t6_{k}"])
        return f
    def vread(self, r, m, e2):
        s_, ct = divmod(m, 6)
        def f():
            self.ds(f"ds_read_b64_tr_b16 {a(AVF+(ct*2+s_)*4+2*e2,2)}, {v(VV0+e2)} offset:{(r%3)*12288 + ct*2048 + s_*512}", f"v{r}_{m}")
        return f
    def smfma(self, r, jj):
        S = VSB[r & 1]
        def f():
            if r == 0:
                self.wait_lg(f"k0_{jj}")
            elif jj == 0: self.wait_lg(f"k{r}_11")
            self.I(f"v_mfma_f32_32x32x16_bf16 {v(S,16)}, {a(AKF+4*jj,4)}, {a(AQP+4*jj,4)}, {v(VNM,16) if jj == 0 else v(S,16)}")
        return f
    def pmfma(self, r, m, order=None):
        s_, ct = divmod(m, 6) if order is None else order
        def f():
            self.wait_lg(f"v{r}_{s_*6+ct}")
            C_ = "0" if (r == 0 and s_ == 0) else v(VO+16*ct, 16)
            self.I(f"v_mfma_f32_32x32x16_bf16 {v(VO+16*ct,16)}, {a(AVF+(ct*2+s_)*4,4)}, {v(VPB+4*s_,4)}, {C_}")
        return f
    def sm_items(self, r, lo, hi):
        I = self.I; S = VSB[r & 1]
        ex = []
        for k in range(lo, hi):
            def f(k=k):
                I(f"v_exp_f32 {v(VE+k)}, {v(S+k)}")
                p = k - 2
                if p == 1: I(f"v_add_f32 {v(VTS)}, {v(VE)}, {v(VE+1)}")
                elif p == 3: I(f"v_add_f32 {v(VTS+1)}, {v(VE+2)}, {v(VE+3)}")
                elif p >= 4: I(f"v_add_f32 {v(VTS+(p & 1))}, {v(VTS+(p & 1))}, {v(VE+p)}")
            ex.append(f)
        return ex
    def cv_items(self, lo, hi):
        return [(lambda k=k: self.I(f"v_cvt_pk_bf16_f32 {v(VPB+k)}, {v(VE+2*k)}, {v(VE+2*k+1)}")) for k in range(lo, hi)]
    def sm_half(self, r, h):
        return self.sm_items(r, 8*h, 8*h + 8), self.cv_items(4*h, 4*h + 4)
    def mask22(self, r):
        def f():
            I = self.I; S = VSB[r & 1]
            I(f"s_cmp_eq_u32 {S_R22}, {r}")
            I(f"s_cbranch_scc0 L_nm{r}", pat=f"nm{r}")
            for k in (13, 14, 15): I(f"v_mov_b32 {v(S+k)}, {NINF}")
            I(f"v_mov_b32 v62, {NINF}")
            I(f"v_cndmask_b32 {v(S+12)}, {v(S+12)}, v62, {S_MASKH}")
            self.L(f"L_nm{r}")
        return f
    def check_items(self, r):
        I = self.I
        it = [lambda: I(f"v_add_f32 {v(VTS)}, {v(VTS)}, {v(VE+14)}"),
              lambda: I(f"v_add_f32 {v(VTS+1)}, {v(VTS+1)}, {v(VE+15)}"),
              lambda: I(f"v_add_f32 {v(VTS)}, {v(VTS)}, {v(VTS+1)}"),
              lambda: I(f"v_cmp_nge_f32 vcc, {S_C0}, {v(VTS)}")]
        if r == 0:
            it.append(lambda: I(f"v_cmp_gt_f32 s[34:35], {S_C1}, {v(VTS)}"))
            it.append(lambda: I("s_or_b64 vcc, vcc, s[34:35]"))
        return it
    def check_branch(self, r):
        self.I(f"s_cbranch_vccnz L_rare_{r}", pat=f"rare{r}")
        self.L(f"L_back_{r}")
    def l_update(self): self.I(f"v_add_f32 {v(VL)}, {v(VL)}, {v(VTS)}")
    def check(self, r):
        for f in self.check_items(r): f()
        self.check_branch(r); self.l_update()

    def rounds(self):
        d = self.dbg
        n1 = d.get("n1", 10)
        na = d.get("na", 6)
        fg = d.get("fg", 1)
        self.n1 = n1
        def Q(name, items, cost, g0, g1=11, per=2, dep=None):
            return dict(name=name, items=[(cost, f) for f in items], g0=g0, g1=g1, per=per, dep=dep)
        def pin(pinned, gap, cost, f): pinned.setdefault(gap, []).append((cost, f))
        p = {}
        for k in range(12): pin(p, k, 4, self.kread(1, k))
        for m in range(12):
            for e in range(2): pin(p, m, 4, self.vread(0, m, e))
        self.phase2([self.smfma(0, jj) for jj in range(12)], p, [Q("dma", self.dma_items(2, range(6, 12), True), 8, 1, per=1)])
        for r in range(1, 6):
            p = {}; lo = 0 if r == 1 else n1
            if r + 1 < 6:
                for k in range(12): pin(p, k, 4, self.kread(r + 1, k))
            else:
                for k in range(12): pin(p, min(11, k + 1), 4, self.wvread(k))
            ex = self.sm_items(r - 1, lo, 16)
            m22 = self.mask22(r - 1)
            i12 = 12 - lo
            ex[i12] = (lambda f=ex[i12], m=m22: (m(), f()))
            cvlo = 0 if r == 1 else 4
            na = d.get("na1", 6) if r == 1 else d.get("na", 6)
            dm = self.dma_items(r + 2, range(na), True)
            dm[0] = (lambda f=dm[0], r=r: (self.wait_lg(f"v{r-1}_11"), f()))
            nex = len(ex)
            flex = [Q("ex", ex, 12, 3 if r == 1 else 0, d.get("ge1", 9) if r == 1 else d.get("ge", 7), per=3 if r == 1 else 2),
                    Q("dma", dm, 8, fg, 11, per=1),
                    Q("cv", self.cv_items(cvlo, 8), 4, 0, 11, per=2, dep=lambda i, pl, lo=lo, cvlo=cvlo: lo + pl["ex"] >= 2 * (cvlo + i) + 2),
                    Q("ck", self.check_items(r - 1), 4, 8, 11, per=2, dep=lambda i, pl, nex=nex: pl["ex"] >= nex)]
            self.phase2([self.smfma(r, jj) for jj in range(12)], p, flex)
            self.check_branch(r - 1)
            p = {}
            for m in range(12):
                for e in range(2): pin(p, m, 4, self.vread(r, m, e))
            pin(p, 0, 4, self.l_update)
            if r == 5: pin(p, 2, 8, self.mask_dummy)
            flex = [Q("ex", self.sm_items(r, 0, n1), 12, 3 if r == 5 else 2, 11, per=2),
                    Q("dma", self.dma_items(r + 2, range(na, 12), True), 8, 0, d.get("gb", 9), per=1),
                    Q("cv", self.cv_items(0, 4), 4, 6, 11, per=2, dep=lambda i, pl: pl["ex"] >= 2 * i + 2)]
            self.phase2([self.pmfma(r - 1, m) for m in range(12)], p, flex)
    def mask_dummy(self):
        I = self.I; S = VSB[1]
        I(f"s_cmp_eq_u32 {S_W}, 3")
        I("s_cbranch_scc0 L_ndum", pat="ndum")
        for k in range(16): I(f"v_mov_b32 {v(S+k)}, {NINF}")
        self.L("L_ndum")

    def tail(self):
        I = self.I
        self.mask22(5)()
        for f in self.sm_items(5, self.n1, 16): f()
        for f in self.cv_items(4, 8): f()
        self.check(5)
        self.fst(3, "sm5")
        I(f"v_mov_b32 v62, {v(VL)}")
        I(f"v_mov_b32 v63, {v(VL)}")
        order = [(s_, ct) for ct in range(6) for s_ in range(2)]
        pv = [self.pmfma(5, 0, o) for o in order]
        pv[0]()
        I(f"v_sub_f32 v88, 0, {v(VNM)}")
        I("v_permlane32_swap_b32 v62, v63")
        I("v_add_f32 v89, v62, v63")
        pv[1]()
        self.ds(f"ds_write_b64 {v(VML)}, v[88:89]")
        I(f"v_add_u32 v62, {S_RING2}, {v(VD)}")
        pv[2](); pv[3]()
        self.vm_all()
        rd = [f"ds_read_b128 {a(AWV+48+4*q,4)}, v62 offset:{12288+q*1024}" for q in range(6)]
        rd += [f"ds_read_b128 {v(VPD+4*ft,4)}, {v(VR1+(ft&1))} offset:{ft*1024}" for ft in range(3)]
        ri = 0
        for n in range(4, 12):
            pv[n]()
            for _ in range(2):
                if ri < len(rd): self.ds(rd[ri], "wv"); ri += 1
        assert ri == len(rd)
        self.fst(3, "pv5 issued")
        self.wait_lg()
        self.fst(3, "wv read")
        XI = 96
        res = []
        for ft in range(3):
            b = VPD + 4*ft
            res.append(f"v_permlane16_swap_b32 {v(b)}, {v(b+2)}")
            res.append(f"v_permlane16_swap_b32 {v(b+1)}, {v(b+3)}")
        for ft in range(3):
            for th in range(2):
                src = VPD + 4*ft + 2*th; d = XI + (ft*2+th)*4
                res += [f"v_lshlrev_b32 {v(d)}, 16, {v(src)}", f"v_and_b32 {v(d+1)}, 0xffff0000, {v(src)}",
                        f"v_lshlrev_b32 {v(d+2)}, 16, {v(src+1)}", f"v_and_b32 {v(d+3)}, 0xffff0000, {v(src+1)}"]
        for ft in range(3):
            for th in range(2):
                d = XI + (ft*2+th)*4
                for r in range(4): res.append(f"v_fma_f32 {v(d+r)}, {v(d+r)}, {v(VMU+2*th+1)}, {v(VMU+2*th)}")
        self.wait_vm("mu")
        for d in range(4):
            I(f"s_cmp_eq_u32 {S_W}, {d}")
            I(f"s_cbranch_scc1 L_own{d}", pat=f"own{d}")
            if d == 3: self.nop(4)
            for u in range(6):
                I(f"ds_write_b128 {v(VEX)}, {v(VO+24*d+4*u,4)} offset:{(d*6+u)*1024}")
            I(f"s_branch L_nxt{d}")
            self.L(f"L_own{d}")
            if d == 3: self.nop(4)
            for r in range(24): I(f"v_mov_b32 {v(64+r)}, {v(VO+24*d+r)}")
            self.L(f"L_nxt{d}")
            for t in res[d*14:(d+1)*14]: I(t)
        self.fst(3, "ex written")
        self.fst(3, "resid")
        I("s_waitcnt lgkmcnt(0)")
        I("s_barrier")
        self.fst(3, "ex barrier")
        self.lgq, self.lg_done = [], 0
        for k in range(1, 4): self.ds(f"ds_read_b64 {v(88+2*k,2)}, {v(VMLR+k-1)}", "ml")
        for k in range(1, 4):
            for u in range(6):
                self.ds(f"ds_read_b128 {v(VO+(k-1)*24+4*u,4)}, {v(VEXR+k-1)} offset:{u*1024}", f"o{k}")
        self.wait_lg("ml")
        I("v_max3_f32 v55, v88, v90, v92")
        I("v_max_f32 v55, v55, v94")
        for src in (88, 90, 92, 94): I(f"v_sub_f32 {v(src)}, {v(src)}, v55")
        for src in (88, 90, 92, 94): I(f"v_exp_f32 {v(src)}, {v(src)}")
        I("s_nop 0")
        I("v_mul_f32 v55, v88, v89")
        for src in (90, 92, 94): I(f"v_fmac_f32 v55, {v(src)}, {v(src+1)}")
        I("v_rcp_f32 v55, v55")
        I("s_nop 0")
        for src in (88, 90, 92, 94): I(f"v_mul_f32 {v(src)}, {v(src)}, v55")
        for src in (88, 90, 92, 94): I(f"v_mov_b32 {v(src+1)}, {v(src)}")
        for r in range(0, 24, 2): I(f"v_pk_mul_f32 {v(64+r,2)}, {v(64+r,2)}, v[88:89]")
        self.wait_lg("o1")
        for r in range(0, 24, 2): I(f"v_pk_fma_f32 {v(64+r,2)}, {v(VO+r,2)}, v[90:91], {v(64+r,2)}")
        self.wait_lg("o2")
        for r in range(0, 24, 2): I(f"v_pk_fma_f32 {v(64+r,2)}, {v(VO+24+r,2)}, v[92:93], {v(64+r,2)}")
        self.wait_lg("o3")
        for u in range(6):
            for h2 in range(2):
                r = 4*u + 2*h2
                I(f"v_pk_fma_f32 {v(64+r,2)}, {v(VO+48+r,2)}, v[94:95], {v(64+r,2)}")
            I(f"v_cvt_pk_bf16_f32 {v(120+2*(u&3))}, {v(64+4*u)}, {v(65+4*u)}")
            I(f"v_cvt_pk_bf16_f32 {v(121+2*(u&3))}, {v(66+4*u)}, {v(67+4*u)}")
            self.ds(f"ds_write_b64 {v(VOW+u)}, {v(120+2*(u&3),2)} offset:{u*512}")
        self.stamp(13)
        self.fst(3, "combined")
        self.barrier()
        self.fst(3, "o barrier")
        for ks in range(6):
            for th in range(2):
                self.ds(f"ds_read_b128 {a((th*6+ks)*4,4)}, {v(VHR2+(ks&1))} offset:{ks*2048+th*256}", f"f{ks}")
        for ks in range(6):
            self.wait_lg(f"f{ks}")
            for ft in range(3):
                for th in range(2):
                    D = v(XI+(ft*2+th)*4, 4)
                    I(f"v_mfma_f32_16x16x32_bf16 {D}, {a(AWV+(ft*6+ks)*4,4)}, {a((th*6+ks)*4,4)}, {D}")
        self.fst(3, "proj mfma")
        self.nop(3)
        if self.dbg.get("perturb"):
            self.nop(8)
            I(f"s_lshl_b32 s31, {S_J}, 5")
            I(f"s_add_u32 s31, s31, {S_X8}")
            I(f"s_lshl_b32 s31, s31, 2")
            I(f"s_add_u32 s31, s31, {S_W}")
            I("s_cmp_lg_u32 s31, 0")
            I("s_cbranch_scc1 L_nopert", pat="nopert")
            I("s_mov_b64 exec, 1")
            I(f"v_add_f32 {v(XI)}, {hx(f2u(self.dbg['perturb'] / 1000.0))}, {v(XI)}")
            I("s_mov_b64 exec, -1")
            self.L("L_nopert")
        for ft in range(3):
            for th in range(2):
                b = XI+(ft*2+th)*4; d = 64 + ft*4 + th*2
                I(f"v_cvt_pk_bf16_f32 {v(d)}, {v(b)}, {v(b+1)}")
                I(f"v_cvt_pk_bf16_f32 {v(d+1)}, {v(b+2)}, {v(b+3)}")
            if ft:
                d = 64 + (ft-1)*4
                I(f"v_permlane16_swap_b32 {v(d)}, {v(d+2)}")
                I(f"v_permlane16_swap_b32 {v(d+1)}, {v(d+3)}")
                I(f"buffer_store_dwordx4 {v(d,4)}, {v(VOUT)}, {srd(SOUT)}, 0 offen offset:{(ft-1)*32} {OUTF[self.dbg.get('of', 0)]}")
        I("s_nop 0")
        I("v_permlane16_swap_b32 v72, v74")
        I("v_permlane16_swap_b32 v73, v75")
        I(f"buffer_store_dwordx4 v[72:75], {v(VOUT)}, {srd(SOUT)}, 0 offen offset:64 {OUTF[self.dbg.get('of', 0)]}")
        self.fst(3, "out issued")
        if self.dbg.get("stamps"):
            I("s_waitcnt vmcnt(0)")
            self.stamp(14)
            self.stamps_out()
        I("s_branch L_end")

    def rare(self):
        I = self.I
        for r in range(6):
            self.L(f"L_rare_{r}")
            I(f"s_mov_b32 {S_RND}, {r}")
            I(f"s_branch L_rare_p{r & 1}")
        for p in range(2):
            S, Sn = VSB[p], VSB[1 - p]
            self.L(f"L_rare_p{p}")
            self.nop(12)
            I(f"v_max3_f32 v55, {v(S)}, {v(S+1)}, {v(S+2)}")
            for r in range(3, 15, 2): I(f"v_max3_f32 v55, v55, {v(S+r)}, {v(S+r+1)}")
            I(f"v_max_f32 v55, v55, {v(S+15)}")
            I("v_mov_b32 v62, v55")
            I(f"v_mov_b32 v63, {v(VL)}")
            I(f"v_mov_b32 v46, {v(VL)}")
            self.nop(1)
            I("v_permlane32_swap_b32 v55, v62")
            I("v_permlane32_swap_b32 v63, v46")
            I("v_max_f32 v55, v55, v62")
            I("v_add_f32 v63, v63, v46")
            I("v_max_f32 v62, 0, v55")
            I("v_cmp_eq_f32 vcc, 0, v63")
            self.nop(2)
            I("v_cndmask_b32 v55, v62, v55, vcc")
            I("v_sub_f32 v62, 0, v55")
            I("v_exp_f32 v62, v62")
            I("s_nop 0")
            I("v_cndmask_b32 v62, v62, 1.0, vcc")
            I(f"s_cmp_eq_u32 {S_RND}, 0")
            I(f"s_cbranch_scc1 L_rare_noO{p}", pat=f"noO{p}")
            for r in range(96): I(f"v_mul_f32 {v(VO+r)}, {v(VO+r)}, v62")
            self.L(f"L_rare_noO{p}")
            I(f"v_mul_f32 {v(VL)}, {v(VL)}, v62")
            for r in range(16): I(f"v_sub_f32 {v(VNM+r)}, {v(VNM+r)}, v55")
            for r in range(16): I(f"v_sub_f32 {v(S+r)}, {v(S+r)}, v55")
            I(f"s_cmp_eq_u32 {S_RND}, 5")
            I(f"s_cbranch_scc1 L_rare_noN{p}", pat=f"noN{p}")
            for r in range(16): I(f"v_sub_f32 {v(Sn+r)}, {v(Sn+r)}, v55")
            self.L(f"L_rare_noN{p}")
            for r in range(16): I(f"v_exp_f32 {v(VE+r)}, {v(S+r)}")
            I("s_nop 0")
            I(f"v_add_f32 {v(VTS)}, {v(VE)}, {v(VE+1)}")
            for r in range(2, 16): I(f"v_add_f32 {v(VTS)}, {v(VTS)}, {v(VE+r)}")
            for k in range(8): I(f"v_cvt_pk_bf16_f32 {v(VPB+k)}, {v(VE+2*k)}, {v(VE+2*k+1)}")
            for r in range(p, 6, 2):
                I(f"s_cmp_eq_u32 {S_RND}, {r}")
                I(f"s_cbranch_scc1 L_back_{r}", pat=f"ret{r}")
            I("s_branch L_end")

    def build(self):
        self.entry(); self.s1(); self.handoff(); self.s2(); self.fusion()
        self.L("L_end"); self.I("s_endpgm"); self.L("L_codeend")
        return self.p

HEADER = """; TimeSformer block (temporal attention + spatial attention), one persistent launch.
; Workgroups with id>>3 < 9 fuse the spatial weights (Wq Wk^T, Wv Wo) and prefetch weights and code into L2.
; @launch grid=(256,1,1) block=(256,1,1) lds=%d
.amdgcn_target "amdgcn-amd-amdhsa--gfx950"
.text
.globl %s
.p2align 8
.type %s,@function
"""
FOOTER = """
.section .rodata,"a"
.p2align 6
.amdhsa_kernel %s
  .amdhsa_next_free_vgpr 512
  .amdhsa_next_free_sgpr 102
  .amdhsa_accum_offset 256
  .amdhsa_group_segment_fixed_size 0
  .amdhsa_kernarg_size 64
  .amdhsa_user_sgpr_count 2
  .amdhsa_user_sgpr_kernarg_segment_ptr 1
  .amdhsa_system_sgpr_workgroup_id_x 1
  .amdhsa_float_denorm_mode_32 3
.end_amdhsa_kernel
"""

def scenarios():
    base = {"L_fdone": [1], "L_hpoll": [0], "L_end": [0]}
    out = {}
    for w in range(4):
        for rare in (None, 0, 1, 2, 3, 4, 5):
            for r22 in (99, 0, 3, 5):
                if rare is not None and r22 not in (99, rare): continue
                c = dict(base)
                c.update({"w0": [1 if w == 0 else 0], "hwait": [0 if w == 0 else 1], "nosig": [0 if w == 0 else 1],
                          "nostat": [0 if w == 0 else 1], "ndum": [0 if w == 3 else 1]})
                for d in range(4): c[f"own{d}"] = [1 if d == w else 0]
                for r in range(6):
                    c[f"nm{r}"] = [0 if r == r22 else 1]
                    c[f"rare{r}"] = [1 if r == rare else 0]
                    c[f"ret{r}"] = [1 if r == rare else 0]
                for p in range(2):
                    c[f"noO{p}"] = [1 if rare == 0 else 0]; c[f"noN{p}"] = [1 if rare == 5 else 0]
                out[f"main_w{w}_rare{rare}_m{r22}"] = c
    for w in (0, 2):
        out[f"fus_m{w}"] = {"L_fusion": [1], "L_fus_vo_addr": [0], "fa1": [w // 2], "fbvo": [0], "fvo": [0], "L_fus_nozero": [1], "L_end": [0, w // 2]}
        out[f"fus_vo{w}"] = {"L_fusion": [1], "L_fus_vo_addr": [1], "fa1": [w // 2], "fbvo": [1], "fvo": [1], "L_fus_nozero": [0], "L_end": [0, w // 2]}
    return out

def generate(path, dbg=None):
    g = Gen(dbg); p = g.build()
    errs = []
    for name, ch in scenarios().items():
        tr = p.trace(KNAME, ch)
        errs += check_hazards(tr, name) + check_waits(tr, name)
    uniq = list(dict.fromkeys(e.split("]", 1)[1] for e in errs))
    for e in uniq[:40]: print(e)
    print(f"{len(uniq)} checker findings; {len(p.ins)} lines")
    if getattr(g, "fnames", None): open(path + ".names", "w").write("|".join(["start"] + g.fnames))
    open(path, "w").write(HEADER % (LDS_BYTES, KNAME, KNAME) + p.text() + FOOTER % KNAME)
    return len(uniq)

def parse_opts(args):
    d = {}
    for x in args:
        if "=" in x:
            k, val = x.split("="); d[k] = int(val)
        else: d[x] = 1
    return d

if __name__ == "__main__":
    out = sys.argv[1] if len(sys.argv) > 1 else "standalone__video_timesformer__vision.s"
    generate(out, parse_opts(sys.argv[2:]))
```

```python
import struct, sys
from asmdsl import *

def f2u(x): return struct.unpack("<I", struct.pack("<f", x))[0]
def hx(x): return "0x%08x" % (x & 0xffffffff)

KNAME = "standalone__video_timesformer__vision_kernel"
T, N, C = 8, 729, 192
XFRAME = N * 384
TILEB, NT = 12288, 23
FRAMEB = NT * TILEB
WS_H2, WS_STAT, WS_WM, WS_WVO, WS_SYNC, WS_STAMP, WS_SIZE = 0, 0x240000, 0x480000, 0x4A0000, 0x4C0000, 0x4D0000, 0x500000
X_BYTES = T * N * 384
WQKV_BYTES, WO_BYTES = 192 * 1152, 192 * 384
OOB = 0x40000000
SCALE_L2E = (C ** -0.5) * 1.4426950408889634
SPIN_MAX = 1 << 20
HI_THR, LO_THR = 2.0 ** 30, 2.0 ** -30
NINF = "0xff800000"

SX, SWQ, SWO, SWS, SOUT, SDBG = 4, 8, 12, 16, 20, 24
def srd(b): return f"s[{b}:{b+3}]"
S_W, S_J, S_X8 = "s28", "s29", "s30"
S_1152, S_384, S_SOFF, S_RING = "s37", "s38", "s39", "s40"
S_MASKP, S_MASKH = "s[42:43]", "s[44:45]"
S_TOF = ["s46", "s47", "s48", "s49", "s50", "s51"]
S_R22 = "s52"
S_ST = ("s55", "s56", "s57")
S_FBASE, S_RING2 = "s59", "s60"
S_C0, S_C1, S_C2 = "s61", "s62", "s63"
S_WV0, S_H2O, S_STO, S_RND = "s64", "s65", "s66", "s67"
STAMP0 = 70

R1 = 9
L_H, L_X, L_O, L_SX, L_ST = 110592, 122880, 135168, 147456, 155648
L_Q, L_ML = 147456, 159744
LDS_BYTES = 160768

def v(n, k=1): return f"v{n}" if k == 1 else f"v[{n}:{n+k-1}]"
def a(n, k=1): return f"a{n}" if k == 1 else f"a[{n}:{n+k-1}]"

VXO, VA, VB, VTR, VHR, VXR, VHW, VST = 2, 3, 6, 9, 10, 12, 15, 16
VD, VK0, VK1, VV0, VV1, VSTA, VSTW, VSTR = 17, 20, 21, 22, 23, 24, 25, 26
VHR2, VQW, VOUT, VOWN, VQR, VOW = 28, 30, 33, 34, 35, 39
VML, VEX, VEXR, VMLR = 45, 47, 48, 51
VL, VTS = 54, 56
VTS2 = 57
VMU = 58
VR1 = 26
XR, F, AQ, AK, AV, AO, TP, PT = 64, 76, 100, 124, 148, 172, 196, 240
AH, AW, AOF = 0, 48, 96
VSB, VE, VNM, VO, VPB, VPD = (64, 80), 96, 112, 128, 224, 232
AQP, AKF, AVF, AWV, AM = 0, 48, 96, 144, 48

STF = ["sc1", "sc0 sc1", "sc1 nt"]
LDF = ["sc1", "", "sc0 sc1"]
OUTF = ["", "nt", "sc1", "sc0 sc1", "sc1 nt"]

class Gen:
    def __init__(self, dbg=None):
        self.p = Prog(); self.dbg = dbg or {}
        self.vmq, self.vm_done, self.lgq, self.lg_done = [], 0, [], 0
        self.clock = 0.0; self.pace = None
    def cost(self, t):
        mn = t.split()[0]
        if mn == "s_nop": return 4 * (int(t.split()[1]) + 1)
        if mn in TRANS: return 8.3
        if mn.startswith("v_mfma"): return 16 if "16x16" in mn else 32
        return 4.3
    def I(self, t, **k):
        self.p.I(t, **k)
        self.clock += self.cost(t.strip())
        if self.pace is not None: self.pace()
    def L(self, n): self.p.L(n)
    def nop(self, n):
        while n > 0:
            k = min(n, 16); self.I(f"s_nop {k-1}"); n -= k
    def vm(self, text, tag):
        save, self.pace = self.pace, None
        self.I(text, tag=tag); self.vmq.append(tag); self.pace = save
    def ds(self, text, tag="", needs=()):
        self.lgq.append(tag); self.I(text, tag=tag or None, needs=needs)
    def wait_vm(self, tag):
        if tag in getattr(self, "skipped", ()): return
        idx = max(i for i, t in enumerate(self.vmq) if t == tag)
        if idx < self.vm_done: return
        n = len(self.vmq) - 1 - idx
        self.vm_done = idx + 1
        self.I(f"s_waitcnt vmcnt({n})")
    def wait_lg(self, tag=None):
        idx = len(self.lgq) - 1 if tag is None else max(i for i, t in enumerate(self.lgq) if t == tag)
        if idx < self.lg_done: return
        n = min(len(self.lgq) - 1 - idx, 15)
        self.lg_done = len(self.lgq) - n
        self.I(f"s_waitcnt lgkmcnt({n})")
    def vm_all(self):
        self.I("s_waitcnt vmcnt(0)"); self.vm_done = len(self.vmq)
    def barrier(self):
        self.wait_lg(); self.I("s_barrier")

    def stamp(self, k):
        if self.dbg.get("stamps") and k < 15 and (not self.dbg.get("fine") or k in (0, 14)):
            self.p.I(f"s_memrealtime s[{STAMP0+2*k}:{STAMP0+2*k+1}]")
    def fst(self, mode, name):
        if self.dbg.get("stamps") and self.dbg.get("fine") == mode:
            self.nf = getattr(self, "nf", 0) + 1
            assert self.nf < 14
            self.fnames = getattr(self, "fnames", []) + [name]
            self.p.I(f"s_memrealtime s[{STAMP0+2*self.nf}:{STAMP0+2*self.nf+1}]")
    def stamps_out(self):
        I = self.I
        I("s_memtime s[34:35]")
        I("s_waitcnt lgkmcnt(0)")
        I("s_sub_u32 s36, s34, s100")
        I("s_lshl_b32 s31, s2, 2")
        I(f"s_add_u32 s31, s31, {S_W}")
        I("s_lshl_b32 s31, s31, 7")
        I(f"s_add_u32 s31, s31, {WS_STAMP}")
        I("v_mov_b32 v2, s31")
        I("s_mov_b64 exec, 1")
        for k in range(15):
            I(f"v_mov_b32 v3, s{STAMP0+2*k}")
            I(f"buffer_store_dword v3, v2, {srd(SWS)}, 0 offen offset:{4*k}")
        I("v_mov_b32 v3, s36")
        I(f"buffer_store_dword v3, v2, {srd(SWS)}, 0 offen offset:64")
        I("s_mov_b64 exec, -1")

    def srd_load(self, base, karg_off): self.I(f"s_load_dwordx2 s[{base}:{base+1}], s[0:1], {karg_off}")
    def srd_const(self, base, nbytes):
        self.I(f"s_mov_b32 s{base+2}, {hx(nbytes)}")
        self.I(f"s_mov_b32 s{base+3}, 0x20000")
    def mk_srd(self, base, karg_off, nbytes):
        self.srd_load(base, karg_off); self.srd_const(base, nbytes)

    def xg_reduce_add(self, regs_, tmps):
        I = self.I
        for swap in ("v_permlane16_swap_b32", "v_permlane32_swap_b32"):
            for r, t in zip(regs_, tmps): I(f"v_mov_b32 {v(t)}, {v(r)}")
            self.nop(max(0, 2 - (len(regs_) - 1)))
            for r, t in zip(regs_, tmps): I(f"{swap} {v(r)}, {v(t)}")
            for r, t in zip(regs_, tmps): I(f"v_add_f32 {v(r)}, {v(r)}, {v(t)}")

    def capture(self, fn):
        items = []
        oI, ods, owl, onop = self.I, self.ds, self.wait_lg, self.nop
        self.I = lambda t, **k: items.append(("I", t, k))
        self.ds = lambda t, tag="", needs=(): items.append(("ds", t, tag, needs))
        self.wait_lg = lambda tag=None: items.append(("wl", tag))
        self.nop = lambda n: items.append(("nop", n))
        fn()
        self.I, self.ds, self.wait_lg, self.nop = oI, ods, owl, onop
        out = []
        for it in items:
            if it[0] == "I": out.append(lambda it=it: self.I(it[1], **it[2]))
            elif it[0] == "ds": out.append(lambda it=it: self.ds(it[1], it[2], it[3]))
            elif it[0] == "wl": out.append(lambda it=it: self.wait_lg(it[1]))
            elif it[0] == "nop":
                n = it[1] if (it[1] < 3 or not self.dbg.get("dropnop", 1)) else max(0, it[1] - self.dbg.get("dn", 4))
                if n: out.append(lambda n=n: self.nop(n))
        return out

    def phase(self, mfmas, queues):
        n = len(mfmas); slots = [[] for _ in range(n)]
        for g0, g1, items in queues:
            for i, it in enumerate(items):
                slots[min(n - 1, g0 + i * (g1 - g0 + 1) // max(1, len(items)))].append(it)
        for g in range(n):
            mfmas[g]()
            for it in slots[g]: it()

    def phase2(self, mfmas, pinned, flex):
        n = len(mfmas)
        total = sum(c for l in pinned.values() for c, _ in l) + sum(c for q in flex for c, _ in q["items"])
        level = max(self.dbg.get("lvl", 16), total / n)
        placed = {q["name"]: 0 for q in flex}
        done_before = dict(placed)
        for g in range(n):
            mfmas[g]()
            cost = 0
            for c, fn in pinned.get(g, []):
                fn(); cost += c
            cnt = {q["name"]: 0 for q in flex}
            while True:
                best = None
                for q in flex:
                    i = placed[q["name"]]; m = len(q["items"])
                    if i >= m or g < q["g0"]: continue
                    g1 = q.get("g1", n - 1)
                    lag = m * min(1.0, (g - q["g0"] + 1) / (g1 - q["g0"] + 1)) - i
                    last = g == n - 1
                    if q.get("dep") and not q["dep"](i, placed if last else done_before): continue
                    if not last:
                        if cnt[q["name"]] >= q.get("per", 2): continue
                        c = q["items"][i][0]
                        if lag < 1.0 and (lag <= 0.0 or cost + c > level + 3): continue
                    if best is None or lag > best[0]: best = (lag, q)
                if best is None: break
                q = best[1]; i = placed[q["name"]]
                q["items"][i][1](); cost += q["items"][i][0]
                placed[q["name"]] += 1; cnt[q["name"]] += 1
            done_before = dict(placed)
        for q in flex: assert placed[q["name"]] == len(q["items"]), (q["name"], placed)

    def entry(self):
        I = self.I
        self.L(KNAME)
        self.stamp(0)
        if self.dbg.get("stamps"): I("s_memtime s[100:101]")
        self.srd_load(SX, 0); self.srd_load(SWQ, 8); self.srd_load(SWO, 16)
        I("s_cmp_ge_u32 s2, 256")
        I("s_cbranch_scc1 L_end")
        if self.dbg.get("epf", 2) == 1:
            I("s_getpc_b64 s[32:33]")
            self.L("L_pc")
            I("v_lshlrev_b32 v2, 7, v0")
            I("v_min_u32 v3, L_codeend-L_pc-4, v2")
            self.vm("global_load_dword v255, v3, s[32:33]", "cpf")
        I("s_lshr_b32 s3, s2, 3")
        I(f"s_and_b32 {S_X8}, s2, 7")
        I("s_cmp_lt_u32 s3, 9")
        I("s_cbranch_scc1 L_fusion")

    def fusion(self):
        I = self.I
        LA, LB = 0, 8192
        self.L("L_fusion")
        if self.dbg.get("epf", 2) == 2:
            I("s_getpc_b64 s[32:33]")
            self.L("L_pc")
            I("s_sub_u32 s32, s32, L_pc-" + KNAME)
            I("s_subb_u32 s33, s33, 0")
            I("s_lshl_b32 s31, s3, 5")
            I("v_and_b32 v2, 31, v0")
            I("v_add_u32 v2, s31, v2")
            I("v_lshlrev_b32 v2, 7, v2")
            I("v_min_u32 v3, L_codeend-" + KNAME + "-4, v2")
            I("global_load_dword v255, v3, s[32:33]")
        I("s_waitcnt lgkmcnt(0)")
        self.mk_srd(SX, 8, WQKV_BYTES)
        self.mk_srd(SOUT, 16, WO_BYTES)
        self.mk_srd(SWQ, 24, WQKV_BYTES)
        self.mk_srd(SWO, 32, WO_BYTES)
        self.mk_srd(SDBG, 48, 256)
        self.mk_srd(SWS, 56, WS_SIZE)
        I("v_and_b32 v1, 63, v0")
        I("v_lshrrev_b32 v5, 6, v0")
        I("v_lshlrev_b32 v2, 7, v0")
        I("s_lshl_b32 s31, s3, 15")
        I(f"v_readfirstlane_b32 {S_W}, v5")
        I("v_add_u32 v2, s31, v2")
        I(f"v_subrev_u32 v3, {WQKV_BYTES}, v2")
        I("s_lshl_b32 s34, s3, 3")
        I(f"s_add_u32 s34, s34, {S_X8}")
        I("s_cmp_lt_u32 s34, 36")
        I("s_cselect_b32 s36, 1, 0")
        I("s_cselect_b32 s31, 0, 36")
        I("s_sub_u32 s35, s34, s31")
        I("s_mul_i32 s37, s35, 43691")
        I("s_lshr_b32 s37, s37, 17")
        I("s_mul_i32 s38, s37, 3")
        I("s_sub_u32 s38, s35, s38")
        def rowmap(dst, qreg, stride):
            I(f"v_mul_u32_u24 v10, 2731, {qreg}")
            I("v_lshrrev_b32 v10, 16, v10")
            I("v_mul_u32_u24 v11, 24, v10")
            I(f"v_sub_u32 v11, {qreg}, v11")
            I("v_xor_b32 v12, v11, v10")
            I("v_and_b32 v12, 7, v12")
            I("v_and_b32 v11, 24, v11")
            I("v_or_b32 v11, v11, v12")
            I("v_lshlrev_b32 v11, 4, v11")
            I(f"v_mad_u32_u24 {dst}, v10, {stride}, v11")
        I(f"s_mov_b32 s49, 1152")
        I(f"v_lshl_add_u32 v9, {S_W}, 6, v1")
        rowmap("v16", "v9", "s49")
        I("v_add_u32 v9, 256, v9")
        rowmap("v17", "v9", "s49")
        I("s_mul_i32 s39, s37, 18432")
        I("s_mul_i32 s40, s36, 768")
        I("s_add_u32 s39, s39, s40")
        I("s_cmp_eq_u32 s36, 1")
        I("s_cbranch_scc1 L_fus_vo_addr")
        for i in range(6):
            I(f"v_add_u32 v9, {64*i}, v1")
            rowmap(f"v{18+i}", "v9", "s49")
        I(f"s_lshl_b32 s40, s38, 2")
        I(f"s_add_u32 s40, s40, {S_W}")
        I("s_mul_i32 s41, s40, 18432")
        I("s_add_u32 s41, s41, 384")
        I("s_branch L_fus_issue")
        self.L("L_fus_vo_addr")
        I("v_lshrrev_b32 v10, 3, v1")
        I("v_and_b32 v11, 7, v1")
        for i in range(6):
            I(f"s_mul_i32 s31, {S_W}, 48")
            I(f"s_add_u32 s31, s31, {8*i}")
            I("v_add_u32 v12, s31, v10")
            I("v_and_b32 v13, 31, v12")
            I("v_and_b32 v14, 12, v13")
            I("v_lshrrev_b32 v15, 4, v13")
            I("v_add_u32 v14, v14, v12")
            I("v_mad_i32_i24 v14, v15, -12, v14")
            I("v_mul_u32_u24 v14, 384, v14")
            I("v_bfe_u32 v15, v13, 1, 2")
            I("v_lshlrev_b32 v15, 1, v15")
            I("v_xor_b32 v15, v15, v11")
            I(f"v_lshl_add_u32 v{18+i}, v15, 4, v14")
        I(f"s_lshl_b32 s40, s38, 2")
        I(f"s_add_u32 s40, s40, {S_W}")
        I("s_lshl_b32 s41, s38, 7")
        self.L("L_fus_issue")
        I("s_waitcnt lgkmcnt(0)")
        if self.dbg.get("tlb", 0):
            I("s_load_dwordx2 s[52:53], s[0:1], 40")
            I(f"s_mov_b32 s54, {hx(X_BYTES)}")
            I("s_mov_b32 s55, 0x20000")
            I("v_and_b32 v42, 3, v1")
            I("v_lshlrev_b32 v42, 20, v42")
            I("s_waitcnt lgkmcnt(0)")
            I(f"buffer_load_dword v43, v42, {srd(SWS)}, 0 offen")
            I("v_add_u32 v42, 0x400000, v42")
            I(f"buffer_load_dword v43, v42, {srd(SWS)}, 0 offen")
            I("v_and_b32 v42, 0x300000, v42")
            I("buffer_load_dword v43, v42, s[52:55], 0 offen")
        I(f"buffer_load_dword v40, v2, {srd(SX)}, 0 offen")
        I(f"buffer_load_dword v41, v3, {srd(SOUT)}, 0 offen")
        I(f"s_lshl_b32 s31, {S_W}, 10")
        I(f"s_add_u32 m0, s31, {LA}")
        I("s_nop 0")
        I(f"buffer_load_dwordx4 v16, {srd(SWQ)}, s39 offen lds", tag="fa")
        I(f"s_cmp_ge_u32 {S_W}, 2")
        I("s_cbranch_scc1 L_fus_a1", pat="fa1")
        I(f"s_add_u32 m0, s31, {LA + 4096}")
        I("s_nop 0")
        I(f"buffer_load_dwordx4 v17, {srd(SWQ)}, s39 offen lds", tag="fa")
        self.L("L_fus_a1")
        I(f"s_mul_i32 s31, {S_W}, 6144")
        I("s_cmp_eq_u32 s36, 1")
        I("s_cbranch_scc1 L_fus_bvo", pat="fbvo")
        for i in range(6):
            I(f"s_add_u32 m0, s31, {LB + 1024*i}")
            I("s_nop 0")
            I(f"buffer_load_dwordx4 v{18+i}, {srd(SWQ)}, s41 offen lds", tag="fb")
        I("s_branch L_fus_wait")
        self.L("L_fus_bvo")
        for i in range(6):
            I(f"s_add_u32 m0, s31, {LB + 1024*i}")
            I("s_nop 0")
            I(f"buffer_load_dwordx4 v{18+i}, {srd(SWO)}, s41 offen lds", tag="fb")
        self.L("L_fus_wait")
        I("v_and_b32 v6, 15, v1")
        I("v_lshrrev_b32 v7, 4, v1")
        I("v_mul_u32_u24 v8, 384, v6")
        I("v_xor_b32 v9, v7, v6")
        I("v_and_b32 v9, 7, v9")
        I("v_lshl_add_u32 v26, v9, 4, v8")
        I("v_xor_b32 v9, 4, v9")
        I("v_lshl_add_u32 v27, v9, 4, v8")
        I("s_mul_i32 s46, s40, 6")
        I("s_lshr_b32 s47, s37, 1")
        I("s_add_u32 s46, s46, s47")
        I("s_lshl_b32 s46, s46, 10")
        I("s_and_b32 s47, s37, 1")
        I("s_lshl_b32 s47, s47, 1")
        I("v_lshrrev_b32 v11, 1, v7")
        I("v_add_u32 v11, s47, v11")
        I("v_and_b32 v14, 1, v7")
        I("s_waitcnt vmcnt(0)")
        I("s_barrier")
        for ks in range(6):
            I(f"ds_read_b128 {v(44+4*ks,4)}, {v(26+(ks&1))} offset:{LA + (ks>>1)*128}", needs=["fa"])
        I("s_cmp_eq_u32 s36, 1")
        I("s_cbranch_scc1 L_fus_vo", pat="fvo")
        I(f"v_add_u32 v26, s31, v26")
        I(f"v_add_u32 v27, s31, v27")
        for ks in range(6):
            I(f"ds_read_b128 {v(68+4*ks,4)}, {v(26+(ks&1))} offset:{LB + (ks>>1)*128}", needs=["fb"])
        I("v_lshlrev_b32 v12, 1, v11")
        I("v_mov_b32 v13, 0x78")
        I("v_lshrrev_b32 v12, v12, v13")
        I("v_and_b32 v11, 3, v12")
        I(f"s_mov_b32 s40, {hx(f2u(SCALE_L2E))}")
        I(f"s_add_u32 s46, s46, {WS_WM}")
        I("s_branch L_fus_mm")
        self.L("L_fus_vo")
        I("v_lshrrev_b32 v12, 2, v1")
        I("v_bfe_u32 v13, v12, 1, 2")
        I(f"v_xor_b32 v13, {S_W}, v13")
        I("v_lshlrev_b32 v13, 5, v13")
        I("v_lshl_add_u32 v13, v12, 7, v13")
        I("v_and_b32 v12, 3, v1")
        I("v_lshl_add_u32 v13, v12, 3, v13")
        for ks in range(6):
            I(f"ds_read_b64_tr_b16 {v(68+4*ks,2)}, v13 offset:{LB + ks*4096}", needs=["fb"])
            I(f"ds_read_b64_tr_b16 {v(70+4*ks,2)}, v13 offset:{LB + ks*4096 + 2048}", needs=["fb"])
        I(f"s_mov_b32 s40, {hx(f2u(1.0))}")
        I(f"s_add_u32 s46, s46, {WS_WVO}")
        self.L("L_fus_mm")
        I("v_lshl_add_u32 v11, v11, 4, v6")
        I("v_lshlrev_b32 v11, 4, v11")
        I("v_lshl_add_u32 v11, v14, 3, v11")
        I("s_waitcnt lgkmcnt(0)")
        for ks in range(6):
            I(f"v_mfma_f32_16x16x32_bf16 v[96:99], {v(44+4*ks,4)}, {v(68+4*ks,4)}, {'0' if ks == 0 else 'v[96:99]'}")
        self.nop(8)
        for r in range(4): I(f"v_mul_f32 {v(96+r)}, s40, {v(96+r)}")
        I("v_cvt_pk_bf16_f32 v100, v96, v97")
        I("v_cvt_pk_bf16_f32 v101, v98, v99")
        I(f"buffer_store_dwordx2 v[100:101], v11, {srd(SWS)}, s46 offen sc1")
        I("s_cmp_ge_u32 s34, 8")
        I("s_cbranch_scc1 L_fus_nozero")
        for r in range(104, 108): I(f"v_mov_b32 v{r}, 0")
        I("v_lshlrev_b32 v12, 4, v0")
        I("s_lshl_b32 s39, s34, 12")
        I(f"s_add_u32 s39, s39, {WS_SYNC}")
        I(f"buffer_store_dwordx4 v[104:107], v12, {srd(SWS)}, s39 offen sc1")
        self.L("L_fus_nozero")
        if self.dbg.get("stamps"): self.p.I("s_memrealtime s[72:73]")
        I("s_waitcnt vmcnt(0)")
        I("s_barrier")
        if self.dbg.get("stamps"):
            self.p.I("s_memrealtime s[74:75]"); self.p.I("s_memrealtime s[76:77]"); self.p.I("s_memrealtime s[98:99]")
            self.stamps_out()
        I(f"s_cmp_lg_u32 {S_W}, 0")
        I("s_cbranch_scc1 L_end")
        I("v_mov_b32 v12, 0")
        I("v_mov_b32 v13, 1")
        I("s_mov_b64 exec, 1")
        I(f"buffer_atomic_add v13, v12, {srd(SDBG)}, 0 offen sc1")
        I("s_branch L_end")

    def s1_soff(self, s):
        m, ks = divmod(s, 6)
        return ks * 32 * 1152 + m * 384 if m < 3 else ks * 32 * 384
    def s1_dma_one(self):
        d = self.dnext; s, ii = divmod(d, 3); m = s // 6
        save, self.pace = self.pace, None
        if ii == 0:
            self.I(f"s_add_u32 m0, {S_RING}, {(s % R1) * 3072}")
            self.I(f"s_mov_b32 {S_SOFF}, {self.s1_soff(s)}")
        base = VA if m < 3 else VB
        if self.dbg.get("x_nodma") and s >= 3:
            self.vmq.append(f"w{s}_{ii}"); self.vm_done = len(self.vmq) if False else self.vm_done
            self.vmq.pop(); self.skipped = getattr(self, "skipped", set()) | {f"w{s}_{ii}"}
        else:
            self.vm(f"buffer_load_dwordx4 {v(base+ii)}, {srd(SWQ) if m < 3 else srd(SWO)}, {S_SOFF} offen offset:{ii*1024} lds", f"w{s}_{ii}")
        self.dnext += 1; self.last_dma = self.clock; self.pace = save
    def s1_allowed(self): return self.dnext < 72 and self.dnext // 3 - R1 <= self.consumed
    def s1_pace(self):
        last = self.p.ins[-1].mn
        if last.startswith("s_cmp") or last.startswith("s_cselect"): return
        if self.s1_allowed() and self.clock - self.last_dma >= self.period: self.s1_dma_one()
    def s1_ensure(self, step):
        while self.dnext < 72 and self.dnext // 3 <= step:
            assert self.s1_allowed(), (self.dnext, self.consumed)
            self.s1_dma_one()

    def setup_s1a(self):
        I = self.I
        t = [100 + i for i in range(7)]
        I(f"v_lshrrev_b32 {v(t[0])}, 2, v1")
        I(f"v_and_b32 {v(t[1])}, 3, v1")
        I(f"v_mul_u32_u24 {v(t[0])}, 96, {v(t[0])}")
        I(f"v_lshl_add_u32 {v(t[0])}, {v(t[1])}, 3, {v(t[0])}")
        I(f"v_add_u32 {v(VTR)}, {S_RING}, {v(t[0])}")
        I(f"v_lshrrev_b32 {v(t[0])}, 3, v1")
        I(f"v_and_b32 {v(t[1])}, 7, v1")
        I(f"v_lshl_add_u32 {v(t[0])}, {S_W}, 3, {v(t[0])}")
        I(f"v_xor_b32 {v(t[0])}, {v(t[0])}, {v(t[1])}")
        I(f"v_lshlrev_b32 {v(t[0])}, 4, {v(t[0])}")
        I(f"v_lshl_add_u32 {v(t[0])}, {v(t[1])}, 9, {v(t[0])}")
        I(f"v_add_u32 {v(VHW)}, {L_H}, {v(t[0])}")
        tk, g = t[5], t[6]
        I(f"v_and_b32 {v(tk)}, 15, v1")
        I(f"v_lshrrev_b32 {v(g)}, 4, v1")
        I(f"v_xor_b32 {v(t[0])}, {v(tk)}, {v(g)}")
        I(f"v_lshlrev_b32 {v(t[2])}, 9, {v(g)}")
        I(f"v_xor_b32 {v(t[1])}, 4, {v(t[0])}")
        I(f"v_add_u32 {v(t[2])}, {L_H}, {v(t[2])}")
        I(f"v_lshl_add_u32 {v(VHR)}, {v(t[0])}, 4, {v(t[2])}")
        I(f"v_lshl_add_u32 {v(VHR+1)}, {v(t[1])}, 4, {v(t[2])}")
    def setup_s1b(self):
        I = self.I
        t = [TP + i for i in range(7)]
        tk, g = t[5], t[6]
        I(f"v_and_b32 {v(tk)}, 15, v1")
        I(f"v_lshrrev_b32 {v(g)}, 4, v1")
        I(f"s_mul_i32 s31, {S_W}, 6")
        I(f"v_lshrrev_b32 {v(t[0])}, 1, {v(g)}")
        I(f"v_add_u32 {v(t[1])}, s31, {v(t[0])}")
        I(f"v_and_b32 {v(t[2])}, 1, {v(g)}")
        I(f"v_lshlrev_b32 {v(t[3])}, 3, {v(t[2])}")
        I(f"v_add_u32 {v(t[3])}, {L_X}, {v(t[3])}")
        for ft in range(3):
            I(f"v_add_u32 {v(t[4])}, {2*ft}, {v(t[1])}")
            I(f"v_and_b32 {v(VXR+ft)}, 7, {v(t[4])}")
            I(f"v_xor_b32 {v(VXR+ft)}, {v(VXR+ft)}, {v(tk)}")
            I(f"v_lshlrev_b32 {v(VXR+ft)}, 4, {v(VXR+ft)}")
            I(f"v_lshl_add_u32 {v(VXR+ft)}, {v(t[4])}, 9, {v(VXR+ft)}")
            I(f"v_add_u32 {v(VXR+ft)}, {v(VXR+ft)}, {v(t[3])}")
        I(f"v_lshrrev_b32 {v(t[1])}, 3, {v(tk)}")
        I(f"v_cmp_eq_u32 {S_MASKP}, {v(t[0])}, {v(t[1])}")
    def setup_s1c(self):
        I = lambda t, **k: self.I(t, **k)
        t = [TP + 32 + i for i in range(7)]
        tk, g = t[5], t[6]
        I(f"v_and_b32 {v(tk)}, 15, v1")
        I(f"v_lshrrev_b32 {v(g)}, 4, v1")
        I(f"v_lshrrev_b32 {v(t[0])}, 1, {v(g)}")
        I(f"v_and_b32 {v(t[2])}, 1, {v(g)}")
        I(f"v_lshl_add_u32 {v(t[3])}, {v(t[2])}, 4, {v(tk)}")
        I(f"v_and_b32 {v(t[4])}, 7, {v(t[3])}")
        I(f"v_lshrrev_b32 {v(t[3])}, 3, {v(t[3])}")
        I(f"v_mul_u32_u24 {v(t[1])}, {FRAMEB}, {v(t[4])}")
        I(f"s_bfe_u32 s31, {S_X8}, 0x10001")
        I(f"v_lshl_add_u32 {v(t[1])}, {v(t[3])}, 4, {v(t[1])}")
        I(f"v_xor_b32 {v(VST)}, s31, {v(t[0])}")
        I(f"v_lshl_add_u32 {v(VST)}, {v(VST)}, 6, {v(t[1])}")
        I(f"v_mul_u32_u24 {v(t[4])}, 736, {v(t[4])}")
        I(f"s_lshl_b32 s31, {S_J}, 5")
        I(f"s_lshl_b32 s34, {S_X8}, 2")
        I(f"v_add_u32 {v(t[4])}, {v(t[4])}, {v(t[3])}")
        I("s_add_u32 s31, s31, s34")
        I(f"v_add_u32 {v(t[4])}, s31, {v(t[4])}")
        I(f"v_cmp_lt_u32 {S_MASKH}, 31, v1")
        I(f"v_lshlrev_b32 {v(t[4])}, 3, {v(t[4])}")
        I(f"v_mov_b32 {v(t[1])}, {hx(OOB)}")
        I(f"v_add_u32 {v(t[4])}, {WS_STAT}, {v(t[4])}")
        I(f"s_lshl_b32 s31, {S_W}, 8")
        I(f"v_cndmask_b32 {v(VSTA)}, {v(t[4])}, {v(t[1])}, {S_MASKH}")
        I(f"v_lshlrev_b32 {v(t[4])}, 3, {v(tk)}")
        I(f"s_add_u32 s31, s31, {L_ST}")
        I(f"v_add_u32 {v(VSTR)}, {L_ST}, {v(t[4])}")
        I(f"v_add_u32 {v(VSTW)}, s31, {v(t[4])}")
    def setup_s1d(self):
        I = self.I
        I(f"s_mul_i32 s35, {S_J}, {TILEB}")
        I(f"s_mul_i32 s31, {S_W}, 3")
        for ft in range(3):
            if ft: I("s_add_u32 s31, s31, 1")
            I("s_and_b32 s34, s31, 1")
            I(f"s_xor_b32 s34, s34, {S_X8}")
            I("s_lshl_b32 s34, s34, 7")
            I(f"s_lshl_b32 {S_ST[ft]}, s31, 10")
            I(f"s_add_u32 {S_ST[ft]}, {S_ST[ft]}, s34")
            I(f"s_add_u32 {S_ST[ft]}, {S_ST[ft]}, s35")

    def s1(self):
        I = lambda t, **k: self.I(t, **k)
        I("v_lshrrev_b32 v100, 6, v0")
        I("v_and_b32 v1, 63, v0")
        I(f"s_sub_u32 {S_J}, s3, 9")
        I(f"v_readfirstlane_b32 {S_W}, v100")
        I(f"s_lshl_b32 s31, {S_J}, 5")
        I(f"s_lshl_b32 s34, {S_X8}, 2")
        I("s_add_u32 s31, s31, s34")
        I("v_lshrrev_b32 v100, 3, v1")
        I("v_and_b32 v101, 7, v1")
        I(f"s_add_u32 s31, s31, {S_W}")
        I("s_mul_i32 s34, s31, 384")
        I(f"s_cmp_ge_u32 s31, {N}")
        I(f"s_cselect_b32 s34, {hx(OOB)}, s34")
        I(f"v_mul_u32_u24 v102, {XFRAME}, v100")
        I("v_lshl_add_u32 v102, v101, 4, v102")
        I(f"v_add_u32 {v(VXO)}, s34, v102")
        self.srd_const(SX, X_BYTES)
        self.fst(1, "pre-karg")
        I("s_waitcnt lgkmcnt(0)")
        self.fst(1, "kargs")
        for ii in range(3):
            self.vm(f"buffer_load_dwordx4 {v(XR+4*ii,4)}, {v(VXO)}, {srd(SX)}, 0 offen offset:{128*ii}", f"x{ii}")
        self.fst(1, "x issued")
        self.srd_load(SWS, 56); self.srd_load(SDBG, 48); self.srd_load(SOUT, 40)
        self.srd_const(SWQ, WQKV_BYTES); self.srd_const(SWO, WO_BYTES)
        I(f"s_mov_b32 {S_1152}, 1152")
        I(f"s_mov_b32 {S_384}, 384")
        I(f"s_mul_i32 s35, {S_W}, 96")
        I(f"s_mul_i32 {S_RING}, {S_W}, {R1*3072}")
        I(f"v_lshlrev_b32 {v(VD)}, 4, v1")
        I("s_movk_i32 s36, -96")
        I(f"v_add_u32 v104, s35, {v(VD)}")
        for ii in range(3):
            if ii:
                I(f"v_add_u32 v100, {64*ii}, v1")
                I("v_mul_u32_u24 v101, 171, v100")
            else:
                I("v_mul_u32_u24 v101, 171, v1")
            I("v_lshrrev_b32 v101, 10, v101")
            I("v_and_b32 v102, 12, v101")
            I("v_lshrrev_b32 v103, 4, v101")
            I("v_add_u32 v102, v102, v101")
            I("v_mad_i32_i24 v100, v101, s36, v104")
            I("v_mad_i32_i24 v102, v103, -12, v102")
            I(f"v_mad_u32_u24 {v(VA+ii)}, v102, {S_1152}, v100")
            I(f"v_mad_u32_u24 {v(VB+ii)}, v102, {S_384}, v100")
        self.fst(1, "dma addr")
        self.dnext, self.consumed, self.last_dma = 0, -1, self.clock
        self.s1_ensure(self.dbg.get("pre", 2) - 1)
        self.fst(1, "pre dma")
        self.period = self.dbg.get("p0", 64)
        self.setup_s1a()
        self.srd_const(SWS, WS_SIZE); self.srd_const(SDBG, 256); self.srd_const(SOUT, X_BYTES)
        self.s1_ensure(self.dbg.get("pre2", 3) - 1)
        if self.dbg.get("early", 1):
            self.setup_s1b(); self.setup_s1d()
        self.fst(1, "setup")
        I("s_waitcnt lgkmcnt(0)")
        self.stamp(1)
        self.wait_vm("x2")
        self.stamp(2)
        self.fst(1, "x arrived")
        self.last_dma = self.clock
        self.pace = self.s1_pace
        X = XR
        for k in range(12):
            I(f"v_lshlrev_b32 {v(F+2*k)}, 16, {v(X+k)}")
            I(f"v_and_b32 {v(F+2*k+1)}, 0xffff0000, {v(X+k)}")
        I(f"v_pk_add_f32 v[100:101], {v(F,2)}, {v(F+2,2)}")
        I(f"v_pk_mul_f32 v[102:103], {v(F,2)}, {v(F,2)}")
        I(f"v_pk_fma_f32 v[102:103], {v(F+2,2)}, {v(F+2,2)}, v[102:103]")
        for k in range(2, 12):
            I(f"v_pk_add_f32 v[100:101], v[100:101], {v(F+2*k,2)}")
            I(f"v_pk_fma_f32 v[102:103], {v(F+2*k,2)}, {v(F+2*k,2)}, v[102:103]")
        I("v_add_f32 v100, v100, v101")
        I("v_add_f32 v102, v102, v103")
        I(f"s_mov_b32 {S_C0}, {hx(f2u(1.0/192))}")
        for mod in ("quad_perm:[1,0,3,2]", "quad_perm:[2,3,0,1]", "row_half_mirror"):
            I("s_nop 0")
            I(f"v_add_f32_dpp v100, v100, v100 {mod} row_mask:0xf bank_mask:0xf")
            I(f"v_add_f32_dpp v102, v102, v102 {mod} row_mask:0xf bank_mask:0xf")
        I(f"s_mov_b32 {S_C1}, {hx(f2u(1e-5))}")
        I(f"v_mul_f32 v100, {S_C0}, v100")
        I(f"v_mov_b32 v101, {S_C1}")
        I(f"v_fmac_f32 v101, {S_C0}, v102")
        I("v_fma_f32 v101, -v100, v100, v101")
        I(f"v_max_f32 v101, {S_C1}, v101")
        I("v_rsq_f32 v102, v101")
        I("s_nop 0")
        I("v_mul_f32 v100, v100, v102")
        I("v_mov_b32 v103, v102")
        I("v_mov_b32 v101, v100")
        for k in range(12):
            I(f"v_pk_fma_f32 {v(F+2*k,2)}, {v(F+2*k,2)}, v[102:103], v[100:101] neg_lo:[0,0,1] neg_hi:[0,0,1]")
        for k in range(12):
            I(f"v_cvt_pk_bf16_f32 {v(F+k)}, {v(F+2*k)}, {v(F+2*k+1)}")
            if k % 4 == 3:
                ii = k // 4
                self.ds(f"ds_write_b128 {v(VHW)}, {v(F+4*ii,4)} offset:{ii*4096}")
                self.ds(f"ds_write_b128 {v(VHW)}, {v(X+4*ii,4)} offset:{ii*4096 + (L_X-L_H)}")
        self.fst(1, "LN math")
        self.barrier()
        self.fst(1, "LN barrier")
        for ks in range(6):
            for th in range(2):
                self.ds(f"ds_read_b128 {a(AH+(th*6+ks)*4,4)}, {v(VHR+(ks&1))} offset:{ks*2048+th*256}", f"h{ks}")
        self.stamp(3)
        if not self.dbg.get("early", 1): self.setup_s1b()
        self.period = self.dbg.get("p1", 70)

        def trread(s, ft, e2):
            buf = AW + (s % 4) * 12
            self.ds(f"ds_read_b64_tr_b16 {a(buf+ft*4+e2*2,2)}, {v(VTR)} offset:{(s%R1)*3072 + e2*1536 + ft*32}",
                    f"W{s}_{ft}", needs=[f"w{s}_{ii}" for ii in range(3)])
        def mfma(s, ft, th):
            m, ks = divmod(s, 6)
            W = a(AW + (s % 4) * 12 + ft*4, 4)
            if m < 2:
                D = v((AQ if m == 0 else AK) + (ft*2+th)*4, 4)
                I(f"v_mfma_f32_16x16x32_bf16 {D}, {W}, {a(AH+(th*6+ks)*4,4)}, {'0' if ks == 0 else D}")
            elif m == 2:
                D = v(AV + (ft*2+th)*4, 4)
                I(f"v_mfma_f32_16x16x32_bf16 {D}, {a(AH+(th*6+ks)*4,4)}, {W}, {'0' if ks == 0 else D}")
            else:
                D = v(AO + (ft*2+th)*4, 4)
                I(f"v_mfma_f32_16x16x32_bf16 {D}, {W}, {a(AOF+(th*6+ks)*4,4)}, {D}")
        def step(s, fill=None, per=0):
            m, ks = divmod(s, 6)
            if s + 2 < 24:
                self.s1_ensure(min(s + 2 + self.dbg.get("lead", 2), self.consumed + R1))
                self.wait_vm(f"w{s+2}_2")
            if m < 3 and s < 6: self.wait_lg(f"h{ks}")
            if m == 3: self.wait_lg(f"of{ks}")
            self.wait_lg(f"W{s}_2")
            self.consumed = s
            if self.dbg.get("place", 1):
                save, self.pace = self.pace, None
                def drain(n):
                    for _ in range(n):
                        if fill: fill.pop(0)()
                for ft in range(3):
                    mfma(s, ft, 0)
                    if s + 2 < 24: trread(s + 2, ft, 0); trread(s + 2, ft, 1)
                    drain(per // 2)
                    mfma(s, ft, 1)
                    if self.s1_allowed() and ft < self.dbg.get("dps", 3): self.s1_dma_one()
                    drain(per - per // 2)
                self.pace = save
                return
            for ft in range(3):
                for th in range(2):
                    mfma(s, ft, th)
                    if s + 2 < 24: trread(s + 2, ft, th)

        def xinit():
            for ft in range(3):
                for th in range(2):
                    self.ds(f"ds_read_b64 {v(TP+32+(ft*2+th)*2,2)}, {v(VXR+ft)} offset:{th*256}", "xi")
        def xinit_unpack():
            self.wait_lg("xi")
            for ft in range(3):
                for th in range(2):
                    src = TP+32 + (ft*2+th)*2; d = AO + (ft*2+th)*4
                    I(f"v_lshlrev_b32 {v(d)}, 16, {v(src)}")
                    I(f"v_and_b32 {v(d+1)}, 0xffff0000, {v(src)}")
                    I(f"v_lshlrev_b32 {v(d+2)}, 16, {v(src+1)}")
                    I(f"v_and_b32 {v(d+3)}, 0xffff0000, {v(src+1)}")
        def s_partial():
            self.nop(3)
            for base, dst in ((AQ, TP), (AK, TP+12)):
                for ft in range(3):
                    for th in range(2):
                        src = base + (ft*2+th)*4; d = dst + th*6 + ft*2
                        I(f"v_cvt_pk_bf16_f32 {v(d)}, {v(src)}, {v(src+1)}")
                        I(f"v_cvt_pk_bf16_f32 {v(d+1)}, {v(src+2)}, {v(src+3)}")
            I(f"s_lshl_b32 s31, {S_W}, 11")
            I(f"s_add_u32 s31, s31, {L_SX}")
            for th in range(2):
                I(f"v_mfma_f32_16x16x32_bf16 {v(TP+24+4*th,4)}, {v(TP+12+th*6,4)}, {v(TP+th*6,4)}, 0")
            I(f"v_add_u32 v57, s31, {v(VD)}")
            I(f"v_add_u32 v62, {L_SX}, {v(VD)}")
            for th in range(2):
                I(f"v_mfma_f32_16x16x16_bf16 {v(TP+24+4*th,4)}, {v(TP+12+th*6+4,2)}, {v(TP+th*6+4,2)}, {v(TP+24+4*th,4)}")
            self.nop(7)
            for th in range(2):
                self.ds(f"ds_write_b128 v57, {v(TP+24+4*th,4)} offset:{th*1024}", "sp")
        def softmax_read():
            for w in range(4):
                for th in range(2):
                    self.ds(f"ds_read_b128 {v(TP+(w*2+th)*4,4)}, v62 offset:{w*2048+th*1024}", "sr")
        def softmax_t():
            b0 = TP
            self.wait_lg("sr")
            I(f"s_mov_b32 {S_C2}, {hx(f2u(SCALE_L2E))}")
            for th in range(2):
                for h in range(2):
                    b = b0 + th*4 + 2*h
                    I(f"v_pk_add_f32 {v(b,2)}, {v(b,2)}, {v(b+8,2)}")
                    I(f"v_pk_add_f32 {v(b+16,2)}, {v(b+16,2)}, {v(b+24,2)}")
            for th in range(2):
                for h in range(2):
                    b = b0 + th*4 + 2*h
                    I(f"v_pk_add_f32 {v(b,2)}, {v(b,2)}, {v(b+16,2)}")
            m, t = b0 + 8, b0 + 10
            for th in range(2): I(f"v_max3_f32 {v(m+th)}, {v(b0+th*4)}, {v(b0+th*4+1)}, {v(b0+th*4+2)}")
            for th in range(2): I(f"v_max_f32 {v(m+th)}, {v(m+th)}, {v(b0+th*4+3)}")
            for th in range(2): I(f"v_mov_b32 {v(t+th)}, {v(m+th)}")
            self.nop(1)
            for th in range(2): I(f"v_permlane16_swap_b32 {v(m+th)}, {v(t+th)}")
            for th in range(2): I(f"v_max_f32 {v(m+th)}, {v(m+th)}, {v(t+th)}")
            for th in range(2): I(f"v_mul_f32 {v(m+th)}, {S_C2}, {v(m+th)}")
            for th in range(2):
                for r in range(4): I(f"v_fma_f32 {v(b0+th*4+r)}, {v(b0+th*4+r)}, {S_C2}, -{v(m+th)}")
            for th in range(2):
                for r in range(4): I(f"v_exp_f32 {v(b0+th*4+r)}, {v(b0+th*4+r)}")
            I("s_nop 0")
            for th in range(2):
                I(f"v_add_f32 {v(m+th)}, {v(b0+th*4)}, {v(b0+th*4+1)}")
                I(f"v_add_f32 {v(t+th)}, {v(b0+th*4+2)}, {v(b0+th*4+3)}")
            for th in range(2): I(f"v_add_f32 {v(m+th)}, {v(m+th)}, {v(t+th)}")
            for th in range(2): I(f"v_mov_b32 {v(t+th)}, {v(m+th)}")
            self.nop(1)
            for th in range(2): I(f"v_permlane16_swap_b32 {v(m+th)}, {v(t+th)}")
            for th in range(2): I(f"v_add_f32 {v(m+th)}, {v(m+th)}, {v(t+th)}")
            for th in range(2): I(f"v_rcp_f32 {v(m+th)}, {v(m+th)}")
            I("s_nop 0")
            for th in range(2):
                for r in range(4): I(f"v_mul_f32 {v(b0+th*4+r)}, {v(b0+th*4+r)}, {v(m+th)}")
            for th in range(2):
                I(f"v_cvt_pk_bf16_f32 {v(PT+2*th)}, {v(b0+th*4)}, {v(b0+th*4+1)}")
                I(f"v_cvt_pk_bf16_f32 {v(PT+1+2*th)}, {v(b0+th*4+2)}, {v(b0+th*4+3)}")
            for r in range(4): I(f"v_cndmask_b32 {v(PT+r)}, 0, {v(PT+r)}, {S_MASKP}")
        def pv_t():
            self.nop(3)
            for ft in range(3):
                for th in range(2):
                    src = AV + (ft*2+th)*4; d = TP + (ft*2+th)*2
                    I(f"v_cvt_pk_bf16_f32 {v(d)}, {v(src)}, {v(src+1)}")
                    I(f"v_cvt_pk_bf16_f32 {v(d+1)}, {v(src+2)}, {v(src+3)}")
            I("s_nop 0")
            for ft in range(3):
                for th in range(2):
                    I(f"v_mfma_f32_16x16x16_bf16 {v(AV+(ft*2+th)*4,4)}, {v(TP+(ft*2+th)*2,2)}, {v(PT+2*th,2)}, 0")
            self.nop(3)
            for ft in range(3):
                for th in range(2):
                    src = AV + (ft*2+th)*4; d = TP+12 + (ft*2+th)*2
                    I(f"v_cvt_pk_bf16_f32 {v(d)}, {v(src)}, {v(src+1)}")
                    I(f"v_cvt_pk_bf16_f32 {v(d+1)}, {v(src+2)}, {v(src+3)}")
                    self.ds(f"ds_write_b64 {v(VXR+ft)}, {v(d,2)} offset:{(L_O-L_X)+th*256}", "ow")
            self.barrier()
            for ks in range(6):
                for th in range(2):
                    self.ds(f"ds_read_b128 {a(AOF+(th*6+ks)*4,4)}, {v(VHR+(ks&1))} offset:{(L_O-L_H)+ks*2048+th*256}", f"of{ks}")
            if not self.dbg.get("early", 1): self.setup_s1d()

        self.wait_vm("w0_2")
        self.fst(1, "w0 landed")
        for ft in range(3):
            for e2 in range(2): trread(0, ft, e2)
        self.wait_vm("w1_2")
        for ft in range(3):
            for e2 in range(2): trread(1, ft, e2)
        fill = []
        pa, pb = self.dbg.get("pa", 5), self.dbg.get("pb", 7)
        for s in range(24):
            if s == 8: xinit()
            if s == 12: fill = self.capture(s_partial)
            if s == 14:
                for f in fill: f()
                self.wait_lg("sp"); I("s_barrier")
                softmax_read()
                fill = self.capture(self.setup_s1c) + self.capture(softmax_t)
            step(s, fill, pa if s in (12, 13) else pb if 14 <= s <= 17 else 0)
            if s == 8: xinit_unpack()
            if s == 11: self.stamp(5)
            if s == 17:
                for f in fill: f()
                fill = []
                self.stamp(6)
                pv_t()
            if s == 5: self.stamp(4)
            if s in (0, 2): self.fst(1, f"step{s}")
            if s == 19: self.vm(f"buffer_load_dword v63, off, {srd(SDBG)}, 0 sc1", "fus")
            if s == 22: self.fusion_check()
        self.pace = None
        self.stamp(7)
        self.ln2_store()
        self.stamp(8)

    def fusion_check(self):
        I = self.I
        self.wait_vm("fus")
        I(f"s_mov_b32 s31, {SPIN_MAX}")
        self.L("L_fpoll")
        I("v_cmp_le_u32 vcc, 72, v63")
        I("s_cbranch_vccnz L_fdone")
        I(f"buffer_load_dword v63, off, {srd(SDBG)}, 0 sc1")
        I("s_sub_u32 s31, s31, 1")
        I("s_waitcnt vmcnt(0)")
        I("s_cmp_lg_u32 s31, 0")
        I("s_cbranch_scc1 L_fpoll", pat="fspin")
        self.L("L_fdone")
        I(f"s_mul_i32 s31, {S_J}, 52")
        I(f"s_mul_i32 s34, {S_W}, 13")
        I("s_add_u32 s31, s31, s34")
        I("v_min_u32 v62, 12, v1")
        I("v_add_u32 v62, s31, v62")
        I("v_add_u32 v63, 448, v62")
        I("v_cmp_gt_u32 vcc, 576, v62")
        I(f"s_mov_b32 s31, {WS_WM}")
        I("s_nop 0")
        I("v_cndmask_b32 v62, v63, v62, vcc")
        I("v_lshlrev_b32 v62, 7, v62")
        self.vm(f"buffer_load_dword v63, v62, {srd(SWS)}, s31 offen sc1", "pf")

    def ln2_store(self):
        I = self.I
        s1, s2 = TP, TP + 4
        self.nop(3)
        for th in range(2):
            I(f"v_pk_add_f32 {v(s1+2*th,2)}, {v(AO+th*4,2)}, {v(AO+th*4+2,2)}")
            I(f"v_pk_mul_f32 {v(s2+2*th,2)}, {v(AO+th*4,2)}, {v(AO+th*4,2)}")
        for ft in range(3):
            for th in range(2):
                b = AO + (ft*2+th)*4
                if ft:
                    I(f"v_pk_add_f32 {v(s1+2*th,2)}, {v(s1+2*th,2)}, {v(b,2)}")
                    I(f"v_pk_fma_f32 {v(s2+2*th,2)}, {v(b,2)}, {v(b,2)}, {v(s2+2*th,2)}")
                    I(f"v_pk_add_f32 {v(s1+2*th,2)}, {v(s1+2*th,2)}, {v(b+2,2)}")
                I(f"v_pk_fma_f32 {v(s2+2*th,2)}, {v(b+2,2)}, {v(b+2,2)}, {v(s2+2*th,2)}")
        P = TP + 8
        for th in range(2):
            I(f"v_add_f32 {v(P+2*th)}, {v(s1+2*th)}, {v(s1+2*th+1)}")
            I(f"v_add_f32 {v(P+2*th+1)}, {v(s2+2*th)}, {v(s2+2*th+1)}")
        self.xg_reduce_add([P, P+1, P+2, P+3], [TP, TP+1, TP+2, TP+3])
        for th in range(2): self.ds(f"ds_write_b64 {v(VSTW)}, {v(P+2*th,2)} offset:{th*128}")
        I(f"s_mov_b32 {S_C0}, {hx(f2u(1.0/192))}")
        I(f"s_mov_b32 {S_C1}, {hx(f2u(1e-5))}")
        self.barrier()
        RB = XR
        for th in range(2):
            for w in range(4):
                self.ds(f"ds_read_b64 {v(RB+(th*4+w)*2,2)}, {v(VSTR)} offset:{w*256+th*128}", f"st{th}")
        for th in range(2):
            b = RB + th*8
            self.wait_lg(f"st{th}")
            I(f"v_pk_add_f32 {v(b,2)}, {v(b,2)}, {v(b+2,2)}")
            I(f"v_pk_add_f32 {v(b+4,2)}, {v(b+4,2)}, {v(b+6,2)}")
        for th in range(2): I(f"v_pk_add_f32 {v(RB+th*8,2)}, {v(RB+th*8,2)}, {v(RB+th*8+4,2)}")
        for th in range(2):
            b = RB + th*8
            I(f"v_mul_f32 {v(b)}, {S_C0}, {v(b)}")
            I(f"v_mov_b32 {v(b+2)}, {S_C1}")
        for th in range(2): I(f"v_fmac_f32 {v(RB+th*8+2)}, {S_C0}, {v(RB+th*8+1)}")
        for th in range(2): I(f"v_fma_f32 {v(RB+th*8+2)}, -{v(RB+th*8)}, {v(RB+th*8)}, {v(RB+th*8+2)}")
        for th in range(2): I(f"v_max_f32 {v(RB+th*8+6)}, {S_C1}, {v(RB+th*8+2)}")
        for th in range(2): I(f"v_rsq_f32 {v(RB+th*8+2)}, {v(RB+th*8+6)}")
        I("s_nop 0")
        for th in range(2):
            b = RB + th*8
            I(f"v_mul_f32 {v(b+4)}, {v(b)}, {v(b+2)}")
            I(f"v_mov_b32 {v(b+3)}, {v(b+2)}")
            I(f"v_mov_b32 {v(b+5)}, {v(b+4)}")
        HB = TP + 28
        for ft in range(3):
            for th in range(2):
                b = AO + (ft*2+th)*4; rb = RB + th*8
                I(f"v_pk_fma_f32 {v(b,2)}, {v(b,2)}, {v(rb+2,2)}, {v(rb+4,2)} neg_lo:[0,0,1] neg_hi:[0,0,1]")
                I(f"v_pk_fma_f32 {v(b+2,2)}, {v(b+2,2)}, {v(rb+2,2)}, {v(rb+4,2)} neg_lo:[0,0,1] neg_hi:[0,0,1]")
            for th in range(2):
                b = AO + (ft*2+th)*4; d = HB + ft*4 + th*2
                I(f"v_cvt_pk_bf16_f32 {v(d)}, {v(b)}, {v(b+1)}")
                I(f"v_cvt_pk_bf16_f32 {v(d+1)}, {v(b+2)}, {v(b+3)}")
            if ft:
                d = HB + (ft-1)*4
                I(f"v_permlane16_swap_b32 {v(d)}, {v(d+2)}")
                I(f"v_permlane16_swap_b32 {v(d+1)}, {v(d+3)}")
                self.vm(f"buffer_store_dwordx4 {v(d,4)}, {v(VST)}, {srd(SWS)}, {S_ST[ft-1]} offen {STF[self.dbg.get('stf', 0)]}", "st")
        I(f"v_mul_f32 {v(RB+1)}, {v(RB+6)}, {v(RB+2)}")
        I(f"v_mul_f32 {v(RB+9)}, {v(RB+14)}, {v(RB+10)}")
        I(f"v_permlane16_swap_b32 {v(HB+8)}, {v(HB+10)}")
        I(f"v_permlane16_swap_b32 {v(HB+9)}, {v(HB+11)}")
        self.vm(f"buffer_store_dwordx4 {v(HB+8,4)}, {v(VST)}, {srd(SWS)}, {S_ST[2]} offen {STF[self.dbg.get('stf', 0)]}", "st")
        I("v_and_b32 v62, 16, v1")
        I("v_cmp_eq_u32 vcc, 0, v62")
        I(f"s_cmp_lg_u32 {S_W}, 0")
        I("s_cbranch_scc1 L_nostat", pat="nostat")
        I(f"v_cndmask_b32 {v(TP)}, {v(RB+8)}, {v(RB)}, vcc")
        I(f"v_cndmask_b32 {v(TP+1)}, {v(RB+9)}, {v(RB+1)}, vcc")
        I(f"buffer_store_dwordx2 {v(TP,2)}, {v(VSTA)}, {srd(SWS)}, 0 offen sc1")
        self.L("L_nostat")

    def setup_s2(self):
        I = self.I; out = []
        def A(t): out.append(lambda t=t: I(t))
        t = [100 + i for i in range(7)]
        tk, g = t[5], t[6]
        A(f"v_and_b32 {v(tk)}, 15, v1"); A(f"v_lshrrev_b32 {v(g)}, 4, v1")
        A(f"s_mul_i32 {S_RING2}, {S_W}, 36864")
        A(f"s_mul_i32 {S_FBASE}, {S_X8}, {FRAMEB}")
        for k in range(2): A(f"v_add_u32 {v(VHR2+k)}, {L_Q - L_H}, {v(VHR+k)}")
        for k in range(3): A(f"v_add_u32 {v(VQW+k)}, {L_Q - L_X}, {v(VXR+k)}")
        A(f"v_lshrrev_b32 {v(t[0])}, 1, {v(g)}")
        A(f"v_and_b32 {v(t[2])}, 1, {v(g)}")
        A(f"v_lshrrev_b32 {v(t[1])}, 3, {v(tk)}")
        A(f"v_xor_b32 {v(t[4])}, {v(t[2])}, {v(t[0])}")
        A(f"v_xor_b32 {v(t[4])}, {v(t[4])}, {v(t[1])}")
        A(f"v_lshlrev_b32 {v(t[4])}, 6, {v(t[4])}")
        A(f"v_lshrrev_b32 {v(VOWN)}, 2, {v(tk)}")
        A(f"v_xor_b32 {v(VOWN)}, {v(VOWN)}, {v(t[2])}")
        A(f"v_lshl_add_u32 {v(t[4])}, {v(VOWN)}, 7, {v(t[4])}")
        A(f"v_lshl_add_u32 {v(t[4])}, {v(t[2])}, 10, {v(t[4])}")
        A(f"v_and_b32 {v(VOWN)}, 3, {v(tk)}")
        A(f"v_lshl_add_u32 {v(VOWN)}, {v(VOWN)}, 4, {v(t[4])}")
        A(f"v_lshl_add_u32 {v(t[3])}, {v(t[2])}, 4, {v(tk)}")
        A(f"s_lshl_b32 s35, {S_J}, 5")
        A(f"v_add_u32 {v(t[4])}, s35, {v(t[3])}")
        A(f"v_cmp_gt_u32 vcc, {N}, {v(t[4])}")
        A(f"s_mul_i32 s34, {S_X8}, {N}")
        A(f"v_add_u32 {v(t[4])}, s34, {v(t[4])}")
        A(f"v_mul_u32_u24 {v(t[4])}, 384, {v(t[4])}")
        A(f"s_mul_i32 s35, {S_W}, 96")
        A(f"v_lshl_add_u32 {v(t[4])}, {v(t[0])}, 4, {v(t[4])}")
        A(f"v_add_u32 {v(t[4])}, s35, {v(t[4])}")
        A(f"v_mov_b32 {v(VOUT)}, {hx(OOB)}")
        A(f"v_cndmask_b32 {v(VOUT)}, {v(VOUT)}, {v(t[4])}, vcc")
        A(f"v_bfe_u32 {v(t[4])}, {v(t[3])}, 3, 1")
        A(f"v_xor_b32 {v(t[4])}, {v(t[4])}, {v(t[0])}")
        A(f"v_lshlrev_b32 {v(t[4])}, 6, {v(t[4])}")
        A(f"v_and_b32 {v(t[1])}, 3, {v(t[3])}")
        A(f"v_lshl_add_u32 {v(t[4])}, {v(t[1])}, 4, {v(t[4])}")
        A(f"v_lshrrev_b32 {v(t[1])}, 2, {v(t[3])}")
        A(f"s_and_b32 s35, {S_W}, 1")
        A(f"v_xor_b32 {v(t[1])}, s35, {v(t[1])}")
        A(f"v_lshl_add_u32 {v(VR1)}, {v(t[1])}, 7, {v(t[4])}")
        A(f"v_xor_b32 {v(t[1])}, 1, {v(t[1])}")
        A(f"v_lshl_add_u32 {v(VR1+1)}, {v(t[1])}, 7, {v(t[4])}")
        A(f"s_add_u32 s34, {S_RING2}, {12288 + 8192}")
        A(f"v_add_u32 {v(VR1)}, s34, {v(VR1)}")
        A(f"v_add_u32 {v(VR1+1)}, s34, {v(VR1+1)}")
        A(f"s_mul_i32 s34, {S_X8}, 736")
        A(f"s_lshl_b32 s35, {S_J}, 5")
        A(f"s_add_u32 s34, s34, s35")
        A(f"s_lshl_b32 s34, s34, 3")
        A(f"s_add_u32 {S_STO}, s34, {WS_STAT}")
        A(f"v_lshlrev_b32 {v(VSTA)}, 3, {v(tk)}")
        A(f"v_xor_b32 {v(t[4])}, {v(t[0])}, {v(t[2])}")
        A(f"v_lshlrev_b32 {v(t[4])}, 7, {v(t[4])}")
        A(f"v_lshl_add_u32 {v(t[4])}, {v(t[2])}, 10, {v(t[4])}")
        A(f"v_bfe_u32 {v(t[1])}, v1, 2, 2")
        A(f"v_lshl_add_u32 {v(t[4])}, {v(t[1])}, 4, {v(t[4])}")
        A(f"v_and_b32 {v(t[1])}, 1, v1")
        A(f"v_lshl_add_u32 {v(t[4])}, {v(t[1])}, 3, {v(t[4])}")
        A(f"v_add_u32 {v(t[4])}, {S_RING2}, {v(t[4])}")
        A(f"v_bfe_u32 {v(t[1])}, v1, 1, 1")
        A(f"v_lshl_add_u32 {v(VV0)}, {v(t[1])}, 6, {v(t[4])}")
        A(f"v_xor_b32 {v(t[1])}, 1, {v(t[1])}")
        A(f"v_lshl_add_u32 {v(t[4])}, {v(t[1])}, 6, {v(t[4])}")
        A(f"v_add_u32 {v(VV1)}, 256, {v(t[4])}")
        A(f"v_and_b32 {v(t[0])}, 31, v1")
        A(f"v_lshrrev_b32 {v(t[1])}, 5, v1")
        A(f"v_lshrrev_b32 {v(t[2])}, 2, {v(t[0])}")
        A(f"v_bfe_u32 {v(t[3])}, {v(t[0])}, 3, 1")
        A(f"v_xor_b32 {v(t[3])}, {v(t[3])}, {v(t[1])}")
        A(f"v_lshlrev_b32 {v(t[3])}, 6, {v(t[3])}")
        A(f"v_and_b32 {v(t[4])}, 3, {v(t[0])}")
        A(f"v_lshl_add_u32 {v(t[3])}, {v(t[4])}, 4, {v(t[3])}")
        A(f"v_add_u32 {v(t[3])}, {S_RING2}, {v(t[3])}")
        A(f"v_lshl_add_u32 {v(VK0)}, {v(t[2])}, 7, {v(t[3])}")
        A(f"v_xor_b32 {v(t[2])}, 1, {v(t[2])}")
        A(f"v_lshl_add_u32 {v(VK1)}, {v(t[2])}, 7, {v(t[3])}")
        A(f"v_lshlrev_b32 {v(t[2])}, 9, {v(t[1])}")
        A(f"v_add_u32 {v(t[2])}, {L_Q}, {v(t[2])}")
        for k in range(4):
            A(f"v_add_u32 {v(t[3])}, {2*k}, {v(t[1])}")
            A(f"v_xor_b32 {v(t[3])}, {v(t[3])}, {v(t[0])}")
            A(f"v_lshl_add_u32 {v(VQR+k)}, {v(t[3])}, 4, {v(t[2])}")
        A(f"v_lshlrev_b32 {v(t[2])}, 3, {v(t[1])}")
        A(f"s_mul_i32 s34, {S_W}, 3072")
        A(f"s_add_u32 s34, s34, {L_Q}")
        A(f"v_add_u32 {v(t[2])}, s34, {v(t[2])}")
        A(f"s_mul_i32 s36, {S_W}, 6")
        for u in range(6):
            A(f"s_add_u32 s35, s36, {u}")
            A("s_and_b32 s35, s35, 7")
            A(f"v_xor_b32 {v(t[3])}, s35, {v(t[0])}")
            A(f"v_lshl_add_u32 {v(VOW+u)}, {v(t[3])}, 4, {v(t[2])}")
        A(f"v_lshlrev_b32 {v(t[0])}, 3, {v(t[0])}")
        A(f"s_lshl_b32 s34, {S_W}, 8")
        A(f"s_add_u32 s34, s34, {L_ML}")
        A(f"v_add_u32 {v(VML)}, s34, {v(t[0])}")
        A(f"v_add_u32 {v(VEX)}, {S_RING2}, {v(VD)}")
        for k in range(1, 4):
            A(f"s_add_u32 s36, {S_W}, {k}")
            A("s_and_b32 s36, s36, 3")
            A("s_lshl_b32 s34, s36, 8")
            A(f"s_add_u32 s34, s34, {L_ML}")
            A(f"v_add_u32 {v(VMLR+k-1)}, s34, {v(t[0])}")
            A("s_mul_i32 s34, s36, 36864")
            A(f"s_mul_i32 s35, {S_W}, 6144")
            A("s_add_u32 s34, s34, s35")
            A(f"v_add_u32 {v(VEXR+k-1)}, s34, {v(VD)}")
        A(f"v_add_u32 {v(VD+1)}, 4096, {v(VD)}")
        A(f"v_add_u32 {v(VD+2)}, 8192, {v(VD)}")
        A(f"s_add_u32 s36, {S_J}, {S_W}")
        A(f"s_mov_b32 {S_R22}, 99")
        for k in range(6):
            if k: A("s_add_u32 s36, s36, 4")
            grp = ["s_cmp_ge_u32 s36, 23", "s_cselect_b32 s34, 23, 0", "s_sub_u32 s36, s36, s34",
                   "s_cmp_eq_u32 s36, 22", f"s_cselect_b32 {S_R22}, {k}, {S_R22}",
                   f"s_mul_i32 {S_TOF[k]}, s36, {TILEB}", f"s_add_u32 {S_TOF[k]}, {S_TOF[k]}, {S_FBASE}"]
            out.append(lambda grp=grp: [I(x) for x in grp])
        A(f"s_mul_i32 {S_WV0}, {S_W}, 18432")
        A(f"s_add_u32 {S_WV0}, {S_WV0}, {WS_WVO}")
        A(f"s_mul_i32 {S_H2O}, {S_J}, {TILEB}")
        A(f"s_add_u32 {S_H2O}, {S_H2O}, {S_FBASE}")
        A(f"s_mul_i32 s34, {S_W}, 3072")
        A(f"s_add_u32 {S_H2O}, {S_H2O}, s34")
        for r in range(16): A(f"v_mov_b32 {v(VNM+r)}, 0")
        A(f"v_mov_b32 {v(VL)}, 0")
        A(f"s_mov_b32 {S_C0}, {hx(f2u(HI_THR))}")
        A(f"s_mov_b32 {S_C1}, {hx(f2u(LO_THR))}")
        return out

    def handoff(self):
        I = self.I
        self.fst(2, "st issued")
        items = self.setup_s2()
        na = int(len(items) * self.dbg.get("fa", 70) / 100)
        nm = self.dbg.get("nm", 0)
        def mload(q):
            if q == 0:
                I(f"s_mul_i32 s31, {S_W}, 18432")
                I(f"s_add_u32 s31, s31, {WS_WM}")
            if q % 4 == 0 and q: I(f"s_add_u32 s31, s31, 4096")
            self.vm(f"buffer_load_dwordx4 {a(AM+4*q,4)}, {v(VD)}, {srd(SWS)}, s31 offen offset:{(q%4)*1024} sc1", "wf")
        for f in items[:na]: f()
        for q in range(nm): mload(q)
        self.fst(2, "setupA")
        I(f"s_waitcnt vmcnt({nm})")
        if nm == 0: self.vm_done = len(self.vmq)
        self.stamp(9)
        self.fst(2, "drained")
        I("s_barrier")
        I(f"s_cmp_lg_u32 {S_W}, 0")
        I("s_cbranch_scc1 L_nosig", pat="nosig")
        I("v_lshlrev_b32 v62, 12, v1")
        I(f"s_lshl_b32 s34, {S_J}, 7")
        I(f"s_add_u32 s34, s34, {WS_SYNC}")
        I("v_mov_b32 v63, 1")
        I("v_add_u32 v62, s34, v62")
        I("s_mov_b64 exec, 0xff")
        I(f"buffer_atomic_add v63, v62, {srd(SWS)}, 0 offen sc1")
        I("s_mov_b64 exec, -1")
        self.L("L_nosig")
        it = na; left = 18 - nm
        per = -(-(len(items) - na) // max(1, left))
        if nm and nm < 18 and False: pass
        for q in range(nm, 18):
            mload(q)
            for _ in range(per):
                if it < len(items): items[it](); it += 1
        while it < len(items): items[it](); it += 1
        self.fst(2, "setupB")
        I(f"s_cmp_lg_u32 {S_W}, 0")
        I("s_cbranch_scc1 L_hwait", pat="hwait")
        I("v_min_u32 v62, 22, v1")
        I("v_lshlrev_b32 v62, 7, v62")
        I(f"s_lshl_b32 s31, {S_X8}, 12")
        I(f"s_add_u32 s31, s31, {WS_SYNC}")
        I(f"s_mov_b32 s34, {SPIN_MAX}")
        self.L("L_hpoll")
        I(f"buffer_load_dword v63, v62, {srd(SWS)}, s31 offen sc1")
        I("s_sub_u32 s34, s34, 1")
        I("s_cmp_eq_u32 s34, 0")
        I("s_cbranch_scc1 L_hwait", pat="hspin")
        I("s_waitcnt vmcnt(0)")
        I("v_cmp_gt_u32 vcc, 8, v63")
        I("s_cbranch_vccnz L_hpoll")
        self.L("L_hwait")
        I("s_barrier")
        self.stamp(10)
        self.fst(2, "go")

    def tile_src(self, r, grp):
        if r < 6: return S_TOF[r], []
        if r == 6: return S_WV0, []
        if grp < 2: return "s36", [f"s_add_u32 s36, {S_WV0}, 12288"]
        return S_H2O, []
    def m0_for(self, r, grp):
        so, pre = self.tile_src(r, grp)
        self.I(f"s_add_u32 m0, {S_RING2}, {(r % 3) * 12288 + grp * 4096}")
        for x in pre: self.I(x)
    def dma_items(self, r, parts, chain=False):
        out = []
        for part in parts:
            def f(part=part):
                grp = part // 4
                so, pre = self.tile_src(r, grp)
                if part % 4 == 0 and not chain:
                    self.m0_for(r, grp)
                    if not pre: self.I("s_nop 0")
                lane = VD if (r == 7 and grp == 2) else VD + grp
                self.vm(f"buffer_load_dwordx4 {v(lane)}, {srd(SWS)}, {so} offen offset:{(part%4)*1024} {LDF[self.dbg.get('ldf', 0)]} lds", f"t{r}_{part}")
                if chain and part % 4 == 3:
                    if part < 11: self.m0_for(r, grp + 1)
                    elif r < 7: self.m0_for(r + 1, 0)
            out.append(f)
        return out

    def s2(self):
        I = self.I
        I(f"s_sub_u32 s35, {S_H2O}, 0")
        I(f"s_mul_i32 s36, {S_W}, 3072")
        I("s_mov_b32 m0, s36")
        I("s_nop 0")
        for q in range(3):
            self.vm(f"buffer_load_dwordx4 {v(VD)}, {srd(SWS)}, s35 offen offset:{q*1024} sc1 lds", "own")
        I(f"s_cmp_eq_u32 {S_W}, 0")
        I("s_cbranch_scc1 L_s2_w0", pat="w0")
        for f in self.dma_items(0, range(12)): f()
        I("s_waitcnt vmcnt(12)")
        I("s_branch L_s2_j")
        self.L("L_s2_w0")
        I("s_waitcnt vmcnt(0)")
        self.L("L_s2_j")
        self.fst(2, "own landed")
        I("s_barrier")
        own_idx = max(i for i, t in enumerate(self.vmq) if t == "own")
        self.vm_done = own_idx + 1
        for ks in range(6):
            for th in range(2):
                self.ds(f"ds_read_b128 {a((th*6+ks)*4,4)}, {v(VOWN)} offset:{ks*2048+th*512}", f"ob{ks}", needs=["own"])
        for th in range(2):
            self.vm(f"buffer_load_dwordx2 {v(VMU+2*th,2)}, {v(VSTA)}, {srd(SWS)}, {S_STO} offen offset:{128*th} sc1", "mu")
        d1 = self.dma_items(1, range(12)); d2 = self.dma_items(2, range(6))
        nq = self.dbg.get("nq", 6)
        n = 0; i1 = 0
        for ks in range(6):
            self.wait_lg(f"ob{ks}")
            for ft in range(3):
                for th in range(2):
                    D = v(VPD+(ft*2+th)*4, 4)
                    I(f"v_mfma_f32_16x16x32_bf16 {D}, {a(AM+(ft*6+ks)*4,4)}, {a((th*6+ks)*4,4)}, {'0' if ks == 0 else D}", needs=["wf"])
                    n += 1
                    if i1 < nq and n * nq >= (i1 + 1) * 36 - 17: d1[i1](); i1 += 1
        while i1 < nq: d1[i1](); i1 += 1
        self.fst(2, "q mfma")
        self.nop(3)
        rest = d1[nq:] + d2
        per = -(-len(rest) // 3)
        for ft in range(3):
            for th in range(2):
                b = VPD+(ft*2+th)*4; d = VE + (ft*2+th)*2
                I(f"v_cvt_pk_bf16_f32 {v(d)}, {v(b)}, {v(b+1)}")
                I(f"v_cvt_pk_bf16_f32 {v(d+1)}, {v(b+2)}, {v(b+3)}")
                self.ds(f"ds_write_b64 {v(VQW+ft)}, {v(d,2)} offset:{th*256}")
            if not self.dbg.get("late", 1):
                for f in rest[ft*per:(ft+1)*per]: f()
        self.wait_vm("t0_11")
        self.barrier()
        self.fst(2, "q barrier")
        for jj in range(12):
            self.ds(f"ds_read_b128 {a(AQP+4*jj,4)}, {v(VQR+(jj&3))} offset:{jj*1024}", f"q{jj}")
            self.ds(f"ds_read_b128 {a(AKF+4*jj,4)}, {v(VK0+(jj&1))} offset:{jj*1024}", f"k0_{jj}", needs=["own"] + [f"t0_{q}" for q in range(12)])
            if self.dbg.get("late", 1) and jj % 2 == 1 and rest: rest.pop(0)()
        if self.dbg.get("late", 1):
            for f in rest: f()
        self.stamp(11)
        self.rounds()
        self.stamp(12)
        self.fst(2, "rounds"); self.fst(3, "rounds")
        self.tail()
        self.rare()

    def kread(self, r, k):
        def f():
            if k % 3 == 0: self.wait_vm(f"t{r}_{k+2}")
            self.ds(f"ds_read_b128 {a(AKF+4*k,4)}, {v(VK0+(k&1))} offset:{(r%3)*12288 + k*1024}", f"k{r}_{k}", needs=[f"t{r}_{k}"])
        return f
    def wvread(self, k):
        def f():
            if k == 0: self.I(f"v_add_u32 v63, {S_RING2}, {v(VD)}")
            if k % 4 == 0: self.wait_vm(f"t6_{k+3}")
            self.ds(f"ds_read_b128 {a(AWV+4*k,4)}, v63 offset:{k*1024}", "wv6", needs=[f"t6_{k}"])
        return f
    def vread(self, r, m, e2):
        s_, ct = divmod(m, 6)
        def f():
            self.ds(f"ds_read_b64_tr_b16 {a(AVF+(ct*2+s_)*4+2*e2,2)}, {v(VV0+e2)} offset:{(r%3)*12288 + ct*2048 + s_*512}", f"v{r}_{m}")
        return f
    def smfma(self, r, jj):
        S = VSB[r & 1]
        def f():
            if r == 0:
                self.wait_lg(f"k0_{jj}")
            elif jj == 0: self.wait_lg(f"k{r}_11")
            self.I(f"v_mfma_f32_32x32x16_bf16 {v(S,16)}, {a(AKF+4*jj,4)}, {a(AQP+4*jj,4)}, {v(VNM,16) if jj == 0 else v(S,16)}")
        return f
    def pmfma(self, r, m, order=None):
        s_, ct = divmod(m, 6) if order is None else order
        def f():
            self.wait_lg(f"v{r}_{s_*6+ct}")
            C_ = "0" if (r == 0 and s_ == 0) else v(VO+16*ct, 16)
            self.I(f"v_mfma_f32_32x32x16_bf16 {v(VO+16*ct,16)}, {a(AVF+(ct*2+s_)*4,4)}, {v(VPB+4*s_,4)}, {C_}")
        return f
    def sm_items(self, r, lo, hi):
        I = self.I; S = VSB[r & 1]
        ex = []
        for k in range(lo, hi):
            def f(k=k):
                I(f"v_exp_f32 {v(VE+k)}, {v(S+k)}")
                p = k - 2
                if p == 1: I(f"v_add_f32 {v(VTS)}, {v(VE)}, {v(VE+1)}")
                elif p == 3: I(f"v_add_f32 {v(VTS+1)}, {v(VE+2)}, {v(VE+3)}")
                elif p >= 4: I(f"v_add_f32 {v(VTS+(p & 1))}, {v(VTS+(p & 1))}, {v(VE+p)}")
            ex.append(f)
        return ex
    def cv_items(self, lo, hi):
        return [(lambda k=k: self.I(f"v_cvt_pk_bf16_f32 {v(VPB+k)}, {v(VE+2*k)}, {v(VE+2*k+1)}")) for k in range(lo, hi)]
    def sm_half(self, r, h):
        return self.sm_items(r, 8*h, 8*h + 8), self.cv_items(4*h, 4*h + 4)
    def mask22(self, r):
        def f():
            I = self.I; S = VSB[r & 1]
            I(f"s_cmp_eq_u32 {S_R22}, {r}")
            I(f"s_cbranch_scc0 L_nm{r}", pat=f"nm{r}")
            for k in (13, 14, 15): I(f"v_mov_b32 {v(S+k)}, {NINF}")
            I(f"v_mov_b32 v62, {NINF}")
            I(f"v_cndmask_b32 {v(S+12)}, {v(S+12)}, v62, {S_MASKH}")
            self.L(f"L_nm{r}")
        return f
    def check_items(self, r):
        I = self.I
        it = [lambda: I(f"v_add_f32 {v(VTS)}, {v(VTS)}, {v(VE+14)}"),
              lambda: I(f"v_add_f32 {v(VTS+1)}, {v(VTS+1)}, {v(VE+15)}"),
              lambda: I(f"v_add_f32 {v(VTS)}, {v(VTS)}, {v(VTS+1)}"),
              lambda: I(f"v_cmp_nge_f32 vcc, {S_C0}, {v(VTS)}")]
        if r == 0:
            it.append(lambda: I(f"v_cmp_gt_f32 s[34:35], {S_C1}, {v(VTS)}"))
            it.append(lambda: I("s_or_b64 vcc, vcc, s[34:35]"))
        return it
    def check_branch(self, r):
        self.I(f"s_cbranch_vccnz L_rare_{r}", pat=f"rare{r}")
        self.L(f"L_back_{r}")
    def l_update(self): self.I(f"v_add_f32 {v(VL)}, {v(VL)}, {v(VTS)}")
    def check(self, r):
        for f in self.check_items(r): f()
        self.check_branch(r); self.l_update()

    def rounds(self):
        d = self.dbg
        n1 = d.get("n1", 10)
        na = d.get("na", 6)
        fg = d.get("fg", 1)
        self.n1 = n1
        def Q(name, items, cost, g0, g1=11, per=2, dep=None):
            return dict(name=name, items=[(cost, f) for f in items], g0=g0, g1=g1, per=per, dep=dep)
        def pin(pinned, gap, cost, f): pinned.setdefault(gap, []).append((cost, f))
        p = {}
        for k in range(12): pin(p, k, 4, self.kread(1, k))
        for m in range(12):
            for e in range(2): pin(p, m, 4, self.vread(0, m, e))
        self.phase2([self.smfma(0, jj) for jj in range(12)], p, [Q("dma", self.dma_items(2, range(6, 12), True), 8, 1, per=1)])
        for r in range(1, 6):
            p = {}; lo = 0 if r == 1 else n1
            if r + 1 < 6:
                for k in range(12): pin(p, k, 4, self.kread(r + 1, k))
            else:
                for k in range(12): pin(p, min(11, k + 1), 4, self.wvread(k))
            ex = self.sm_items(r - 1, lo, 16)
            m22 = self.mask22(r - 1)
            i12 = 12 - lo
            ex[i12] = (lambda f=ex[i12], m=m22: (m(), f()))
            cvlo = 0 if r == 1 else 4
            na = d.get("na1", 6) if r == 1 else d.get("na", 6)
            dm = self.dma_items(r + 2, range(na), True)
            dm[0] = (lambda f=dm[0], r=r: (self.wait_lg(f"v{r-1}_11"), f()))
            nex = len(ex)
            flex = [Q("ex", ex, 12, 3 if r == 1 else 0, d.get("ge1", 9) if r == 1 else d.get("ge", 7), per=3 if r == 1 else 2),
                    Q("dma", dm, 8, fg, 11, per=1),
                    Q("cv", self.cv_items(cvlo, 8), 4, 0, 11, per=2, dep=lambda i, pl, lo=lo, cvlo=cvlo: lo + pl["ex"] >= 2 * (cvlo + i) + 2),
                    Q("ck", self.check_items(r - 1), 4, 8, 11, per=2, dep=lambda i, pl, nex=nex: pl["ex"] >= nex)]
            self.phase2([self.smfma(r, jj) for jj in range(12)], p, flex)
            self.check_branch(r - 1)
            p = {}
            for m in range(12):
                for e in range(2): pin(p, m, 4, self.vread(r, m, e))
            pin(p, 0, 4, self.l_update)
            if r == 5: pin(p, 2, 8, self.mask_dummy)
            flex = [Q("ex", self.sm_items(r, 0, n1), 12, 3 if r == 5 else 2, 11, per=2),
                    Q("dma", self.dma_items(r + 2, range(na, 12), True), 8, 0, d.get("gb", 9), per=1),
                    Q("cv", self.cv_items(0, 4), 4, 6, 11, per=2, dep=lambda i, pl: pl["ex"] >= 2 * i + 2)]
            self.phase2([self.pmfma(r - 1, m) for m in range(12)], p, flex)
    def mask_dummy(self):
        I = self.I; S = VSB[1]
        I(f"s_cmp_eq_u32 {S_W}, 3")
        I("s_cbranch_scc0 L_ndum", pat="ndum")
        for k in range(16): I(f"v_mov_b32 {v(S+k)}, {NINF}")
        self.L("L_ndum")

    def tail(self):
        I = self.I
        self.mask22(5)()
        for f in self.sm_items(5, self.n1, 16): f()
        for f in self.cv_items(4, 8): f()
        self.check(5)
        self.fst(3, "sm5")
        I(f"v_mov_b32 v62, {v(VL)}")
        I(f"v_mov_b32 v63, {v(VL)}")
        order = [(s_, ct) for ct in range(6) for s_ in range(2)]
        pv = [self.pmfma(5, 0, o) for o in order]
        pv[0]()
        I(f"v_sub_f32 v88, 0, {v(VNM)}")
        I("v_permlane32_swap_b32 v62, v63")
        I("v_add_f32 v89, v62, v63")
        pv[1]()
        self.ds(f"ds_write_b64 {v(VML)}, v[88:89]")
        I(f"v_add_u32 v62, {S_RING2}, {v(VD)}")
        pv[2](); pv[3]()
        self.vm_all()
        rd = [f"ds_read_b128 {a(AWV+48+4*q,4)}, v62 offset:{12288+q*1024}" for q in range(6)]
        rd += [f"ds_read_b128 {v(VPD+4*ft,4)}, {v(VR1+(ft&1))} offset:{ft*1024}" for ft in range(3)]
        ri = 0
        for n in range(4, 12):
            pv[n]()
            for _ in range(2):
                if ri < len(rd): self.ds(rd[ri], "wv"); ri += 1
        assert ri == len(rd)
        self.fst(3, "pv5 issued")
        self.wait_lg()
        self.fst(3, "wv read")
        XI = 96
        res = []
        for ft in range(3):
            b = VPD + 4*ft
            res.append(f"v_permlane16_swap_b32 {v(b)}, {v(b+2)}")
            res.append(f"v_permlane16_swap_b32 {v(b+1)}, {v(b+3)}")
        for ft in range(3):
            for th in range(2):
                src = VPD + 4*ft + 2*th; d = XI + (ft*2+th)*4
                res += [f"v_lshlrev_b32 {v(d)}, 16, {v(src)}", f"v_and_b32 {v(d+1)}, 0xffff0000, {v(src)}",
                        f"v_lshlrev_b32 {v(d+2)}, 16, {v(src+1)}", f"v_and_b32 {v(d+3)}, 0xffff0000, {v(src+1)}"]
        for ft in range(3):
            for th in range(2):
                d = XI + (ft*2+th)*4
                for r in range(4): res.append(f"v_fma_f32 {v(d+r)}, {v(d+r)}, {v(VMU+2*th+1)}, {v(VMU+2*th)}")
        self.wait_vm("mu")
        for d in range(4):
            I(f"s_cmp_eq_u32 {S_W}, {d}")
            I(f"s_cbranch_scc1 L_own{d}", pat=f"own{d}")
            if d == 3: self.nop(4)
            for u in range(6):
                I(f"ds_write_b128 {v(VEX)}, {v(VO+24*d+4*u,4)} offset:{(d*6+u)*1024}")
            I(f"s_branch L_nxt{d}")
            self.L(f"L_own{d}")
            if d == 3: self.nop(4)
            for r in range(24): I(f"v_mov_b32 {v(64+r)}, {v(VO+24*d+r)}")
            self.L(f"L_nxt{d}")
            for t in res[d*14:(d+1)*14]: I(t)
        self.fst(3, "ex written")
        self.fst(3, "resid")
        I("s_waitcnt lgkmcnt(0)")
        I("s_barrier")
        self.fst(3, "ex barrier")
        self.lgq, self.lg_done = [], 0
        for k in range(1, 4): self.ds(f"ds_read_b64 {v(88+2*k,2)}, {v(VMLR+k-1)}", "ml")
        for k in range(1, 4):
            for u in range(6):
                self.ds(f"ds_read_b128 {v(VO+(k-1)*24+4*u,4)}, {v(VEXR+k-1)} offset:{u*1024}", f"o{k}")
        self.wait_lg("ml")
        I("v_max3_f32 v55, v88, v90, v92")
        I("v_max_f32 v55, v55, v94")
        for src in (88, 90, 92, 94): I(f"v_sub_f32 {v(src)}, {v(src)}, v55")
        for src in (88, 90, 92, 94): I(f"v_exp_f32 {v(src)}, {v(src)}")
        I("s_nop 0")
        I("v_mul_f32 v55, v88, v89")
        for src in (90, 92, 94): I(f"v_fmac_f32 v55, {v(src)}, {v(src+1)}")
        I("v_rcp_f32 v55, v55")
        I("s_nop 0")
        for src in (88, 90, 92, 94): I(f"v_mul_f32 {v(src)}, {v(src)}, v55")
        for src in (88, 90, 92, 94): I(f"v_mov_b32 {v(src+1)}, {v(src)}")
        for r in range(0, 24, 2): I(f"v_pk_mul_f32 {v(64+r,2)}, {v(64+r,2)}, v[88:89]")
        self.wait_lg("o1")
        for r in range(0, 24, 2): I(f"v_pk_fma_f32 {v(64+r,2)}, {v(VO+r,2)}, v[90:91], {v(64+r,2)}")
        self.wait_lg("o2")
        for r in range(0, 24, 2): I(f"v_pk_fma_f32 {v(64+r,2)}, {v(VO+24+r,2)}, v[92:93], {v(64+r,2)}")
        self.wait_lg("o3")
        for u in range(6):
            for h2 in range(2):
                r = 4*u + 2*h2
                I(f"v_pk_fma_f32 {v(64+r,2)}, {v(VO+48+r,2)}, v[94:95], {v(64+r,2)}")
            I(f"v_cvt_pk_bf16_f32 {v(120+2*(u&3))}, {v(64+4*u)}, {v(65+4*u)}")
            I(f"v_cvt_pk_bf16_f32 {v(121+2*(u&3))}, {v(66+4*u)}, {v(67+4*u)}")
            self.ds(f"ds_write_b64 {v(VOW+u)}, {v(120+2*(u&3),2)} offset:{u*512}")
        self.stamp(13)
        self.fst(3, "combined")
        self.barrier()
        self.fst(3, "o barrier")
        for ks in range(6):
            for th in range(2):
                self.ds(f"ds_read_b128 {a((th*6+ks)*4,4)}, {v(VHR2+(ks&1))} offset:{ks*2048+th*256}", f"f{ks}")
        for ks in range(6):
            self.wait_lg(f"f{ks}")
            for ft in range(3):
                for th in range(2):
                    D = v(XI+(ft*2+th)*4, 4)
                    I(f"v_mfma_f32_16x16x32_bf16 {D}, {a(AWV+(ft*6+ks)*4,4)}, {a((th*6+ks)*4,4)}, {D}")
        self.fst(3, "proj mfma")
        self.nop(3)
        if self.dbg.get("perturb"):
            self.nop(8)
            I(f"s_lshl_b32 s31, {S_J}, 5")
            I(f"s_add_u32 s31, s31, {S_X8}")
            I(f"s_lshl_b32 s31, s31, 2")
            I(f"s_add_u32 s31, s31, {S_W}")
            I("s_cmp_lg_u32 s31, 0")
            I("s_cbranch_scc1 L_nopert", pat="nopert")
            I("s_mov_b64 exec, 1")
            I(f"v_add_f32 {v(XI)}, {hx(f2u(self.dbg['perturb'] / 1000.0))}, {v(XI)}")
            I("s_mov_b64 exec, -1")
            self.L("L_nopert")
        for ft in range(3):
            for th in range(2):
                b = XI+(ft*2+th)*4; d = 64 + ft*4 + th*2
                I(f"v_cvt_pk_bf16_f32 {v(d)}, {v(b)}, {v(b+1)}")
                I(f"v_cvt_pk_bf16_f32 {v(d+1)}, {v(b+2)}, {v(b+3)}")
            if ft:
                d = 64 + (ft-1)*4
                I(f"v_permlane16_swap_b32 {v(d)}, {v(d+2)}")
                I(f"v_permlane16_swap_b32 {v(d+1)}, {v(d+3)}")
                I(f"buffer_store_dwordx4 {v(d,4)}, {v(VOUT)}, {srd(SOUT)}, 0 offen offset:{(ft-1)*32} {OUTF[self.dbg.get('of', 0)]}")
        I("s_nop 0")
        I("v_permlane16_swap_b32 v72, v74")
        I("v_permlane16_swap_b32 v73, v75")
        I(f"buffer_store_dwordx4 v[72:75], {v(VOUT)}, {srd(SOUT)}, 0 offen offset:64 {OUTF[self.dbg.get('of', 0)]}")
        self.fst(3, "out issued")
        if self.dbg.get("stamps"):
            I("s_waitcnt vmcnt(0)")
            self.stamp(14)
            self.stamps_out()
        I("s_branch L_end")

    def rare(self):
        I = self.I
        for r in range(6):
            self.L(f"L_rare_{r}")
            I(f"s_mov_b32 {S_RND}, {r}")
            I(f"s_branch L_rare_p{r & 1}")
        for p in range(2):
            S, Sn = VSB[p], VSB[1 - p]
            self.L(f"L_rare_p{p}")
            self.nop(12)
            I(f"v_max3_f32 v55, {v(S)}, {v(S+1)}, {v(S+2)}")
            for r in range(3, 15, 2): I(f"v_max3_f32 v55, v55, {v(S+r)}, {v(S+r+1)}")
            I(f"v_max_f32 v55, v55, {v(S+15)}")
            I("v_mov_b32 v62, v55")
            I(f"v_mov_b32 v63, {v(VL)}")
            I(f"v_mov_b32 v46, {v(VL)}")
            self.nop(1)
            I("v_permlane32_swap_b32 v55, v62")
            I("v_permlane32_swap_b32 v63, v46")
            I("v_max_f32 v55, v55, v62")
            I("v_add_f32 v63, v63, v46")
            I("v_max_f32 v62, 0, v55")
            I("v_cmp_eq_f32 vcc, 0, v63")
            self.nop(2)
            I("v_cndmask_b32 v55, v62, v55, vcc")
            I("v_sub_f32 v62, 0, v55")
            I("v_exp_f32 v62, v62")
            I("s_nop 0")
            I("v_cndmask_b32 v62, v62, 1.0, vcc")
            I(f"s_cmp_eq_u32 {S_RND}, 0")
            I(f"s_cbranch_scc1 L_rare_noO{p}", pat=f"noO{p}")
            for r in range(96): I(f"v_mul_f32 {v(VO+r)}, {v(VO+r)}, v62")
            self.L(f"L_rare_noO{p}")
            I(f"v_mul_f32 {v(VL)}, {v(VL)}, v62")
            for r in range(16): I(f"v_sub_f32 {v(VNM+r)}, {v(VNM+r)}, v55")
            for r in range(16): I(f"v_sub_f32 {v(S+r)}, {v(S+r)}, v55")
            I(f"s_cmp_eq_u32 {S_RND}, 5")
            I(f"s_cbranch_scc1 L_rare_noN{p}", pat=f"noN{p}")
            for r in range(16): I(f"v_sub_f32 {v(Sn+r)}, {v(Sn+r)}, v55")
            self.L(f"L_rare_noN{p}")
            for r in range(16): I(f"v_exp_f32 {v(VE+r)}, {v(S+r)}")
            I("s_nop 0")
            I(f"v_add_f32 {v(VTS)}, {v(VE)}, {v(VE+1)}")
            for r in range(2, 16): I(f"v_add_f32 {v(VTS)}, {v(VTS)}, {v(VE+r)}")
            for k in range(8): I(f"v_cvt_pk_bf16_f32 {v(VPB+k)}, {v(VE+2*k)}, {v(VE+2*k+1)}")
            for r in range(p, 6, 2):
                I(f"s_cmp_eq_u32 {S_RND}, {r}")
                I(f"s_cbranch_scc1 L_back_{r}", pat=f"ret{r}")
            I("s_branch L_end")

    def build(self):
        self.entry(); self.s1(); self.handoff(); self.s2(); self.fusion()
        self.L("L_end"); self.I("s_endpgm"); self.L("L_codeend")
        return self.p

HEADER = """; TimeSformer block (temporal attention + spatial attention), one persistent launch.
; @launch grid=(256,1,1) block=(256,1,1) lds=%d
.amdgcn_target "amdgcn-amd-amdhsa--gfx950"
.text
.globl %s
.p2align 8
.type %s,@function
"""
FOOTER = """
.section .rodata,"a"
.p2align 6
.amdhsa_kernel %s
  .amdhsa_next_free_vgpr 512
  .amdhsa_next_free_sgpr 102
  .amdhsa_accum_offset 256
  .amdhsa_group_segment_fixed_size 0
  .amdhsa_kernarg_size 64
  .amdhsa_user_sgpr_count 2
  .amdhsa_user_sgpr_kernarg_segment_ptr 1
  .amdhsa_system_sgpr_workgroup_id_x 1
  .amdhsa_float_denorm_mode_32 3
.end_amdhsa_kernel
"""

def scenarios():
    base = {"L_fdone": [1], "L_hpoll": [0], "L_end": [0]}
    out = {}
    for w in range(4):
        for rare in (None, 0, 1, 2, 3, 4, 5):
            for r22 in (99, 0, 3, 5):
                if rare is not None and r22 not in (99, rare): continue
                c = dict(base)
                c.update({"w0": [1 if w == 0 else 0], "hwait": [0 if w == 0 else 1], "nosig": [0 if w == 0 else 1],
                          "nostat": [0 if w == 0 else 1], "ndum": [0 if w == 3 else 1]})
                for d in range(4): c[f"own{d}"] = [1 if d == w else 0]
                for r in range(6):
                    c[f"nm{r}"] = [0 if r == r22 else 1]
                    c[f"rare{r}"] = [1 if r == rare else 0]
                    c[f"ret{r}"] = [1 if r == rare else 0]
                for p in range(2):
                    c[f"noO{p}"] = [1 if rare == 0 else 0]; c[f"noN{p}"] = [1 if rare == 5 else 0]
                out[f"main_w{w}_rare{rare}_m{r22}"] = c
    for w in (0, 2):
        out[f"fus_m{w}"] = {"L_fusion": [1], "L_fus_vo_addr": [0], "fa1": [w // 2], "fbvo": [0], "fvo": [0], "L_fus_nozero": [1], "L_end": [0, w // 2]}
        out[f"fus_vo{w}"] = {"L_fusion": [1], "L_fus_vo_addr": [1], "fa1": [w // 2], "fbvo": [1], "fvo": [1], "L_fus_nozero": [0], "L_end": [0, w // 2]}
    return out

def generate(path, dbg=None):
    g = Gen(dbg); p = g.build()
    errs = []
    for name, ch in scenarios().items():
        tr = p.trace(KNAME, ch)
        errs += check_hazards(tr, name) + check_waits(tr, name)
    uniq = list(dict.fromkeys(e.split("]", 1)[1] for e in errs))
    for e in uniq[:40]: print(e)
    print(f"{len(uniq)} checker findings; {len(p.ins)} lines")
    if getattr(g, "fnames", None): open(path + ".names", "w").write("|".join(["start"] + g.fnames))
    open(path, "w").write(HEADER % (LDS_BYTES, KNAME, KNAME) + p.text() + FOOTER % KNAME)
    return len(uniq)

def parse_opts(args):
    d = {}
    for x in args:
        if "=" in x:
            k, val = x.split("="); d[k] = int(val)
        else: d[x] = 1
    return d

if __name__ == "__main__":
    out = sys.argv[1] if len(sys.argv) > 1 else "standalone__video_timesformer__vision.s"
    generate(out, parse_opts(sys.argv[2:]))
```
